```python
import torch

def _softmax(x, axis=-1):
    return torch.softmax(x, dim=axis)
def _gelu(x):
    return torch.nn.functional.gelu(x, approximate="tanh")
def _silu(x):
    return torch.nn.functional.silu(x)
def _sigmoid(x):
    return torch.sigmoid(x)
def _layernorm(x, axis=-1, eps=1e-5):
    m = x.mean(dim=axis, keepdim=True)
    v = x.var(dim=axis, keepdim=True, unbiased=False)
    return (x - m) / torch.sqrt(v + eps)
def _scatter_add(tgt, idx, src, axis=0):
    return tgt.clone().index_add_(axis, idx, src)
def _segment_sum(src, seg, n):
    out = torch.zeros((n,) + src.shape[1:], dtype=src.dtype)
    return out.index_add_(0, seg, src)
def _pad(x, pw):
    flat = tuple(v for pair in reversed(pw) for v in pair)
    return torch.nn.functional.pad(x, flat)

kernel_name = 'concat_heads__gqa_block_cached__mha_block_cached__near_ridge'

def setup_inputs():

    _w = (lambda a: (lambda t: t.to(torch.bfloat16) if t.is_floating_point() else t)(torch.as_tensor(a)))
    def _A_setup():
        B, Sq, D = 8, 128, 448
        Hq, Hkv, Sk, Dh = 16, 8, 1024, 256
        assert Hq % Hkv == 0, (Hq, Hkv)
        return {
            "x": _w((lambda *s: torch.randn(*s, dtype=torch.bfloat16) * 0.8)(B, Sq, D)),
            "k_cache": _w((lambda *s: torch.randn(*s, dtype=torch.bfloat16) * 0.8)(B, Hkv, Sk, Dh)),
            "v_cache": _w((lambda *s: torch.randn(*s, dtype=torch.bfloat16) * 0.05)(B, Hkv, Sk, Dh)),
            "wq": _w((lambda *s: torch.randn(*s, dtype=torch.bfloat16) * 0.8)(D, Hq * Dh) * (D ** -0.5)),
            "wo": _w((lambda *s: torch.randn(*s, dtype=torch.bfloat16) * 0.05)(Hq * Dh, D) * ((Hq * Dh) ** -0.5)),
        }
    _A_in = _A_setup()

    def _B_setup():
        B, Sq, D = 8, 128, 448
        H, Sk, Dh = 16, 1024, 256
        return {
            "x": _w((lambda *s: torch.randn(*s, dtype=torch.bfloat16) * 0.8)(B, Sq, D)),
            "k_cache": _w((lambda *s: torch.randn(*s, dtype=torch.bfloat16) * 0.8)(B, H, Sk, Dh)),
            "v_cache": _w((lambda *s: torch.randn(*s, dtype=torch.bfloat16) * 0.05)(B, H, Sk, Dh)),
            "wq": _w((lambda *s: torch.randn(*s, dtype=torch.bfloat16) * 0.8)(D, H * Dh) * (D ** -0.5)),
            "wo": _w((lambda *s: torch.randn(*s, dtype=torch.bfloat16) * 0.05)(H * Dh, D) * ((H * Dh) ** -0.5)),
        }
    _B_in = _B_setup()

    return {
        "A_x": _A_in["x"],
        "A_k_cache": _A_in["k_cache"],
        "A_v_cache": _A_in["v_cache"],
        "A_wq": _A_in["wq"],
        "A_wo": _A_in["wo"],
        "B_x": _B_in["x"],
        "B_k_cache": _B_in["k_cache"],
        "B_v_cache": _B_in["v_cache"],
        "B_wq": _B_in["wq"],
        "B_wo": _B_in["wo"],
    }

def reference(A_x, A_k_cache, A_v_cache, A_wq, A_wo, B_x, B_k_cache, B_v_cache, B_wq, B_wo):
    def _A_ref(x, k_cache, v_cache, wq, wo):
        B, Sq, D = x.shape
        Hq, Dh = 16, 256
        Hkv = k_cache.shape[1]
        rep = Hq // Hkv
        q = (lambda x, *d: x.permute(*d))((x @ wq).reshape(B, Sq, Hq, Dh), 0, 2, 1, 3)
        k = (lambda x, n, axis: torch.repeat_interleave(x, n, dim=axis))(k_cache, rep, axis=1)
        v = (lambda x, n, axis: torch.repeat_interleave(x, n, dim=axis))(v_cache, rep, axis=1)
        scores = torch.einsum("bhqd,bhkd->bhqk", q, k) * (Dh ** -0.5)
        p = _softmax(scores, axis=-1)
        o = torch.einsum("bhqk,bhkd->bhqd", p, v)
        return (lambda x, *d: x.permute(*d))(o, 0, 2, 1, 3).reshape(B, Sq, Hq * Dh) @ wo

    def _B_ref(x, k_cache, v_cache, wq, wo):
        B, Sq, D = x.shape
        H, Dh = 16, 256
        q = (lambda x, *d: x.permute(*d))((x @ wq).reshape(B, Sq, H, Dh), 0, 2, 1, 3)
        scores = torch.einsum("bhqd,bhkd->bhqk", q, k_cache) * (Dh ** -0.5)
        p = _softmax(scores, axis=-1)
        o = torch.einsum("bhqk,bhkd->bhqd", p, v_cache)
        return (lambda x, *d: x.permute(*d))(o, 0, 2, 1, 3).reshape(B, Sq, H * Dh) @ wo

    a = _A_ref(A_x, A_k_cache, A_v_cache, A_wq, A_wo)
    b = _B_ref(B_x, B_k_cache, B_v_cache, B_wq, B_wo)
    return torch.concatenate([a, b], axis=-1)
```

```python
NAME = "concat_heads__gqa_block_cached__mha_block_cached__near_ridge"
KN = NAME + "_kernel"

HEADER = open("cdna_kernels/" + NAME + ".s.ref").read().split("; Override launch")[0]

class Asm:
    def __init__(self):
        self.lines = []
    def __call__(self, s):
        for l in s.strip("\n").split("\n"):
            l = l.strip()
            if not l: continue
            if l.endswith(":") and not l.startswith(";"):
                self.lines.append(l)
            else:
                self.lines.append("    " + l)
    def label(self, n):
        self.lines.append(n + ":")
    def text(self):
        return "\n".join(self.lines) + "\n"

def kernel_block(name, body, vgpr, sgpr, accum):
    t = f".text\n.globl {name}\n.p2align 8\n.type {name},@function\n{name}:\n" + body
    d = (f'.section .rodata,"a"\n.p2align 6\n.amdhsa_kernel {name}\n'
         f"  .amdhsa_next_free_vgpr {vgpr}\n  .amdhsa_next_free_sgpr {sgpr}\n  .amdhsa_accum_offset {accum}\n"
         f"  .amdhsa_group_segment_fixed_size 0\n  .amdhsa_kernarg_size 104\n  .amdhsa_user_sgpr_count 2\n"
         f"  .amdhsa_user_sgpr_kernarg_segment_ptr 1\n  .amdhsa_system_sgpr_workgroup_id_x 1\n"
         f".end_amdhsa_kernel\n")
    return t, d

def whole_file(launch_lines, blocks):
    s = HEADER
    for l in launch_lines: s += l + "\n"
    s += '.amdgcn_target "amdgcn-amd-amdhsa--gfx950"\n'
    for t, d in blocks: s += t
    for t, d in blocks: s += d
    return s
```

```python
import re

def expand(tok):
    tok = tok.strip()
    neg = tok.startswith("-")
    if neg: tok = tok[1:]
    m = re.fullmatch(r"([vas])\[(\d+):(\d+)\]", tok)
    if m: return [f"{m.group(1)}{i}" for i in range(int(m.group(2)), int(m.group(3)) + 1)]
    m = re.fullmatch(r"([vas])(\d+)", tok)
    if m: return [tok]
    if tok in ("vcc", "m0", "exec", "scc"): return [tok]
    return []

TRANS = ("v_exp_f32", "v_rcp_f32", "v_log_f32", "v_rsq_f32", "v_sqrt_f32")

class I:
    __slots__ = ("text", "kind", "rd", "wr", "tag", "meta", "op", "srcC", "srcAB", "size")
    def __init__(self, text, tag=None, **meta):
        self.text = text.strip(); self.tag = tag; self.meta = meta
        self.rd = set(); self.wr = set(); self.srcC = set(); self.srcAB = set()
        t = self.text.split(";")[0].strip()
        if t.endswith(":"):
            self.kind = "label"; self.op = ""; return
        if t.startswith("@"):
            self.kind = "pseudo"; self.op = t.split()[0]; return
        if t.startswith("."):
            self.kind = "dir"; self.op = t.split()[0]; return
        parts = t.split(None, 1)
        op = parts[0]; self.op = op
        base = re.sub(r"_e(32|64)$", "", op)
        ops = []
        if len(parts) > 1:
            ops = [x.strip() for x in parts[1].split(",")]
            last = ops[-1].split()
            mods = last[1:]; ops[-1] = last[0] if last else ""
        else:
            mods = []
        E = lambda k: expand(ops[k]) if k < len(ops) else []
        allr = lambda a: [r for k in range(a, len(ops)) for r in E(k)]
        if op.startswith("v_mfma"):
            self.kind = "mfma"
            self.wr = set(E(0)); self.srcAB = set(E(1) + E(2)); self.srcC = set(E(3)); self.rd = self.srcAB | self.srcC
        elif op.startswith("ds_read") or op.startswith("ds_bpermute"):
            self.kind = "ds"; self.wr = set(E(0)); self.rd = set(allr(1))
        elif op.startswith("ds_write"):
            self.kind = "ds"; self.rd = set(allr(0))
        elif op.startswith("buffer_load") or op.startswith("global_load"):
            self.kind = "vmem"
            if "lds" in mods:
                self.rd = set(allr(0)) | {"m0"}
            else:
                self.wr = set(E(0)); self.rd = set(allr(1))
        elif op.startswith("buffer_store") or op.startswith("global_store") or op.startswith("global_atomic") or op.startswith("buffer_atomic"):
            self.kind = "vmem"; self.rd = set(allr(0))
        elif op.startswith("buffer_wbl2") or op.startswith("buffer_inv"):
            self.kind = "vmem"
        elif op.startswith("v_cmp"):
            self.kind = "valu"; self.wr = set(E(0)); self.rd = set(allr(1))
        elif op.startswith("v_permlane32_swap"):
            self.kind = "valu"; self.wr = set(allr(0)); self.rd = set(allr(0))
        elif op.startswith("v_readfirstlane") or op.startswith("v_readlane"):
            self.kind = "valu"; self.wr = set(E(0)); self.rd = set(allr(1))
        elif op.startswith("v_"):
            self.kind = "trans" if base in TRANS else "valu"
            self.wr = set(E(0)); self.rd = set(allr(1))
            if base in ("v_fmac_f32", "v_dot2c_f32_bf16"): self.rd |= self.wr
        elif op == "s_waitcnt": self.kind = "wait"
        elif op == "s_barrier": self.kind = "barrier"
        elif op == "s_nop": self.kind = "nop"
        elif op.startswith("s_load") or op in ("s_memrealtime", "s_memtime"):
            self.kind = "smem"; self.wr = set(E(0)); self.rd = set(allr(1))
        elif op.startswith("s_cbranch") or op in ("s_branch", "s_call_b64", "s_setpc_b64", "s_endpgm"):
            self.kind = "branch"
            if "vcc" in op: self.rd = {"vcc"}
        elif op.startswith("s_cmp") or op.startswith("s_bitcmp"):
            self.kind = "salu"; self.rd = set(allr(0)); self.wr = {"scc"}
        elif op.startswith("s_"):
            self.kind = "salu"; self.wr = set(E(0)); self.rd = set(allr(1))
        else:
            raise ValueError("unknown instr " + text)
    def states(self):
        if self.kind == "nop": return int(self.text.split()[1]) + 1
        if self.kind in ("label", "pseudo", "dir"): return 0
        return 1

def need_states(p, c):
    n = 0
    pv = p.kind in ("valu", "trans"); cv = c.kind in ("valu", "trans")
    vr = lambda s: {r for r in s if r[0] in "va" and r != "vcc"}
    sr = lambda s: {r for r in s if (r[0] == "s" and r != "scc") or r == "vcc"}
    if p.kind == "mfma":
        passes8 = "32x32" in p.op
        big = 12 if passes8 else 8
        if c.kind == "mfma":
            if c.srcAB & p.wr: n = max(n, big)
            if (c.srcC & p.wr) and c.srcC != p.wr: n = max(n, big - 2)
            if (c.wr & p.wr) and not (c.srcC & p.wr): n = max(n, big)
        elif cv or c.kind in ("ds", "vmem"):
            if (c.rd | c.wr) & p.wr: n = max(n, big)
            if cv and (c.wr & p.srcC): n = max(n, 7 if passes8 else 3)
    if pv:
        if c.kind == "mfma" and (c.rd & vr(p.wr)): n = max(n, 2)
        if p.kind == "trans" and cv and (c.rd & p.wr): n = max(n, 1)
        if c.op.startswith("v_permlane") and (c.rd & vr(p.wr)): n = max(n, 2)
        if (c.op.startswith("v_readfirstlane") or c.op.startswith("v_readlane")) and (c.rd & vr(p.wr)): n = max(n, 1)
        if sr(p.wr):
            if c.kind == "vmem" and (c.rd & sr(p.wr)): n = max(n, 5)
            if cv and (c.rd & sr(p.wr)): n = max(n, 2)
            if c.kind in ("salu", "branch") and (c.rd & sr(p.wr)): n = max(n, 1)
        if p.op.startswith("v_dot2") and (cv or c.kind in ("vmem", "ds")) and ((c.rd | c.wr) & p.wr):
            if not (c.op == p.op and not ((c.rd - c.wr) & p.wr)): n = max(n, 3)
    if p.kind == "vmem" and ("store" in p.op) and ("x4" in p.op or "x3" in p.op):
        if (cv or c.kind in ("ds", "vmem", "mfma")) and (c.wr & vr(p.rd)): n = max(n, 2)
    if p.kind == "salu" and "m0" in p.wr and c.kind == "vmem" and "m0" in c.rd: n = max(n, 1)
    return n

class Stream:
    def __init__(self):
        self.ins = []
    def __call__(self, s, tag=None, **meta):
        for l in s.strip("\n").split("\n"):
            l = l.strip()
            if l and not l.startswith(";"):
                self.ins.append(I(l, tag, **meta))
    def add(self, i): self.ins.append(i)

def resolve(ins, pair_waits=True, verbose=False):
    out = []
    dsq = []
    vmq = []
    landed = set()
    visible = set()
    slot_tile = {}
    reads_open = {}
    done_ds = set()
    safe_tiles = set()
    nnop = 0
    def emit(i):
        nonlocal nnop
        need = 0; dist = 0
        for p in reversed(out):
            if dist >= 20: break
            if p.kind == "pseudo" and p.op == "@fence": break
            k = need_states(p, i)
            if k > dist: need = max(need, k - dist)
            dist += p.states()
        if need:
            nnop += 1
            out.append(I(f"s_nop {need-1}", auto=True))
        out.append(i)
    def wait_ds(n):
        while len(dsq) > n:
            d = dsq.pop(0); done_ds.add(id(d))
    def wait_vm(n):
        while len(vmq) > n:
            d = vmq.pop(0)
            t = d.meta.get("tile")
            if t is not None and not any(x.meta.get("tile") == t for x in vmq): landed.add(t)
    for idx, i in enumerate(ins):
        if i.kind == "pseudo" and i.op == "@waitvm":
            tags = i.text.split()[1:]
            last = -1
            for k, d in enumerate(vmq):
                if d.tag in tags or d.meta.get("tile") in tags: last = k
            if last >= 0 or i.meta.get("force"):
                n = len(vmq) - 1 - last
                assert n <= 63
                emit(I(f"s_waitcnt vmcnt({n})")); wait_vm(n)
            continue
        if i.kind == "pseudo":
            out.append(i); continue
        if i.kind == "wait":
            m = re.search(r"lgkmcnt\((\d+)\)", i.text)
            if m: wait_ds(int(m.group(1)))
            m = re.search(r"vmcnt\((\d+)\)", i.text)
            if m: wait_vm(int(m.group(1)))
            emit(i); continue
        touched = i.rd | i.wr
        last = -1
        for k, d in enumerate(dsq):
            if d.wr & touched: last = k
        if last >= 0:
            if pair_waits and i.kind == "mfma":
                for j in range(idx + 1, min(idx + 16, len(ins))):
                    if ins[j].kind == "mfma":
                        l2 = -1
                        for k, d in enumerate(dsq):
                            if d.wr & ins[j].rd: l2 = k
                        if l2 > last and len(dsq) - 1 - l2 >= 2: last = l2
                        break
            n = len(dsq) - 1 - last
            assert n <= 15, "lgkmcnt overflow"
            emit(I(f"s_waitcnt lgkmcnt({n})", auto=True)); wait_ds(n)
        last = -1
        for k, d in enumerate(vmq):
            if d.wr & touched: last = k
        if last >= 0:
            n = len(vmq) - 1 - last
            assert n <= 63
            emit(I(f"s_waitcnt vmcnt({n})", auto=True)); wait_vm(n)
        if i.kind == "barrier":
            visible |= landed
            for t, l in list(reads_open.items()):
                l[:] = [d for d in l if id(d) not in done_ds]
        if i.kind == "ds":
            t = i.meta.get("tile")
            if t is not None:
                if i.meta.get("private"): assert t in landed, f"read of {t} before own wait: {i.text}"
                else: assert t in visible, f"read of {t} before it is visible: {i.text}"
                assert slot_tile.get(i.meta["slot"]) == t, f"slot {i.meta['slot']} holds {slot_tile.get(i.meta['slot'])}, wanted {t}"
                reads_open.setdefault(t, []).append(i)
            dsq.append(i)
            assert len(dsq) <= 16, "too many ds ops in flight"
        if i.kind == "vmem":
            t = i.meta.get("tile")
            if t is not None:
                s = i.meta["slot"]; old = slot_tile.get(s)
                if old is not None and old != t:
                    l = reads_open.get(old, [])
                    l2 = [d for d in l if not (d.meta.get("private") and id(d) in done_ds)]
                    assert not l2, f"DMA {t} into slot {s} while reads of {old} may be pending"
                    assert old in reads_open or i.meta.get("unread_ok"), f"tile {old} overwritten before being read"
                slot_tile[s] = t
            if not i.meta.get("untracked"): vmq.append(i)
            assert len(vmq) <= 61, "too many vmem ops in flight"
        emit(i)
    if verbose: print("auto nops:", nnop)
    return out

def text_of(ins):
    o = []
    for i in ins:
        if i.kind == "pseudo": continue
        o.append(i.text if i.kind == "label" else "    " + i.text)
    return "\n".join(o) + "\n"
```

```python
import sys, math, struct
from asmlib import *
from stream import *

def f2u(x): return struct.unpack("<I", struct.pack("<f", x))[0]

DEF = dict(LA=5, PDK=2, PDV=2, kv_aux="nt", w_aux="nt", x_aux="nt", stamps=False, dump=None,
           st_aux="sc1", ld_aux="sc1", rot=True, wsoff=0x1000000, thr=4096.0, early_k=10, sleep=2)

O0 = 128
SB = [96, 112]
PB = [80, 88]
TT = [72, 73, 74, 75]
V_MC, V_L, V_LT, V_T0, V_T1, V_RI = 76, 77, 78, 79, 71, 70
KA = list(range(8, 16))
TA1 = list(range(16, 20))
TA0 = list(range(20, 24))
XA = list(range(24, 28))
KD = list(range(28, 32)); VD = [32, 33]; QD = list(range(34, 38)); XD = list(range(38, 42)); WD = list(range(42, 46))
WA = [[46, 47], [48, 49], [50, 51]]
V_L16 = 52
V_OUT = 53
V_FLG = 54; V_FLG2 = 55; V_ONE = 56; V_POLL = 57; V_DBG = 58
PK = 60
A_Q = 0; A_F = 64; NF = 16; A_X = 128

S_X, S_K, S_V, S_WQ, S_WO, S_P, S_OUT = 32, 36, 40, 44, 48, 52, 56
S_DBG = 26; S_WS = 28
S_W4K, S_WAVE, S_BR, S_B, S_H, S_G = 60, 61, 62, 63, 64, 65
S_KOFF, S_VOFF, S_QU, S_T0, S_T1, S_C, S_THR, S_CNT, S_OU, S_OS, S_PB = 66, 67, 68, 69, 70, 71, 72, 73, 74, 75, 76
S_RET = 78
S_FL = 80
S_ST = 84

PART_W = 28672; PART_H = 4 * PART_W; PART_G = 16 * PART_H
FLAG_OFF = 0x100000

def vr(a, n): return f"v[{a}:{a+n-1}]"
def ar(a, n): return f"a[{a}:{a+n-1}]"

def build(**kw):
    P = dict(DEF); P.update(kw)
    LA = P["LA"]
    s = Stream()
    nstamp = [0]
    def stamp_ins():
        if not P["stamps"]: return []
        k = nstamp[0]; nstamp[0] += 1
        assert k < 8
        return [I("s_waitcnt lgkmcnt(0)"), I(f"s_memrealtime s[{S_ST+2*k}:{S_ST+2*k+1}]"), I("s_waitcnt lgkmcnt(0)")]

    s("s_cmp_ge_u32 s2, 256\ns_cbranch_scc1 L_end")
    for i in stamp_ins(): s.add(i)
    s(f"""
    s_load_dwordx16 s[4:19], s[0:1], 0
    s_load_dwordx8 s[20:27], s[0:1], 64
    s_load_dwordx2 s[28:29], s[0:1], 96
    v_lshrrev_b32 v1, 6, v0
    v_and_b32 v2, 63, v0
    s_and_b32 s30, s2, 7
    v_readfirstlane_b32 s{S_WAVE}, v1
    s_lshr_b32 s31, s2, 3
    s_lshr_b32 s{S_BR}, s31, 4
    s_bfe_u32 s3, s31, 0x10003
    s_and_b32 s{S_B}, s31, 7
    s_lshl_b32 s{S_H}, s30, 1
    s_add_u32 s{S_H}, s{S_H}, s3
    s_lshl_b32 s{S_G}, s{S_BR}, 3
    s_add_u32 s{S_G}, s{S_G}, s{S_B}
    s_lshl_b32 s{S_W4K}, s{S_WAVE}, 12
    """)
    if P["rot"]:
        s(f"""
        s_mul_i32 s{S_QU}, s3, 3
        s_add_u32 s{S_QU}, s{S_QU}, s{S_B}
        s_cmp_ge_u32 s{S_QU}, 7
        s_cselect_b32 s{S_T0}, 7, 0
        s_sub_u32 s{S_QU}, s{S_QU}, s{S_T0}
        """)
    else:
        s(f"s_mov_b32 s{S_QU}, 0")
    s(f"""
    s_mov_b32 s{S_OU}, s{S_QU}
    s_mov_b32 s{S_OS}, s{S_QU}
    s_lshl_b32 s{S_T0}, s{S_B}, 3
    s_add_u32 s{S_T0}, s{S_T0}, s30
    s_lshl_b32 s{S_T1}, s{S_B}, 4
    s_add_u32 s{S_T1}, s{S_T1}, s{S_H}
    s_cmp_eq_u32 s{S_BR}, 0
    s_cselect_b32 s31, s{S_T0}, s{S_T1}
    s_lshl_b32 s31, s31, 19
    """)
    s(f"""
    v_lshrrev_b32 v3, 5, v2
    v_and_b32 v4, 31, v2
    v_lshlrev_b32 v{V_L16}, 4, v2
    """)
    s(f"""
    v_lshrrev_b32 v5, 3, v2
    v_and_b32 v6, 7, v2
    v_lshrrev_b32 v7, 4, v2
    v_lshl_add_u32 v59, v1, 5, v5
    v_mul_u32_u24 v59, 896, v59
    v_xor_b32 v60, v6, v7
    v_lshl_add_u32 v{XD[0]}, v60, 4, v59
    v_xor_b32 v60, 4, v60
    v_lshl_add_u32 v{XD[1]}, v60, 4, v59
    v_add_u32 v{XD[2]}, {2*6144}, v{XD[0]}
    v_add_u32 v{XD[3]}, {3*6144}, v{XD[1]}
    v_add_u32 v{XD[1]}, 6144, v{XD[1]}
    """)
    s(f"""
    v_and_b32 v60, 1, v7
    v_lshlrev_b32 v60, 2, v60
    v_xor_b32 v60, v60, v6
    v_lshl_add_u32 v{WD[0]}, v60, 4, v59
    v_add_u32 v{WD[1]}, 6144, v{WD[0]}
    v_add_u32 v{WD[2]}, {2*6144}, v{WD[0]}
    v_add_u32 v{WD[3]}, {3*6144}, v{WD[0]}
    """)
    s(f"""
    v_lshl_add_u32 v5, v1, 3, v3
    v_lshlrev_b32 v6, 2, v3
    v_xor_b32 v6, v6, v4
    v_lshlrev_b32 v6, 4, v6
    v_xor_b32 v7, 0x80, v6
    v_lshl_add_u32 v{VD[0]}, v5, 9, v6
    v_lshl_add_u32 v{VD[1]}, v5, 9, v7
    v_lshl_add_u32 v{QD[0]}, v5, 13, v6
    v_lshl_add_u32 v{QD[1]}, v5, 13, v7
    v_add_u32 v{QD[2]}, {2*15360}, v{QD[0]}
    v_add_u32 v{QD[3]}, {3*15360}, v{QD[1]}
    v_add_u32 v{QD[1]}, 15360, v{QD[1]}
    """)
    s("s_waitcnt lgkmcnt(0)")
    s(f"""
    s_cmp_eq_u32 s{S_BR}, 0
    s_cselect_b32 s{S_X}, s4, s14
    s_cselect_b32 s{S_X+1}, s5, s15
    s_cselect_b32 s{S_K}, s6, s16
    s_cselect_b32 s{S_K+1}, s7, s17
    s_cselect_b32 s{S_V}, s8, s18
    s_cselect_b32 s{S_V+1}, s9, s19
    s_cselect_b32 s{S_WQ}, s10, s20
    s_cselect_b32 s{S_WQ+1}, s11, s21
    s_cselect_b32 s{S_WO}, s12, s22
    s_cselect_b32 s{S_WO+1}, s13, s23
    s_mul_i32 s{S_T0}, s{S_B}, 114688
    s_add_u32 s{S_X}, s{S_X}, s{S_T0}
    s_addc_u32 s{S_X+1}, s{S_X+1}, 0
    s_mov_b32 s{S_X+2}, 114688
    s_mov_b32 s{S_X+3}, 0x20000
    s_lshl_b32 s{S_T0}, s{S_H}, 9
    s_add_u32 s{S_WQ}, s{S_WQ}, s{S_T0}
    s_addc_u32 s{S_WQ+1}, s{S_WQ+1}, 0
    s_sub_u32 s{S_WQ+2}, {448*8192}, s{S_T0}
    s_mov_b32 s{S_WQ+3}, 0x20000
    """)

    def dma(tile, slot, regs, srd, soff, aux, private=False):
        l = [I(f"s_add_u32 m0, s{S_W4K}, {slot*16384}")]
        for i in range(4):
            l.append(I(f"buffer_load_dwordx4 v{regs[i]}, s[{srd}:{srd+3}], {soff} offen offset:{1024*i} {aux} lds".replace("  ", " "),
                       tile=tile, slot=slot))
        return l
    WQ_SLOT = [6, 7, 4, 2, 5, 3]
    def dma_x(u):
        return [I(f"s_lshl_b32 s{S_T0}, s{S_QU}, 7")] + dma(f"X{u}", 8 + (u & 1), XD, S_X, f"s{S_T0}", P["x_aux"])
    def dma_wq(j):
        if j & 1 == 0:
            l = [I(f"s_lshl_b32 s{S_T1}, s{S_QU}, 19")]
        else:
            l = [I(f"s_add_u32 s{S_T1}, s{S_T1}, 0x40000"), I(f"s_add_u32 s{S_QU}, s{S_QU}, 1"),
                 I(f"s_cmp_eq_u32 s{S_QU}, 7"), I(f"s_cselect_b32 s{S_QU}, 0, s{S_QU}")]
        return l + dma(f"WQ{j}", WQ_SLOT[j % 6], QD, S_WQ, f"s{S_T1}", P["w_aux"])
    def dma_k(t):
        return dma(f"K{t}", t % 4, KD, S_K, f"s{S_KOFF}", P["kv_aux"]) + [I(f"s_add_u32 s{S_KOFF}, s{S_KOFF}, 0x4000")]
    def dma_v(t):
        return dma(f"V{t}", 4 + t % 4, [VD[0], VD[1], VD[0], VD[1]], S_V, f"s{S_VOFF}", P["kv_aux"]) + [I(f"s_add_u32 s{S_VOFF}, s{S_VOFF}, 0x4000")]
    WO_SLOT = [8, 9, 0, 1, 2, 4, 3, 5, 6, 7, 8, 9, 0, 1]
    def dma_wo(j):
        if j & 1 == 0:
            l = [I(f"s_lshl_b32 s{S_T1}, s{S_OU}, 7")]
        else:
            l = [I(f"s_add_u32 s{S_T1}, s{S_T1}, 114688"), I(f"s_add_u32 s{S_OU}, s{S_OU}, 1"),
                 I(f"s_cmp_eq_u32 s{S_OU}, 7"), I(f"s_cselect_b32 s{S_OU}, 0, s{S_OU}")]
        return l + dma(f"WO{j}", WO_SLOT[j], WD, S_WO, f"s{S_T1}", P["w_aux"])

    for l in (dma_x(0), dma_wq(0), dma_wq(1)):
        for i in l: s.add(i)
    s(f"""
    s_add_u32 s{S_K}, s{S_K}, s31
    s_addc_u32 s{S_K+1}, s{S_K+1}, 0
    s_mov_b32 s{S_K+2}, 0x80000
    s_mov_b32 s{S_K+3}, 0x20000
    s_add_u32 s{S_V}, s{S_V}, s31
    s_addc_u32 s{S_V+1}, s{S_V+1}, 0
    s_mov_b32 s{S_V+2}, 0x80000
    s_mov_b32 s{S_V+3}, 0x20000
    s_mul_i32 s{S_T0}, s{S_H}, 229376
    s_add_u32 s{S_WO}, s{S_WO}, s{S_T0}
    s_addc_u32 s{S_WO+1}, s{S_WO+1}, 0
    s_mov_b32 s{S_WO+2}, 229376
    s_mov_b32 s{S_WO+3}, 0x20000
    s_mul_i32 s{S_T0}, s{S_G}, {PART_G}
    s_add_u32 s{S_T0}, s{S_T0}, {P['wsoff']}
    s_add_u32 s{S_P}, s{S_WS}, s{S_T0}
    s_addc_u32 s{S_P+1}, s{S_WS+1}, 0
    s_mov_b32 s{S_P+2}, {PART_G}
    s_mov_b32 s{S_P+3}, 0x20000
    s_mov_b32 s{S_OUT}, s24
    s_mov_b32 s{S_OUT+1}, s25
    s_mov_b32 s{S_OUT+2}, {8*128*896*2}
    s_mov_b32 s{S_OUT+3}, 0x20000
    s_mul_i32 s{S_PB}, s{S_H}, {PART_H}
    s_mul_i32 s{S_T0}, s{S_WAVE}, {PART_W}
    s_add_u32 s{S_PB}, s{S_PB}, s{S_T0}
    s_lshl_b32 s{S_T0}, s{S_G}, 12
    s_add_u32 s{S_T0}, s{S_T0}, {FLAG_OFF}
    s_add_u32 s{S_FL}, s{S_WS}, s{S_T0}
    s_addc_u32 s{S_FL+1}, s{S_WS+1}, 0
    s_mov_b32 s{S_KOFF}, 0
    s_mov_b32 s{S_VOFF}, 0
    s_mov_b32 s{S_C}, {f2u(math.log2(math.e)/16.0):#x}
    s_mov_b32 s{S_THR}, {f2u(P['thr']):#x}
    """)
    s(f"""
    v_and_b32 v59, 15, v2
    s_lshl_b32 s{S_T0}, s{S_H}, 8
    v_lshl_add_u32 v{V_FLG}, v59, 2, s{S_T0}
    s_lshl_b32 s{S_T0}, s{S_H}, 2
    v_lshl_add_u32 v{V_FLG2}, v59, 8, s{S_T0}
    v_mov_b32 v{V_POLL}, 0
    s_lshl_b32 s{S_T0}, s{S_G}, 2
    v_mov_b32 v{V_DBG}, s{S_T0}
    """)
    s(f"s_cmp_lg_u32 s{S_WAVE}, 0\ns_cbranch_scc1 L_noclr\ns_mov_b64 exec, 0xffff")
    s(f"global_atomic_swap v{V_T1}, v{V_FLG}, v{V_POLL}, s[{S_FL}:{S_FL+1}] sc0", untracked=True)
    s("s_mov_b64 exec, -1\nL_noclr:")
    for l in (dma_x(1), dma_wq(2), dma_wq(3)):
        for i in l: s.add(i)
    for i in range(4):
        s(f"""
        v_add_u32 v6, {2*i}, v5
        v_and_b32 v6, 15, v6
        v_xor_b32 v6, v6, v4
        v_lshlrev_b32 v6, 4, v6
        v_lshl_add_u32 v{KD[i]}, v5, 9, v6
        """)
    s(f"""
    v_and_b32 v5, 0x13, v4
    v_bfe_u32 v6, v4, 2, 1
    v_lshl_add_u32 v5, v6, 3, v5
    v_bfe_u32 v6, v4, 3, 1
    v_lshl_add_u32 v5, v6, 2, v5
    v_and_b32 v6, 15, v5
    v_xor_b32 v6, v6, v3
    v_lshlrev_b32 v5, 9, v5
    """)
    for k in range(8):
        s(f"""
        v_xor_b32 v7, {2*k}, v6
        v_lshl_add_u32 v{KA[k]}, v7, 4, v5
        """)
    s(f"""
    v_bfe_u32 v5, v2, 2, 2
    v_bfe_u32 v6, v2, 4, 1
    v_and_b32 v7, 1, v2
    v_bfe_u32 v59, v2, 1, 1
    v_lshl_add_u32 v60, v3, 3, v5
    v_lshlrev_b32 v61, 9, v60
    v_lshl_add_u32 v61, v6, 5, v61
    v_lshl_add_u32 v61, v7, 4, v61
    v_lshl_add_u32 v61, v59, 3, v61
    """)
    for j in range(4):
        s(f"""
        v_xor_b32 v62, {j}, v5
        v_lshl_add_u32 v{TA0[j]}, v62, 6, v61
        v_add_u32 v{TA1[j]}, 0x10000, v{TA0[j]}
        """)
    s(f"""
    v_lshlrev_b32 v61, 7, v60
    v_lshl_add_u32 v61, v7, 5, v61
    v_lshl_add_u32 v61, v6, 4, v61
    v_lshl_add_u32 v61, v59, 3, v61
    v_lshrrev_b32 v62, 1, v5
    v_lshl_add_u32 v{WA[0][0]}, v62, 6, v61
    v_xor_b32 v{WA[0][1]}, 64, v{WA[0][0]}
    v_add_u32 v{WA[1][0]}, 0x10000, v{WA[0][0]}
    v_add_u32 v{WA[1][1]}, 0x10000, v{WA[0][1]}
    v_add_u32 v{WA[2][0]}, 0x20000, v{WA[0][0]}
    v_add_u32 v{WA[2][1]}, 0x20000, v{WA[0][1]}
    """)
    s(f"""
    v_bfe_u32 v5, v4, 1, 3
    v_xor_b32 v5, v5, v3
    v_lshlrev_b32 v6, 7, v4
    v_lshl_add_u32 v6, v1, 12, v6
    v_add_u32 v6, 0x20000, v6
    """)
    for k in range(4):
        s(f"""
        v_xor_b32 v7, {2*k}, v5
        v_lshl_add_u32 v{XA[k]}, v7, 4, v6
        """)
    s(f"""
    v_mul_u32_u24 v5, 1792, v4
    v_lshl_add_u32 v{V_OUT}, v3, 5, v5
    v_mov_b32 v{V_ONE}, 1
    """)

    M = []
    gaps = {}
    def G(k, prio, l):
        gaps.setdefault(k, {}).setdefault(prio, []).extend(l if isinstance(l, list) else [l])
    def frag(k): return A_F + 4 * (k % NF)
    def tread(k, tile, slot, areg, off, second):
        f = frag(k)
        return [I(f"ds_read_b64_tr_b16 {ar(f,2)}, v{areg} offset:{off}", tile=tile, slot=slot),
                I(f"ds_read_b64_tr_b16 {ar(f+2,2)}, v{areg} offset:{off+second}", tile=tile, slot=slot)]
    def barrier(k, tiles, extra=[]):
        G(k, 0, [I("@waitvm " + " ".join(tiles))] + extra + [I("s_barrier")])
    def spread(l, k0, k1, prio=3, w=None):
        cost = [(2.0 if i.kind == "trans" else 1.0) for i in l]
        tot = sum(cost); n = k1 - k0 + 1; acc = 0.0
        for i, c in zip(l, cost):
            g = min(n - 1, int((acc + c / 2) / tot * n)); acc += c
            G(k0 + g, prio, i)
    def spread_dma(l, k0, k1):
        groups = []; cur = []
        for i in l:
            cur.append(i)
            if i.kind == "vmem": groups.append(cur); cur = []
        if cur: groups[-1].extend(cur)
        n = k1 - k0 + 1
        for q, g in enumerate(groups):
            G(k0 + min(n - 1, q * n // len(groups)), 2, g)

    for j in range(14):
        u = j >> 1; slot = WQ_SLOT[j % 6]; ta = TA1 if slot >= 4 else TA0; base = (slot & 3) * 16384
        kb = len(M)
        bk = max(kb - LA - 1, -1)
        extra = []
        barrier(bk, [f"WQ{j}", f"X{u}"])
        if j & 1 == 0:
            xr = [I(f"ds_read_b128 {ar(A_X + 16*(u&1) + 4*q, 4)}, v{XA[q]} offset:{(u&1)*16384}", tile=f"X{u}", slot=8 + (u & 1), private=True) for q in range(4)]
            for q in range(4): G(bk + q if kb > 0 else bk, 1, xr[q:q+1])
        for ks in range(2):
            for jj in range(8):
                k = len(M)
                G(max(k - LA, -1) if k - LA > bk else bk, 1, tread(k, f"WQ{j}", slot, ta[jj & 3], base + (jj >> 2) * 256 + ks * 8192, 2048))
                c = "0" if (j == 0 and ks == 0) else vr(O0 + 16 * jj, 16)
                M.append(I(f"v_mfma_f32_32x32x16_bf16 {vr(O0+16*jj,16)}, {ar(frag(k),4)}, {ar(A_X+16*(u&1)+4*(2*(j&1)+ks),4)}, {c}"))
        l = []
        if j + 4 <= 13:
            l += dma_wq(j + 4)
            if j & 1 == 0: l += dma_x(u + 2)
        if j == P["early_k"]: l += dma_k(0) + dma_k(1)
        if j == 11: l += dma_v(0)
        if j == 12 and P["PDK"] >= 2: l += dma_k(2)
        if j == 13:
            if P["PDV"] >= 2: l += dma_v(1)
            if P["PDK"] >= 3: l += dma_k(3)
        if l: spread_dma(l, kb, kb + 15 - LA - 2)
        if j == 2:
            G(kb, 4, [I(f"s_cmp_lg_u32 s{S_WAVE}, 0"), I("s_cbranch_scc1 L_noann"), I("s_mov_b64 exec, 1"),
                      I(f"global_atomic_add v{V_DBG}, v{V_ONE}, s[{S_DBG}:{S_DBG+1}]", tag="ANN", untracked=True), I("s_mov_b64 exec, -1"), I("L_noann:")])
    kq_end = len(M)

    def softmax_ops(t):
        S = SB[t & 1]; Pp = PB[t & 1]; l = []
        T = lambda e: TT[e & 3]
        l.append(I(f"v_fma_f32 v{T(0)}, v{S}, s{S_C}, -v{V_MC}"))
        for e in range(17):
            if e + 1 < 16: l.append(I(f"v_fma_f32 v{T(e+1)}, v{S+e+1}, s{S_C}, -v{V_MC}"))
            if e < 16: l.append(I(f"v_exp_f32 v{T(e)}, v{T(e)}"))
            d = e - 1
            if d == 1: l.append(I(f"v_add_f32 v{V_LT}, v{T(0)}, v{T(1)}"))
            elif d > 1: l.append(I(f"v_add_f32 v{V_LT}, v{V_LT}, v{T(d)}"))
            if d >= 1 and d & 1: l.append(I(f"v_cvt_pk_bf16_f32 v{Pp+(d>>1)}, v{T(d-1)}, v{T(d)}"))
        return l
    def maxtree(S):
        l = [I(f"v_max3_f32 v{V_T0}, v{S}, v{S+1}, v{S+2}")]
        for e in range(3, 15, 2): l.append(I(f"v_max3_f32 v{V_T0}, v{V_T0}, v{S+e}, v{S+e+1}"))
        l += [I(f"v_max_f32 v{V_T0}, v{V_T0}, v{S+15}"), I(f"v_mov_b32 v{V_T1}, v{V_T0}"),
              I(f"v_permlane32_swap_b32 v{V_T0}, v{V_T1}"), I(f"v_max_f32 v{V_T0}, v{V_T0}, v{V_T1}"),
              I(f"v_mul_f32 v{V_T0}, s{S_C}, v{V_T0}")]
        return l
    def qk(t, bk):
        slot = t % 4
        for q in range(16):
            k = len(M)
            G(max(k - LA, bk), 1, I(f"ds_read_b128 {ar(frag(k),4)}, v{KA[q&7]} offset:{slot*16384 + (q>>3)*256}", tile=f"K{t}", slot=slot))
            c = "0" if q == 0 else vr(SB[t & 1], 16)
            M.append(I(f"v_mfma_f32_32x32x16_bf16 {vr(SB[t&1],16)}, {ar(frag(k),4)}, {ar(A_Q+4*q,4)}, {c}"))
    def pv(t, bk):
        slot = 4 + t % 4
        for ks in range(2):
            for jj in range(8):
                k = len(M)
                G(max(k - LA, bk), 1, tread(k, f"V{t}", slot, TA1[jj & 3], (t % 4) * 16384 + (jj >> 2) * 256 + ks * 8192, 2048))
                M.append(I(f"v_mfma_f32_32x32x16_bf16 {vr(O0+16*jj,16)}, {ar(frag(k),4)}, {vr(PB[t&1]+4*ks,4)}, {vr(O0+16*jj,16)}"))

    G(kq_end - 1, 5, stamp_ins())
    barrier(kq_end - LA - 1, ["K0"])
    def qconv(jj):
        l = []
        for q in range(8):
            t = TT[q & 3]
            l.append(I(f"v_cvt_pk_bf16_f32 v{t}, v{O0+16*jj+2*q}, v{O0+16*jj+2*q+1}"))
            l.append(I(f"v_accvgpr_write_b32 a{A_Q+8*jj+q}, v{t}"))
        return l
    G(kq_end - 1, 6, qconv(0))
    k0 = len(M)
    qk(0, kq_end - LA - 1)
    for jj in range(1, 8):
        l = qconv(jj)
        G(k0 + 2 * jj - 2, 3, l[:8]); G(k0 + 2 * jj - 1, 3, l[8:])
    if P["dump"] == "q":
        pass
    zero = [I(f"v_mov_b32 v{O0+i}, 0") for i in range(128)]
    kz = len(M) - 1
    G(kz - 1, 4, zero[:8]); G(kz, 4, zero[8:])
    SPLIT = P.get("split", 26)
    sm0 = softmax_ops(0)
    G(kz, 5, maxtree(SB[0]) + [I(f"v_mov_b32 v{V_MC}, v{V_T0}"), I(f"v_mov_b32 v{V_L}, 0")] + sm0[:SPLIT])
    G(kz, 6, [I(f"s_mov_b32 s{S_CNT}, 0")] + stamp_ins())
    stubs = []
    step_start = []
    bk = len(M) - LA - 1
    barrier(bk, ["K1", "V0"])
    for t in range(32):
        ks = len(M); step_start.append(ks)
        sm = softmax_ops(t)
        lab = f"{t%4}" if t < 28 else f"{t}"
        chk = [I(f"v_cmp_nge_f32 vcc, s{S_THR}, v{V_LT}"), I(f"s_cbranch_vccnz L_fix{lab}"), I(f"L_ret{lab}:"),
               I(f"v_add_f32 v{V_L}, v{V_L}, v{V_LT}")]
        if t < 4 or t >= 28: stubs.append((lab, t & 1))
        if t < 31:
            qk(t + 1, bk)
            spread(sm[SPLIT:], ks, ks + 14)
            G(ks + 15, 4, chk)
            kp = len(M)
            pv(t, bk)
        else:
            G(ks - 1, 6, chk)
            kp = len(M)
            pv(t, bk)
        if t < 30:
            spread(softmax_ops(t + 1)[:SPLIT], kp + 3, kp + 15)
        elif t == 30:
            spread(softmax_ops(t + 1), kp + 3, kp + 15)
        l = []
        tv = t + P["PDV"]; tk = t + 1 + P["PDK"]
        if tk <= 31: l += dma_k(tk)
        if tv <= 31: l += dma_v(tv)
        if t == 29: l += dma_wo(0)
        if t == 30: l += dma_wo(1) + dma_wo(2)
        if t == 31: l += dma_wo(3) + dma_wo(4)
        kend = len(M)
        if t < 31: spread_dma(l, ks, kend - LA - 2)
        else: spread_dma(l, ks, kend - LA - 2)
        if t < 30:
            bk = kend - LA - 1
            barrier(bk, [f"K{t+2}", f"V{t+1}"])
        elif t == 30:
            bk = kend - 1
            G(bk, 7, [I("@waitvm V31"), I("s_barrier")])
        if t == 20:
            pass
        if t < 28 and t % 4 == 3:
            G(kend - 1, 9, [I(f"s_add_u32 s{S_CNT}, s{S_CNT}, 1"), I(f"s_cmp_lt_u32 s{S_CNT}, 7"), I("s_cbranch_scc1 L_loop")])
    g = gaps[bk]
    late = [i for i in g.get(1, []) if i.meta.get("tile") == "V31"]
    g[1] = [i for i in g.get(1, []) if i.meta.get("tile") != "V31"]
    g[8] = late
    km_end = len(M)

    G(step_start[28], 2, [I(f"global_load_dword v{V_POLL}, v{V_DBG}, s[{S_DBG}:{S_DBG+1}] sc1", tag="HS")])
    lsum = [I(f"v_mov_b32 v{V_T1}, v{V_L}"), I(f"v_permlane32_swap_b32 v{V_L}, v{V_T1}"),
            I(f"v_add_f32 v{V_L}, v{V_L}, v{V_T1}"), I(f"v_rcp_f32 v{V_RI}, v{V_L}")]
    G(km_end - 12, 4, lsum)
    G(km_end - 1, 5, stamp_ins())
    def oconv(jj):
        return [I(f"v_cvt_pk_bf16_f32 v{O0+8*jj+q}, v{O0+16*jj+2*q}, v{O0+16*jj+2*q+1}") for q in range(8)]
    G(km_end - 1, 6, oconv(0))
    ACC = [[SB[0], SB[1]], [O0 + 64, O0 + 80]]
    STG = [PK, 80]
    def finish(u):
        l = [I(f"s_lshl_b32 s{S_T0}, s{S_OS}, 12"), I(f"s_add_u32 s{S_T0}, s{S_T0}, s{S_PB}"),
             I(f"s_add_u32 s{S_OS}, s{S_OS}, 1"), I(f"s_cmp_eq_u32 s{S_OS}, 7"), I(f"s_cselect_b32 s{S_OS}, 0, s{S_OS}")]
        for jn in range(2):
            a = ACC[u & 1][jn]; st = STG[jn]
            for q in range(8):
                l.append(I(f"v_mul_f32 v{a+2*q}, v{V_RI}, v{a+2*q}"))
                l.append(I(f"v_mul_f32 v{a+2*q+1}, v{V_RI}, v{a+2*q+1}"))
                l.append(I(f"v_cvt_pk_bf16_f32 v{st+q}, v{a+2*q}, v{a+2*q+1}"))
                if q & 3 == 3:
                    l.append(I(f"buffer_store_dwordx4 {vr(st+q-3,4)}, v{V_L16}, s[{S_P}:{S_P+3}], s{S_T0} offen offset:{jn*2048+(q>>2)*1024} {P['st_aux']}", tag="PST"))
        return l
    for j in range(14):
        u = j >> 1; kh = j & 1; slot = WO_SLOT[j]; wa = WA[slot >> 2]; base = (slot & 3) * 16384
        kb = len(M); bk = kb - LA - 1
        barrier(bk, [f"WO{j}"])
        for q in range(8):
            for jn in range(2):
                k = len(M)
                G(max(k - LA, bk), 1, tread(k, f"WO{j}", slot, wa[jn], base + q * 2048, 512))
                a = ACC[u & 1][jn]
                c = "0" if (kh == 0 and q == 0) else vr(a, 16)
                M.append(I(f"v_mfma_f32_32x32x16_bf16 {vr(a,16)}, {ar(frag(k),4)}, {vr(O0+4*(8*kh+q),4)}, {c}"))
        l = []
        if j == 0: l = dma_wo(5) + dma_wo(6)
        elif j == 1: l = dma_wo(7) + dma_wo(8)
        elif j == 2: l = dma_wo(9) + dma_wo(10)
        elif j <= 5: l = dma_wo(j + 8)
        if l: spread_dma(l, kb, kb + 15 - LA - 2)
        if u == 0:
            for jj in range(4 * kh + 1, min(8, 4 * kh + 5)):
                kk = kb + 4 * (jj - 1 - 4 * kh)
                spread(oconv(jj), kk, kk + 2)
        if kh == 0 and u > 0:
            fl = finish(u - 1)
            G(kb + 1, 3, fl[:5])
            spread(fl[5:], kb + 3, kb + 29)
    G(len(M) - 1, 5, finish(6))

    def flush(k):
        for pr in sorted(gaps.get(k, {})):
            for i in gaps[k][pr]: s.add(i)
    flush(-1)
    for k, m in enumerate(M):
        if k in step_start and step_start.index(k) % 4 == 0 and step_start.index(k) <= 28:
            s.add(I(f"@block {step_start.index(k)//4}"))
        s.add(m); flush(k)

    for i in stamp_ins(): s.add(i)
    s(f"""
    s_waitcnt vmcnt(0)
    s_barrier
    """)
    for i in stamp_ins(): s.add(i)
    s(f"""
    s_cmp_lg_u32 s{S_WAVE}, 0
    s_cbranch_scc1 L_wait
    s_mov_b32 s{S_CNT}, 0
    L_hs:
    v_readfirstlane_b32 s{S_T0}, v{V_POLL}
    s_cmp_ge_u32 s{S_T0}, 16
    s_cbranch_scc1 L_hsok
    s_add_u32 s{S_CNT}, s{S_CNT}, 1
    s_cmp_ge_u32 s{S_CNT}, 0x100000
    s_cbranch_scc1 L_hsok
    s_sleep 8
    global_load_dword v{V_POLL}, v{V_DBG}, s[{S_DBG}:{S_DBG+1}] sc1
    s_waitcnt vmcnt(0)
    s_branch L_hs
    L_hsok:
    s_mov_b64 exec, 0xffff
    global_store_dword v{V_FLG2}, v{V_ONE}, s[{S_FL}:{S_FL+1}] sc1
    L_poll:
    global_load_dword v{V_POLL}, v{V_FLG}, s[{S_FL}:{S_FL+1}] sc1
    s_waitcnt vmcnt(0)
    v_cmp_ne_u32 vcc, 1, v{V_POLL}
    s_cbranch_vccz L_pollok
    s_add_u32 s{S_CNT}, s{S_CNT}, 1
    s_cmp_ge_u32 s{S_CNT}, 0x100000
    s_cbranch_scc1 L_pollok
    s_sleep {P['sleep']}
    s_branch L_poll
    L_pollok:
    s_mov_b64 exec, -1
    L_wait:
    s_barrier
    """)
    for i in stamp_ins(): s.add(i)
    s(f"""
    s_lshl_b32 s{S_T0}, s{S_H}, 2
    s_add_u32 s{S_T0}, s{S_T0}, s{S_WAVE}
    s_cmp_ge_u32 s{S_T0}, 56
    s_cbranch_scc1 L_done
    s_lshl_b32 s{S_T1}, s{S_T0}, 11
    """)
    for h in range(16):
        for j in range(2):
            s(f"buffer_load_dwordx4 {vr(O0+8*h+4*j,4)}, v{V_L16}, s[{S_P}:{S_P+3}], s{S_T1} offen offset:{1024*j} {P['ld_aux']}")
        if h < 15: s(f"s_add_u32 s{S_T1}, s{S_T1}, {PART_H}")
    s(f"""
    s_mul_i32 s{S_T1}, s{S_T0}, 4682
    s_lshr_b32 s{S_T1}, s{S_T1}, 16
    s_mul_i32 s30, s{S_T1}, 14
    s_sub_u32 s30, s{S_T0}, s30
    s_lshl_b32 s31, s{S_B}, 2
    s_add_u32 s31, s31, s{S_T1}
    s_mul_i32 s31, s31, {32*1792}
    s_lshl_b32 s30, s30, 6
    s_add_u32 s31, s31, s30
    s_mul_i32 s30, s{S_BR}, 896
    s_add_u32 s31, s31, s30
    s_mov_b32 s30, 0xffff0000
    """)
    A0 = SB[0]
    for h in range(16):
        for q in range(8):
            r = O0 + 8 * h + q
            if h == 0:
                s(f"v_lshlrev_b32 v{A0+2*q}, 16, v{r}\nv_and_b32 v{A0+2*q+1}, s30, v{r}")
            else:
                s(f"v_lshlrev_b32 v{TT[0]}, 16, v{r}\nv_and_b32 v{TT[1]}, s30, v{r}\n"
                  f"v_add_f32 v{A0+2*q}, v{A0+2*q}, v{TT[0]}\nv_add_f32 v{A0+2*q+1}, v{A0+2*q+1}, v{TT[1]}")
    for q in range(8):
        s(f"v_cvt_pk_bf16_f32 v{PK+q}, v{A0+2*q}, v{A0+2*q+1}")
    s(f"""
    buffer_store_dwordx4 {vr(PK,4)}, v{V_OUT}, s[{S_OUT}:{S_OUT+3}], s31 offen
    buffer_store_dwordx4 {vr(PK+4,4)}, v{V_OUT}, s[{S_OUT}:{S_OUT+3}], s31 offen offset:16
    L_done:
    """)
    if P["stamps"]:
        s("s_waitcnt vmcnt(0)\ns_barrier")
        for i in stamp_ins(): s.add(i)
        for k in range(8): s(f"v_mov_b32 v{60+k}, s{S_ST+2*k}" if k < nstamp[0] else f"v_mov_b32 v{60+k}, 0")
        s(f"""
        s_lshl_b32 s3, s2, 5
        v_mov_b32 v59, s3
        s_cmp_lg_u32 s{S_WAVE}, 0
        s_cbranch_scc1 L_end
        s_mov_b64 exec, 1
        global_store_dwordx4 v59, v[60:63], s[{S_WS}:{S_WS+1}]
        global_store_dwordx4 v59, v[64:67], s[{S_WS}:{S_WS+1}] offset:16
        """)
    s("L_end:\ns_endpgm")

    ins = resolve(s.ins, verbose=True)
    marks = [k for k, i in enumerate(ins) if i.kind == "pseudo" and i.op == "@block"]
    blocks = [text_of(ins[marks[b]:marks[b+1]]) for b in range(7)]
    for b in range(1, 7):
        if blocks[b] != blocks[0]:
            import difflib
            print("".join(list(difflib.unified_diff(blocks[0].splitlines(1), blocks[b].splitlines(1), n=1))[:60]))
            raise SystemExit(f"block {b} differs from block 0")
    body = text_of(ins[:marks[0]]) + ".p2align 3\nL_loop:\n" + blocks[0] + text_of(ins[marks[7]:])

    r = Stream()
    for lab, par in stubs:
        r(f"L_fix{lab}:\ns_call_b64 s[{S_RET}:{S_RET+1}], L_rescale{par}\ns_branch L_ret{lab}")
    for par in range(2):
        r(f"L_rescale{par}:\ns_nop 15\n@fence")
        for i in maxtree(SB[par]): r.add(i)
        r(f"""
        v_max_f32 v{V_T0}, v{V_T0}, v{V_MC}
        v_sub_f32 v{V_T1}, v{V_MC}, v{V_T0}
        v_exp_f32 v{V_T1}, v{V_T1}
        v_mov_b32 v{V_MC}, v{V_T0}
        v_mul_f32 v{V_L}, v{V_L}, v{V_T1}
        """)
        for i in range(128): r(f"v_mul_f32 v{O0+i}, v{V_T1}, v{O0+i}")
        for i in softmax_ops(par): r.add(i)
        r(f"s_nop 3\ns_setpc_b64 s[{S_RET}:{S_RET+1}]")
    body += text_of(resolve(r.ins))
    return whole_file(["; @launch grid=(256,1,1) block=(256,1,1) lds=163840"], [kernel_block(KN, body, 512, 102, 256)])

if __name__ == "__main__":
    out = sys.argv[1]
    kw = {}
    for a in sys.argv[2:]:
        k, v = a.split("=", 1)
        try: v = eval(v)
        except Exception: pass
        kw[k] = v
    open(out, "w").write(build(**kw))
```

```python
import re

def expand(tok):
    tok = tok.strip()
    neg = tok.startswith("-")
    if neg: tok = tok[1:]
    m = re.fullmatch(r"([vas])\[(\d+):(\d+)\]", tok)
    if m: return [f"{m.group(1)}{i}" for i in range(int(m.group(2)), int(m.group(3)) + 1)]
    m = re.fullmatch(r"([vas])(\d+)", tok)
    if m: return [tok]
    if tok in ("vcc_lo", "vcc_hi"): return ["vcc"]
    if tok in ("vcc", "m0", "exec", "scc"): return [tok]
    return []

TRANS = ("v_exp_f32", "v_rcp_f32", "v_log_f32", "v_rsq_f32", "v_sqrt_f32")

class I:
    __slots__ = ("text", "kind", "rd", "wr", "tag", "meta", "op", "srcC", "srcAB", "size")
    def __init__(self, text, tag=None, **meta):
        self.text = text.strip(); self.tag = tag; self.meta = meta
        self.rd = set(); self.wr = set(); self.srcC = set(); self.srcAB = set()
        t = self.text.split(";")[0].strip()
        if t.endswith(":"):
            self.kind = "label"; self.op = ""; return
        if t.startswith("@"):
            self.kind = "pseudo"; self.op = t.split()[0]; return
        if t.startswith("."):
            self.kind = "dir"; self.op = t.split()[0]; return
        parts = t.split(None, 1)
        op = parts[0]; self.op = op
        base = re.sub(r"_e(32|64)$", "", op)
        ops = []
        if len(parts) > 1:
            ops = [x.strip() for x in parts[1].split(",")]
            last = ops[-1].split()
            mods = last[1:]; ops[-1] = last[0] if last else ""
        else:
            mods = []
        E = lambda k: expand(ops[k]) if k < len(ops) else []
        allr = lambda a: [r for k in range(a, len(ops)) for r in E(k)]
        if op.startswith("v_mfma"):
            self.kind = "mfma"
            self.wr = set(E(0)); self.srcAB = set(E(1) + E(2)); self.srcC = set(E(3)); self.rd = self.srcAB | self.srcC
        elif op.startswith("ds_read") or op.startswith("ds_bpermute"):
            self.kind = "ds"; self.wr = set(E(0)); self.rd = set(allr(1))
        elif op.startswith("ds_write"):
            self.kind = "ds"; self.rd = set(allr(0))
        elif op.startswith("buffer_load") or op.startswith("global_load"):
            self.kind = "vmem"
            if "lds" in mods:
                self.rd = set(allr(0)) | {"m0"}
            else:
                self.wr = set(E(0)); self.rd = set(allr(1))
        elif op.startswith("buffer_store") or op.startswith("global_store") or op.startswith("global_atomic") or op.startswith("buffer_atomic"):
            self.kind = "vmem"; self.rd = set(allr(0))
        elif op.startswith("buffer_wbl2") or op.startswith("buffer_inv"):
            self.kind = "vmem"
        elif op.startswith("v_cmp"):
            self.kind = "valu"; self.wr = set(E(0)); self.rd = set(allr(1))
        elif op.startswith("v_permlane32_swap") or op.startswith("v_permlane16_swap"):
            self.kind = "valu"; self.wr = set(allr(0)); self.rd = set(allr(0))
        elif op.startswith("v_readfirstlane") or op.startswith("v_readlane"):
            self.kind = "valu"; self.wr = set(E(0)); self.rd = set(allr(1))
        elif op.startswith("v_"):
            self.kind = "trans" if base in TRANS else "valu"
            self.wr = set(E(0)); self.rd = set(allr(1))
            if base in ("v_fmac_f32", "v_dot2c_f32_bf16"): self.rd |= self.wr
        elif op == "s_waitcnt": self.kind = "wait"
        elif op == "s_barrier": self.kind = "barrier"
        elif op == "s_nop": self.kind = "nop"
        elif op.startswith("s_atomic"):
            self.kind = "smem"; self.rd = set(allr(0))
        elif op.startswith("s_load") or op in ("s_memrealtime", "s_memtime"):
            self.kind = "smem"; self.wr = set(E(0)); self.rd = set(allr(1))
        elif op.startswith("s_cbranch") or op in ("s_branch", "s_call_b64", "s_setpc_b64", "s_endpgm"):
            self.kind = "branch"
            if "vcc" in op: self.rd = {"vcc"}
        elif op.startswith("s_cmp") or op.startswith("s_bitcmp"):
            self.kind = "salu"; self.rd = set(allr(0)); self.wr = {"scc"}
        elif op.startswith("s_"):
            self.kind = "salu"; self.wr = set(E(0)); self.rd = set(allr(1))
        else:
            raise ValueError("unknown instr " + text)
    def states(self):
        if self.kind == "nop": return int(self.text.split()[1]) + 1
        if self.kind in ("label", "pseudo", "dir"): return 0
        return 1

def need_states(p, c):
    n = 0
    pv = p.kind in ("valu", "trans"); cv = c.kind in ("valu", "trans")
    vr = lambda s: {r for r in s if r[0] in "va" and r != "vcc"}
    sr = lambda s: {r for r in s if (r[0] == "s" and r != "scc") or r == "vcc"}
    if p.kind == "mfma":
        passes8 = "32x32" in p.op
        big = 12 if passes8 else 8
        if c.kind == "mfma":
            if c.srcAB & p.wr: n = max(n, big)
            if (c.srcC & p.wr) and c.srcC != p.wr: n = max(n, big - 2)
            if (c.wr & p.wr) and not (c.srcC & p.wr): n = max(n, big)
        elif cv or c.kind in ("ds", "vmem"):
            if (c.rd | c.wr) & p.wr: n = max(n, big)
            if cv and (c.wr & p.srcC): n = max(n, 7 if passes8 else 3)
    if pv:
        if c.kind == "mfma" and (c.rd & vr(p.wr)): n = max(n, 2)
        if p.kind == "trans" and cv and (c.rd & p.wr): n = max(n, 1)
        if c.op.startswith("v_permlane") and (c.rd & vr(p.wr)): n = max(n, 2)
        if (c.op.startswith("v_readfirstlane") or c.op.startswith("v_readlane")) and (c.rd & vr(p.wr)): n = max(n, 1)
        if sr(p.wr):
            if c.kind == "vmem" and (c.rd & sr(p.wr)): n = max(n, 5)
            if cv and (c.rd & sr(p.wr)): n = max(n, 2)
            if c.kind in ("salu", "branch") and (c.rd & sr(p.wr)): n = max(n, 1)
        if p.op.startswith("v_dot2") and (cv or c.kind in ("vmem", "ds")) and ((c.rd | c.wr) & p.wr):
            if not (c.op == p.op and not ((c.rd - c.wr) & p.wr)): n = max(n, 3)
    if p.kind == "vmem" and ("store" in p.op) and ("x4" in p.op or "x3" in p.op):
        if (cv or c.kind in ("ds", "vmem", "mfma")) and (c.wr & vr(p.rd)): n = max(n, 2)
    if p.kind == "salu" and "m0" in p.wr and c.kind == "vmem" and "m0" in c.rd: n = max(n, 1)
    return n

class Stream:
    def __init__(self):
        self.ins = []
    def __call__(self, s, tag=None, **meta):
        for l in s.strip("\n").split("\n"):
            l = l.strip()
            if l and not l.startswith(";"):
                self.ins.append(I(l, tag, **meta))
    def add(self, i): self.ins.append(i)

def resolve(ins, pair_waits=True, verbose=False):
    out = []
    dsq = []
    vmq = []
    landed = set()
    visible = set()
    slot_tile = {}
    reads_open = {}
    done_ds = set()
    safe_tiles = set()
    nnop = 0
    cur_m0 = [None]
    def emit(i):
        nonlocal nnop
        need = 0; dist = 0
        for p in reversed(out):
            if dist >= 20: break
            if p.kind == "pseudo" and p.op == "@fence": break
            k = need_states(p, i)
            if k > dist: need = max(need, k - dist)
            dist += p.states()
        if need:
            nnop += 1
            out.append(I(f"s_nop {need-1}", auto=True))
        out.append(i)
    def wait_ds(n):
        while len(dsq) > n:
            d = dsq.pop(0); done_ds.add(id(d))
    def wait_vm(n):
        while len(vmq) > n:
            d = vmq.pop(0)
            t = d.meta.get("tile")
            if t is not None and not any(x.meta.get("tile") == t for x in vmq): landed.add(t)
    for idx, i in enumerate(ins):
        if i.kind == "pseudo" and i.op == "@waitvm":
            tags = i.text.split()[1:]
            last = -1
            for k, d in enumerate(vmq):
                if d.tag in tags or d.meta.get("tile") in tags: last = k
            if last >= 0 or i.meta.get("force"):
                n = len(vmq) - 1 - last
                assert n <= 63
                emit(I(f"s_waitcnt vmcnt({n})")); wait_vm(n)
            continue
        if i.kind == "pseudo" and i.op == "@waitnext":
            tags = i.text.split()[1:]
            nxt = []
            for j in range(idx + 1, len(ins)):
                if ins[j].kind == "mfma":
                    nxt.append(ins[j])
                    if len(nxt) == 2: break
                if ins[j].kind == "pseudo" and ins[j].op == "@stop": break
            need = set()
            for m_ in nxt: need |= m_.rd
            last = -1
            for k, d in enumerate(dsq):
                if d.wr & need or d.meta.get("tile") in i.meta.get("drain", ()): last = k
            w = []
            lv = -1
            for k, d in enumerate(vmq):
                if d.tag in tags or d.meta.get("tile") in tags: lv = k
            if lv >= 0:
                n = len(vmq) - 1 - lv; assert n <= 63
                w.append(f"vmcnt({n})"); wait_vm(n)
            if last >= 0:
                n = len(dsq) - 1 - last; assert n <= 15
                w.append(f"lgkmcnt({n})"); wait_ds(n)
            if w: emit(I("s_waitcnt " + " ".join(w), auto=True))
            continue
        if i.kind == "pseudo":
            out.append(i); continue
        if i.kind == "wait" and i.meta.get("blind"):
            emit(i); continue
        if i.kind == "wait":
            m = re.search(r"lgkmcnt\((\d+)\)", i.text)
            if m: wait_ds(int(m.group(1)))
            m = re.search(r"vmcnt\((\d+)\)", i.text)
            if m: wait_vm(int(m.group(1)))
            emit(i); continue
        touched = i.rd | i.wr
        if i.meta.get("nodep"): touched = set(i.rd)
        last = -1
        for k, d in enumerate(dsq):
            if d.wr & touched: last = k
        if last >= 0:
            if pair_waits and i.kind == "mfma":
                for j in range(idx + 1, min(idx + 16, len(ins))):
                    if ins[j].kind == "mfma":
                        l2 = -1
                        for k, d in enumerate(dsq):
                            if d.wr & ins[j].rd: l2 = k
                        if l2 > last and len(dsq) - 1 - l2 >= 2: last = l2
                        break
            n = len(dsq) - 1 - last
            assert n <= 15, "lgkmcnt overflow"
            emit(I(f"s_waitcnt lgkmcnt({n})", auto=True)); wait_ds(n)
        last = -1
        for k, d in enumerate(vmq):
            if d.wr & touched: last = k
        if last >= 0:
            n = len(vmq) - 1 - last
            assert n <= 63
            emit(I(f"s_waitcnt vmcnt({n})", auto=True)); wait_vm(n)
        if i.kind == "barrier":
            visible |= landed
            for t, l in list(reads_open.items()):
                l[:] = [d for d in l if id(d) not in done_ds]
        if i.kind == "ds":
            t = i.meta.get("tile")
            if t is not None:
                if i.meta.get("private"): assert t in landed, f"read of {t} before own wait: {i.text}"
                else: assert t in visible, f"read of {t} before it is visible: {i.text}"
                assert slot_tile.get(i.meta["slot"]) == t, f"slot {i.meta['slot']} holds {slot_tile.get(i.meta['slot'])}, wanted {t}"
                reads_open.setdefault(t, []).append(i)
            dsq.append(i)
            assert len(dsq) <= 16, "too many ds ops in flight"
        if i.kind == "salu" and "m0" in i.wr:
            cur_m0[0] = i.text.split(",")[-1].strip()
        if i.kind == "vmem":
            t = i.meta.get("tile")
            if t is not None:
                assert cur_m0[0] == str(i.meta["slot"] * 16384), f"m0 mismatch for {t}"
                s = i.meta["slot"]; old = slot_tile.get(s)
                if old is not None and old != t:
                    l = reads_open.get(old, [])
                    l2 = [d for d in l if not (d.meta.get("private") and id(d) in done_ds)]
                    assert not l2, f"DMA {t} into slot {s} while reads of {old} may be pending"
                    assert old in reads_open or i.meta.get("unread_ok"), f"tile {old} overwritten before being read"
                slot_tile[s] = t
            if not i.meta.get("untracked"): vmq.append(i)
            assert len(vmq) <= 61, "too many vmem ops in flight"
        emit(i)
    if verbose: print("auto nops:", nnop)
    return out

def text_of(ins):
    o = []
    for i in ins:
        if i.kind == "pseudo": continue
        o.append(i.text if i.kind == "label" else "    " + i.text)
    return "\n".join(o) + "\n"
```

```python
import sys, math, struct
from asmlib import *
from stream import *

def f2u(x): return struct.unpack("<I", struct.pack("<f", x))[0]

DEF = dict(LA=4, PDK=3, PDV=2, kv_aux="nt", wq_aux="nt", wo_aux="", x_aux="", stamps=False,
           st_aux="sc1", ld_aux="sc1", rot=1, orot=1, wsoff=0x1000000, thr=4096.0, early_k=10, sleep=2, dsp=2,
           sm_start=2, ann="s", cpf=1)

O0 = 128
SB = [96, 112]
PB = [80, 88]
NM = 72
TT = list(range(0, 8))
V_L = [64, 65]; V_LT = [66, 67]; V_T0, V_T1 = 62, 63; V_RI = [60, 61]
KA = list(range(8, 12))
TA1 = list(range(12, 20))
TA0 = list(range(20, 28))
XA = [28, 29]
KD = [30, 31]; VD = [32, 33]; QD = list(range(34, 38)); XD = list(range(38, 42)); WD = list(range(42, 46))
WA = [list(range(46, 50)), list(range(20, 24)), list(range(24, 28))]
V_L16 = 50; V_OUT = 51
V_FLG = 52; V_FLG2 = 53; V_ONE = 54; V_POLL = 55; V_DBG = 56; V_ST = 57; V_CP = 68
A_Q = 0; A_F = 64; NF = 16; A_X = 128

S_X, S_K, S_V, S_WQ, S_WO, S_P, S_OUT = 32, 36, 40, 44, 48, 52, 56
S_DBG = 26; S_WS = 28
S_W4K, S_WAVE, S_BR, S_B, S_H, S_G = 60, 61, 62, 63, 64, 65
S_KOFF, S_VOFF, S_QU, S_T0, S_T1, S_THR, S_CNT, S_OU, S_OS, S_PB = 66, 67, 68, 69, 70, 72, 73, 74, 75, 76
S_RET = 78; S_FL = 80; S_C = 82
S_ST = 84; S_G4 = 88; S_ONE = 89; S_PC = 90

PART_W = 28672; PART_H = 4 * PART_W; PART_G = 16 * PART_H
FLAG_OFF = 0x100000

def vr(a, n): return f"v[{a}:{a+n-1}]"
def ar(a, n): return f"a[{a}:{a+n-1}]"
def cost(i):
    if i.kind == "trans" or i.op.startswith("v_permlane"): return 2
    if i.kind in ("label", "pseudo"): return 0
    return 1

class Pair:
    def __init__(self):
        self.m = []; self.reads = []; self.mem = []; self.ops = []; self.sc0 = []; self.sc1 = []
        self.pre = []; self.post = []; self.vmtags = []; self.drain = []
    def free(self):
        return 4 - len(self.reads) - len(self.mem) - sum(cost(i) for i in self.ops) - max(0, len(self.sc0) - 1) - len(self.sc1)

def build(**kw):
    P = dict(DEF); P.update(kw)
    LA = P["LA"]
    ADV = "0" if P.get("noadv") else "0x4000"
    s = Stream()
    nstamp = [0]
    def stamp_ins():
        if not P["stamps"]: return []
        k = nstamp[0]; nstamp[0] += 1
        assert k < 16
        return [I("s_waitcnt lgkmcnt(0)", blind=True), I(f"s_memrealtime s[{S_ST}:{S_ST+1}]"), I(f"s_memtime s[{S_ST+2}:{S_ST+3}]"),
                I("s_waitcnt lgkmcnt(0)", blind=True), I(f"v_writelane_b32 v{V_ST}, s{S_ST}, {k}"), I(f"v_writelane_b32 v{V_ST}, s{S_ST+2}, {16+k}")]

    s("s_cmp_ge_u32 s2, 256\ns_cbranch_scc1 L_end")
    for i in stamp_ins(): s.add(i)
    s(f"""
    s_load_dwordx16 s[4:19], s[0:1], 0
    s_load_dwordx8 s[20:27], s[0:1], 64
    s_load_dwordx2 s[28:29], s[0:1], 96
    v_lshrrev_b32 v1, 6, v0
    v_and_b32 v2, 63, v0
    s_and_b32 s30, s2, 7
    v_readfirstlane_b32 s{S_WAVE}, v1
    s_lshr_b32 s31, s2, 3
    s_lshr_b32 s{S_BR}, s31, 4
    s_bfe_u32 s3, s31, 0x10003
    s_and_b32 s{S_B}, s31, 7
    s_lshl_b32 s{S_H}, s30, 1
    s_add_u32 s{S_H}, s{S_H}, s3
    s_lshl_b32 s{S_G}, s{S_BR}, 3
    s_add_u32 s{S_G}, s{S_G}, s{S_B}
    s_lshl_b32 s{S_W4K}, s{S_WAVE}, 12
    """)
    def rotation(dst, mode):
        if mode == 0: s(f"s_mov_b32 s{dst}, 0"); return
        if mode == 1: s(f"s_mul_i32 s{dst}, s3, 3\ns_add_u32 s{dst}, s{dst}, s{S_B}")
        if mode == 2: s(f"s_mov_b32 s{dst}, s{S_B}")
        if mode == 3: s(f"s_and_b32 s{dst}, s{S_B}, 1\ns_mul_i32 s{dst}, s{dst}, 3")
        if mode == 4: s(f"s_and_b32 s{dst}, s{S_B}, 3\ns_lshl_b32 s{dst}, s{dst}, 1")
        s(f"s_cmp_ge_u32 s{dst}, 7\ns_cselect_b32 s{S_T0}, 7, 0\ns_sub_u32 s{dst}, s{dst}, s{S_T0}")
    rotation(S_QU, P["rot"]); rotation(S_OU, P["orot"])
    s(f"""
    s_mov_b32 s{S_OS}, s{S_OU}
    s_lshl_b32 s{S_T0}, s{S_B}, 3
    s_add_u32 s{S_T0}, s{S_T0}, s30
    s_lshl_b32 s{S_T1}, s{S_B}, 4
    s_add_u32 s{S_T1}, s{S_T1}, s{S_H}
    s_cmp_eq_u32 s{S_BR}, 0
    s_cselect_b32 s31, s{S_T0}, s{S_T1}
    s_lshl_b32 s31, s31, 19
    """)
    s(f"""
    v_lshrrev_b32 v3, 5, v2
    v_and_b32 v4, 31, v2
    v_lshlrev_b32 v{V_L16}, 4, v2
    v_lshrrev_b32 v5, 3, v2
    v_and_b32 v6, 7, v2
    v_lshrrev_b32 v7, 4, v2
    v_lshl_add_u32 v58, v1, 5, v5
    v_mul_u32_u24 v58, 896, v58
    v_xor_b32 v59, v6, v7
    v_lshl_add_u32 v{XD[0]}, v59, 4, v58
    v_xor_b32 v59, 4, v59
    v_lshl_add_u32 v{XD[1]}, v59, 4, v58
    v_add_u32 v{XD[2]}, {2*6144}, v{XD[0]}
    v_add_u32 v{XD[3]}, {3*6144}, v{XD[1]}
    v_add_u32 v{XD[1]}, 6144, v{XD[1]}
    """)
    s(f"""
    v_lshlrev_b32 v59, 1, v7
    v_xor_b32 v59, v59, v6
    v_lshl_add_u32 v{WD[0]}, v59, 4, v58
    v_add_u32 v{WD[1]}, 6144, v{WD[0]}
    v_add_u32 v{WD[2]}, {2*6144}, v{WD[0]}
    v_add_u32 v{WD[3]}, {3*6144}, v{WD[0]}
    """)
    s(f"""
    v_lshl_add_u32 v5, v1, 3, v3
    v_and_b32 v6, 1, v1
    v_lshl_add_u32 v6, v6, 2, v3
    v_lshlrev_b32 v6, 1, v6
    v_xor_b32 v6, v6, v4
    v_lshlrev_b32 v6, 4, v6
    v_xor_b32 v59, 64, v6
    v_lshl_add_u32 v{VD[0]}, v5, 9, v6
    v_lshl_add_u32 v{VD[1]}, v5, 9, v59
    v_lshl_add_u32 v{QD[0]}, v5, 13, v6
    v_lshl_add_u32 v{QD[1]}, v5, 13, v59
    v_add_u32 v{QD[2]}, {2*15360}, v{QD[0]}
    v_add_u32 v{QD[3]}, {3*15360}, v{QD[1]}
    v_add_u32 v{QD[1]}, 15360, v{QD[1]}
    """)
    s(f"""
    v_lshl_add_u32 v6, v1, 2, v3
    v_xor_b32 v6, v6, v4
    v_lshlrev_b32 v6, 4, v6
    v_xor_b32 v59, 32, v6
    v_lshl_add_u32 v{KD[0]}, v5, 9, v6
    v_lshl_add_u32 v{KD[1]}, v5, 9, v59
    """)
    s("s_waitcnt lgkmcnt(0)")
    s(f"""
    s_cmp_eq_u32 s{S_BR}, 0
    s_cselect_b32 s{S_X}, s4, s14
    s_cselect_b32 s{S_X+1}, s5, s15
    s_cselect_b32 s{S_WQ}, s10, s20
    s_cselect_b32 s{S_WQ+1}, s11, s21
    s_cselect_b32 s{S_K}, s6, s16
    s_cselect_b32 s{S_K+1}, s7, s17
    s_cselect_b32 s{S_V}, s8, s18
    s_cselect_b32 s{S_V+1}, s9, s19
    s_cselect_b32 s{S_WO}, s12, s22
    s_cselect_b32 s{S_WO+1}, s13, s23
    s_mul_i32 s{S_T0}, s{S_B}, 114688
    s_add_u32 s{S_X}, s{S_X}, s{S_T0}
    s_addc_u32 s{S_X+1}, s{S_X+1}, 0
    s_mov_b32 s{S_X+2}, 114688
    s_mov_b32 s{S_X+3}, 0x20000
    s_lshl_b32 s{S_T0}, s{S_H}, 9
    s_add_u32 s{S_WQ}, s{S_WQ}, s{S_T0}
    s_addc_u32 s{S_WQ+1}, s{S_WQ+1}, 0
    s_sub_u32 s{S_WQ+2}, {448*8192}, s{S_T0}
    s_mov_b32 s{S_WQ+3}, 0x20000
    """)

    def dma(tile, slot, regs, srd, soff, aux, pre=[], post=[], **meta):
        l = [I(f"buffer_load_dwordx4 v{regs[i]}, s[{srd}:{srd+3}], {soff} offen offset:{1024*i} {aux} lds".replace("  ", " "),
               tile=tile, slot=slot, **meta) for i in range(4)]
        return ([I(x) for x in pre] + [I(f"s_add_u32 m0, s{S_W4K}, {slot*16384}")], l, [I(x) for x in post])
    WQ_SLOT = [6, 7, 4, 2, 5, 3]
    nxt = lambda r: [f"s_add_u32 s{r}, s{r}, 1", f"s_cmp_eq_u32 s{r}, 7", f"s_cselect_b32 s{r}, 0, s{r}"]
    def dma_x(u): return dma(f"X{u}", 8 + (u & 1), XD, S_X, f"s{S_T0}", P["x_aux"], pre=[f"s_lshl_b32 s{S_T0}, s{S_QU}, 7"])
    def dma_wq(j):
        if j & 1 == 0: return dma(f"WQ{j}", WQ_SLOT[j % 6], QD, S_WQ, f"s{S_T1}", P["wq_aux"], pre=[f"s_lshl_b32 s{S_T1}, s{S_QU}, 19"])
        return dma(f"WQ{j}", WQ_SLOT[j % 6], QD, S_WQ, f"s{S_T1}", P["wq_aux"], pre=[f"s_add_u32 s{S_T1}, s{S_T1}, 0x40000"], post=nxt(S_QU))
    def dma_k(t): return dma(f"K{t}", t % 4, KD * 2, S_K, f"s{S_KOFF}", P["kv_aux"], post=[f"s_add_u32 s{S_KOFF}, s{S_KOFF}, {ADV}"])
    def dma_v(t): return dma(f"V{t}", 4 + t % 4, VD * 2, S_V, f"s{S_VOFF}", P["kv_aux"], post=[f"s_add_u32 s{S_VOFF}, s{S_VOFF}, {ADV}"])
    WO_SLOT = [8, 9, 0, 1, 2, 4, 3, 5, 6, 7, 8, 9, 0, 1]
    def dma_wo(j):
        if j & 1 == 0: return dma(f"WO{j}", WO_SLOT[j], WD, S_WO, f"s{S_T1}", P["wo_aux"], pre=[f"s_lshl_b32 s{S_T1}, s{S_OU}, 7"], unread_ok=True)
        return dma(f"WO{j}", WO_SLOT[j], WD, S_WO, f"s{S_T1}", P["wo_aux"], pre=[f"s_add_u32 s{S_T1}, s{S_T1}, 114688"], post=nxt(S_OU), unread_ok=True)
    def flat(d): return d[0] + d[1] + d[2]

    for d in (dma_x(0), dma_wq(0), dma_wq(1)):
        for i in flat(d): s.add(i)
    if P["cpf"]:
        s(f"""
        s_getpc_b64 s[{S_PC}:{S_PC+1}]
        L_pc:
        s_lshl_b32 s{S_T0}, s{S_B}, 2
        s_add_u32 s{S_T0}, s{S_T0}, s{S_WAVE}
        s_lshl_b32 s{S_T0}, s{S_T0}, 11
        v_and_b32 v{V_CP}, 15, v2
        v_lshl_add_u32 v{V_CP}, v{V_CP}, 7, s{S_T0}
        v_min_u32 v{V_CP}, (L_codeend-L_pc-4), v{V_CP}
        """)
        s(f"global_load_dword v{V_CP+1}, v{V_CP}, s[{S_PC}:{S_PC+1}]")
    s(f"""
    s_add_u32 s{S_K}, s{S_K}, s31
    s_addc_u32 s{S_K+1}, s{S_K+1}, 0
    s_mov_b32 s{S_K+2}, 0x80000
    s_mov_b32 s{S_K+3}, 0x20000
    s_add_u32 s{S_V}, s{S_V}, s31
    s_addc_u32 s{S_V+1}, s{S_V+1}, 0
    s_mov_b32 s{S_V+2}, 0x80000
    s_mov_b32 s{S_V+3}, 0x20000
    s_mul_i32 s{S_T0}, s{S_H}, 229376
    s_add_u32 s{S_WO}, s{S_WO}, s{S_T0}
    s_addc_u32 s{S_WO+1}, s{S_WO+1}, 0
    s_mov_b32 s{S_WO+2}, 229376
    s_mov_b32 s{S_WO+3}, 0x20000
    s_mul_i32 s{S_T0}, s{S_G}, {PART_G}
    s_add_u32 s{S_T0}, s{S_T0}, {P['wsoff']}
    s_add_u32 s{S_P}, s{S_WS}, s{S_T0}
    s_addc_u32 s{S_P+1}, s{S_WS+1}, 0
    s_mov_b32 s{S_P+2}, {PART_G}
    s_mov_b32 s{S_P+3}, 0x20000
    s_mov_b32 s{S_OUT}, s24
    s_mov_b32 s{S_OUT+1}, s25
    s_mov_b32 s{S_OUT+2}, {8*128*896*2}
    s_mov_b32 s{S_OUT+3}, 0x20000
    s_mul_i32 s{S_PB}, s{S_H}, {PART_H}
    s_mul_i32 s{S_T0}, s{S_WAVE}, {PART_W}
    s_add_u32 s{S_PB}, s{S_PB}, s{S_T0}
    s_lshl_b32 s{S_T0}, s{S_G}, 12
    s_add_u32 s{S_T0}, s{S_T0}, {FLAG_OFF}
    s_add_u32 s{S_FL}, s{S_WS}, s{S_T0}
    s_addc_u32 s{S_FL+1}, s{S_WS+1}, 0
    s_mov_b32 s{S_KOFF}, 0
    s_mov_b32 s{S_VOFF}, 0
    s_mov_b32 s{S_C}, {f2u(math.log2(math.e)/16.0):#x}
    s_mov_b32 s{S_C+1}, s{S_C}
    s_mov_b32 s{S_THR}, {f2u(P['thr']):#x}
    s_lshl_b32 s{S_G4}, s{S_G}, 4
    s_mov_b32 s{S_ONE}, 1
    """)
    s(f"""
    v_and_b32 v58, 15, v2
    s_lshl_b32 s{S_T0}, s{S_H}, 8
    v_lshl_add_u32 v{V_FLG}, v58, 2, s{S_T0}
    s_lshl_b32 s{S_T0}, s{S_H}, 2
    v_lshl_add_u32 v{V_FLG2}, v58, 8, s{S_T0}
    v_mov_b32 v{V_POLL}, 0
    v_mov_b32 v{V_DBG}, s{S_G4}
    v_mov_b32 v{V_ONE}, 1
    """)
    s(f"""
    v_bfe_u32 v5, v2, 2, 2
    v_and_b32 v6, 3, v2
    v_lshl_add_u32 v59, v7, 3, v5
    v_lshlrev_b32 v59, 9, v59
    v_lshl_add_u32 v59, v6, 3, v59
    v_and_b32 v60, 1, v7
    v_lshl_add_u32 v60, v60, 2, v5
    """)
    for j in range(8):
        s(f"""
        v_xor_b32 v61, {j}, v60
        v_lshl_add_u32 v{TA0[j]}, v61, 5, v59
        v_add_u32 v{TA1[j]}, 0x10000, v{TA0[j]}
        """)
    s(f"""
    v_lshrrev_b32 v59, 1, v58
    v_xor_b32 v59, v59, v7
    v_lshlrev_b32 v60, 7, v58
    v_lshl_add_u32 v60, v1, 12, v60
    v_add_u32 v60, 0x20000, v60
    v_lshl_add_u32 v{XA[0]}, v59, 4, v60
    v_xor_b32 v{XA[1]}, 64, v{XA[0]}
    """)
    for d in (dma_x(1), dma_wq(2), dma_wq(3)):
        for i in flat(d): s.add(i)
    late = Stream()
    late(f"""
    v_lshrrev_b32 v59, 2, v58
    v_and_b32 v60, 3, v58
    v_lshl_add_u32 v59, v59, 3, v60
    v_lshlrev_b32 v59, 9, v59
    v_xor_b32 v60, v58, v7
    """)
    for k in range(4):
        late(f"v_xor_b32 v61, {4*k}, v60\nv_lshl_add_u32 v{KA[k]}, v61, 4, v59")
    late(f"""
    v_lshl_add_u32 v59, v7, 2, v5
    v_bfe_u32 v60, v59, 1, 2
    v_lshlrev_b32 v59, 7, v59
    v_lshl_add_u32 v59, v6, 3, v59
    """)
    for k in range(4):
        late(f"v_xor_b32 v61, {k}, v60\nv_lshl_add_u32 v{WA[0][k]}, v61, 5, v59")
    late(f"""
    v_mul_u32_u24 v59, 1792, v58
    v_lshl_add_u32 v{V_OUT}, v7, 3, v59
    """)

    PR = []; head = Pair()
    def pr(p):
        if p < 0: return head
        while len(PR) <= p: PR.append(Pair())
        return PR[p]
    npair = [0]
    def frag(p): return A_F + 4 * (p % NF)
    def add_pair(m0, m1):
        p = npair[0]; npair[0] += 1
        pr(p).m = [I(m0), I(m1)]
        return p
    def mf(d, a, b, c): return f"v_mfma_f32_16x16x32_bf16 {vr(d,4)}, {a}, {b}, {c}"
    def rd_at(p, bp, l, bulk=None):
        q = p - LA
        if bulk is not None and q <= bp: bulk.extend(l)
        else: pr(max(q, bp)).reads.extend(l)
    def tread(p, tile, slot, areg, off):
        f = frag(p)
        return [I(f"ds_read_b64_tr_b16 {ar(f,2)}, v{areg} offset:{off}", tile=tile, slot=slot),
                I(f"ds_read_b64_tr_b16 {ar(f+2,2)}, v{areg} offset:{off+2048}", tile=tile, slot=slot)]
    def barrier(bp, tiles):
        pr(bp - 1).vmtags.extend(tiles); pr(bp).sc0.insert(0, I("s_barrier"))
    def place_dma(ds, poss):
        q = 0
        for pre, loads, post in ds:
            for n, ld in enumerate(loads):
                p = poss[q]; q += 1
                if n == 0:
                    pr(p - 1).sc0.extend(pre)
                pr(p).mem.append(ld)
                if n == 3 and post: pr(p + 1).sc0[0:0] = [] ; pr(p + 1).sc0.extend(post)
    def place(l, p0, p1, pace=True, win=8):
        fr = [max(0, pr(p).free()) for p in range(p0, p1 + 1)]
        F = sum(fr); C = sum(cost(i) for i in l); cum = 0; done = 0
        todo = list(range(len(l))); rec = []
        dep = lambda a, b: (a.wr & (b.rd | b.wr)) or (a.rd & b.wr)
        for n, p in enumerate(range(p0, p1 + 1)):
            cum += fr[n]
            while todo:
                if pace and F > C and done > C * cum / F: break
                pick = None
                for x, k in enumerate(todo[:win]):
                    if cost(l[k]) > pr(p).free(): continue
                    if any(dep(l[y], l[k]) for y in todo[:x]): continue
                    if any((o.wr & l[k].rd) for o in pr(p).ops): continue
                    if cost(l[k]) == 2 and len(pr(p).ops) >= 2: continue
                    pick = k; break
                if pick is None: break
                todo.remove(pick); pr(p).ops.append(l[pick]); done += cost(l[pick]); rec.append((n, pick))
        if todo:
            if P.get("verbose"): print("overflow", p0, p1, len(todo))
            for k in todo: pr(p1).ops.append(l[k]); rec.append((p1 - p0, k))
        return rec

    for j in range(14):
        u = j >> 1; slot = WQ_SLOT[j % 6]; ta = TA1 if slot >= 4 else TA0; base = (slot & 3) * 16384
        pb = npair[0]; bp = pb - LA
        bulk = None
        if j == 0:
            head.post += [I("@waitvm WQ0 X0"), I("s_barrier")]; bulk = head.post; bp = -1
        else: barrier(bp, [f"WQ{j}", f"X{u}"])
        if P.get("qstamps") and j % 2 == 0: (head.post if j == 0 else pr(bp).post).extend(stamp_ins())
        if j & 1 == 0:
            for q in range(4):
                xr = I(f"ds_read_b128 {ar(A_X + 16*(u&1) + 4*q, 4)}, v{XA[q>>1]} offset:{(u&1)*16384 + (q&1)*2048}", tile=f"X{u}", slot=8 + (u & 1), private=True)
                if j == 0: head.post.append(xr)
                else: pr(bp + q).reads.append(xr)
        for jj in range(16):
            p = npair[0]
            rd_at(p, bp, tread(p, f"WQ{j}", slot, ta[jj & 7], base + (jj >> 3) * 256), bulk)
            xb = A_X + 16 * (u & 1) + 8 * (j & 1)
            add_pair(*[mf(O0 + 8*jj + 4*qb, ar(frag(p), 4), ar(xb + 4*qb, 4), "0" if j == 0 else vr(O0 + 8*jj + 4*qb, 4)) for qb in range(2)])
        b0 = pb - LA
        if j & 1 == 0:
            ds = []
            if j + 4 <= 13: ds = [dma_wq(j + 4), dma_x(u + 2), dma_wq(j + 5)]
            elif j == 10: ds = [dma_k(0), dma_k(1), dma_v(0)]
            elif j == 12: ds = [dma_k(2), dma_v(1)] + ([dma_k(3)] if P["PDK"] >= 3 else [])
            poss = [b0 + 2 + (n * 30) // 12 for n in range(12)]
            if j == 0: poss = [1 + (n * 26) // 12 for n in range(12)]
            place_dma(ds, poss)
        if j == 1:
            pr(pb).post += [I(f"s_cmp_lg_u32 s{S_WAVE}, 0"), I("s_cbranch_scc1 L_noclr"), I("s_mov_b64 exec, 0xffff"),
                            I(f"global_atomic_swap v{V_T1}, v{V_FLG}, v{V_POLL}, s[{S_FL}:{S_FL+1}] sc0", untracked=True),
                            I("s_mov_b64 exec, -1"), I("L_noclr:")]
        if j == 8:
            if P["ann"] == "s":
                pr(pb).post += [I(f"s_cmp_lg_u32 s{S_WAVE}, 0"), I("s_cbranch_scc1 L_noann"),
                                I(f"s_atomic_add s{S_ONE}, s[{S_DBG}:{S_DBG+1}], s{S_G4}"), I("L_noann:")]
            else:
                pr(pb).post += [I(f"s_cmp_lg_u32 s{S_WAVE}, 0"), I("s_cbranch_scc1 L_noann"), I("s_mov_b64 exec, 1"),
                                I(f"global_atomic_add v{V_DBG}, v{V_ONE}, s[{S_DBG}:{S_DBG+1}]", untracked=True), I("s_mov_b64 exec, -1"), I("L_noann:")]
    pq_end = npair[0]
    place(late.ins, 40, 100)

    def softmax_ops(t):
        S = SB[t & 1]; Pp = PB[t & 1]; l = []
        T = lambda e: TT[e & 7]
        for e in range(17):
            if e < 16: l.append(I(f"v_exp_f32 v{T(e)}, v{S+e}"))
            d = e - 1
            if d >= 0:
                lt = V_LT[d >> 3]
                if d & 7 == 1: l.append(I(f"v_add_f32 v{lt}, v{T(d-1)}, v{T(d)}"))
                elif d & 7 > 1: l.append(I(f"v_add_f32 v{lt}, v{lt}, v{T(d)}"))
                if d & 1: l.append(I(f"v_cvt_pk_bf16_f32 v{Pp+(d>>1)}, v{T(d-1)}, v{T(d)}"))
        return l
    def allmax(x, t):
        return [I(f"v_mov_b32 v{t}, v{x}"), I(f"v_permlane32_swap_b32 v{x}, v{t}"), I(f"v_max_f32 v{x}, v{x}, v{t}"),
                I(f"v_mov_b32 v{t}, v{x}"), I(f"v_permlane16_swap_b32 v{x}, v{t}"), I(f"v_max_f32 v{x}, v{x}, v{t}")]
    def rowmax(S, x):
        return [I(f"v_max3_f32 v{x}, v{S}, v{S+1}, v{S+2}"), I(f"v_max3_f32 v{x}, v{x}, v{S+3}, v{S+4}"),
                I(f"v_max3_f32 v{x}, v{x}, v{S+5}, v{S+6}"), I(f"v_max_f32 v{x}, v{x}, v{S+7}")]
    def inter(a, b):
        o = []
        for x, y in zip(a, b): o += [x, y]
        return o
    def qk(t, bp, bulk=None):
        slot = t % 4; S = SB[t & 1]
        for q in range(8):
            for kb in range(2):
                p = npair[0]
                rd_at(p, bp, [I(f"ds_read_b128 {ar(frag(p),4)}, v{KA[q&3]} offset:{slot*16384 + (q>>2)*256 + kb*2048}", tile=f"K{t}", slot=slot)], bulk)
                add_pair(*[mf(S + 8*qb + 4*kb, ar(frag(p), 4), ar(A_Q + 8*q + 4*qb, 4),
                              (("0" if t == 0 else vr(NM + 4*qb, 4)) if q == 0 else vr(S + 8*qb + 4*kb, 4))) for qb in range(2)])
    def pv(t, bp, bulk=None):
        slot = 4 + t % 4
        for jj in range(16):
            p = npair[0]
            rd_at(p, bp, tread(p, f"V{t}", slot, TA1[jj & 7], (t % 4) * 16384 + (jj >> 3) * 256), bulk)
            add_pair(*[mf(O0 + 8*jj + 4*qb, ar(frag(p), 4), vr(PB[t & 1] + 4*qb, 4), "0" if t == 0 else vr(O0 + 8*jj + 4*qb, 4)) for qb in range(2)])

    def qconv(q):
        l = []
        for qb in range(2):
            X = O0 + 16*q + 4*qb; Y = X + 8
            l += [I(f"v_pk_mul_f32 {vr(r,2)}, {vr(r,2)}, s[{S_C}:{S_C+1}]") for r in (X, X + 2, Y, Y + 2)]
        for qb in range(2):
            X = O0 + 16*q + 4*qb; Y = X + 8
            l += [I(f"v_cvt_pk_bf16_f32 v{X}, v{X}, v{X+1}"), I(f"v_cvt_pk_bf16_f32 v{Y}, v{Y}, v{Y+1}"),
                  I(f"v_cvt_pk_bf16_f32 v{X+1}, v{X+2}, v{X+3}"), I(f"v_cvt_pk_bf16_f32 v{Y+1}, v{Y+2}, v{Y+3}")]
        for sw in ("32", "16"):
            for qb in range(2):
                X = O0 + 16*q + 4*qb; Y = X + 8
                l += [I(f"v_permlane{sw}_swap_b32 v{X}, v{Y}"), I(f"v_permlane{sw}_swap_b32 v{X+1}, v{Y+1}")]
        for qb in range(2):
            X = O0 + 16*q + 4*qb; Y = X + 8
            l += [I(f"v_accvgpr_write_b32 a{A_Q+8*q+4*qb+n}, v{r}") for n, r in enumerate((X, X + 1, Y, Y + 1))]
        return l
    barrier(pq_end - LA, ["K0"])
    p0 = npair[0]
    qk(0, pq_end - LA)
    place(qconv(0), pq_end - 12, pq_end - 1)
    pr(pq_end - 1).post += stamp_ins()
    for q in range(1, 8):
        l = qconv(q); h = len(l) // 2
        pr(p0 + 2*q - 2).ops += l[:h]; pr(p0 + 2*q - 1).ops += l[h:]
    pz = npair[0] - 1
    init = inter(rowmax(SB[0], V_T0) + allmax(V_T0, TT[0]), rowmax(SB[0] + 8, V_T1) + allmax(V_T1, TT[1]))
    for qb, x in enumerate((V_T0, V_T1)):
        init += [I(f"v_sub_f32 v{NM+4*qb+n}, 0, v{x}") for n in range(4)]
    for qb, x in enumerate((V_T0, V_T1)):
        init += [I(f"v_sub_f32 v{SB[0]+8*qb+n}, v{SB[0]+8*qb+n}, v{x}") for n in range(8)]
    init += [I(f"v_mov_b32 v{V_L[0]}, 0"), I(f"v_mov_b32 v{V_L[1]}, 0")]
    bulk0 = []
    pr(pz).post += [I("@waitvm K1 V0"), I("s_barrier"), I("@bulk0")] + init + stamp_ins()
    wa_late = [I(f"v_add_u32 v{WA[w][k]}, {0x10000*w}, v{WA[0][k]}") for w in (1, 2) for k in range(4)]

    stubs = []; step_start = []
    bp = pz
    for t in range(32):
        ps = npair[0]; step_start.append(ps)
        inloop = 1 <= t <= 28
        lab = f"{t%4}" if inloop else f"p{t}"
        if t <= 4 or t > 28: stubs.append((lab, t & 1))
        chk = [I(f"v_max_f32 v{V_T0}, v{V_LT[0]}, v{V_LT[1]}"), I(f"v_cmp_nge_f32 vcc, s{S_THR}, v{V_T0}")]
        br = [I(f"s_cbranch_vccnz L_fix{lab}"), I(f"L_ret{lab}:")]
        acc = [I(f"v_add_f32 v{V_L[qb]}, v{V_L[qb]}, v{V_LT[qb]}") for qb in range(2)]
        bulk31 = []
        if t < 31:
            qk(t + 1, bp, bulk0 if t == 0 else None)
            pp = npair[0]
            pv(t, bp)
        else:
            pp = npair[0]
            pv(t, bp, bulk31)
            pr(ps - 1).post += chk + br + [I("@waitvm V31"), I("s_barrier")] + bulk31
        pe = npair[0]
        nb = pe - LA
        if t < 30: barrier(nb, [f"K{t+2}", f"V{t+1}"])
        ds = []
        tv = t + P["PDV"]; tk = t + 1 + P["PDK"]
        if tv <= 31: ds.append(dma_v(tv))
        if tk <= 31 or inloop: ds.append(dma_k(tk))
        if t == 29: ds.append(dma_wo(0))
        if t == 30: ds += [dma_wo(1), dma_wo(2)]
        if t == 31: ds += [dma_wo(3)]
        place_dma(ds, [ps + 1 + P["dsp"] * n for n in range(8)])
        if inloop and t % 4 == 0:
            pr(pe - 1).sc0.append(I(f"s_add_u32 s{S_CNT}, s{S_CNT}, 1"))
            pr(pe - 1).post.append(I("s_cbranch_scc0 L_loop"))
        if P.get("lstamps"):
            pr(ps + 2).post += [I("s_waitcnt lgkmcnt(0)", blind=True), I(f"s_memrealtime s[{S_ST}:{S_ST+1}]"), I(f"s_memtime s[{S_ST+2}:{S_ST+3}]"),
                I("v_mov_b32_dpp v70, v70 wave_shr:1 row_mask:0xf bank_mask:0xf"), I("v_mov_b32_dpp v71, v71 wave_shr:1 row_mask:0xf bank_mask:0xf"),
                I("s_waitcnt lgkmcnt(0)", blind=True), I(f"v_writelane_b32 v70, s{S_ST}, 0"), I(f"v_writelane_b32 v71, s{S_ST+2}, 0")]
        if t == 0: pr(pe - 2).sc0.append(I(f"s_mov_b32 s{S_CNT}, -7"))
        if P["cpf"] >= 2 and inloop and t % 4 == 1:
            pr(pp + 5).mem.append(I(f"global_load_dword v{V_CP+1}, v{V_CP}, s[{S_PC}:{S_PC+1}]", nodep=True))
        yield_info = (t, ps, pp, pe, chk, br, acc)
        step_start[-1] = yield_info
        bp = nb if t < 30 else pe - 1
    pm_end = npair[0]

    ACC = [SB[0], O0 + 64]
    otile = []
    for j in range(14):
        u = j >> 1; kh = j & 1; slot = WO_SLOT[j]; wa = WA[slot >> 2]; base = (slot & 3) * 16384
        pb = npair[0]; bp = pb - LA; otile.append(pb)
        barrier(bp, [f"WO{j}"])
        for q in range(4):
            for jn in range(4):
                p = npair[0]
                rd_at(p, bp, tread(p, f"WO{j}", slot, wa[jn], base + q * 4096))
                a = ACC[u & 1] + 4 * jn
                add_pair(*[mf(a + 16*qb, ar(frag(p), 4), vr(O0 + 8*(4*kh + q) + 4*qb, 4), "0" if (kh == 0 and q == 0) else vr(a + 16*qb, 4)) for qb in range(2)])
        ds = {0: [4, 5], 1: [6, 7], 2: [8, 9], 3: [10, 11], 4: [12], 5: [13]}.get(j, [])
        place_dma([dma_wo(x) for x in ds], [bp + 1 + 2 * n for n in range(8)])

    for (t, ps, pp, pe, chk, br, acc) in step_start:
        if t < 31: pr(pp - 1).sc0.extend(br)
        place(acc, pp, pp + 1, pace=False)
    w0 = step_start[9][2] + P["sm_start"]
    rec = place(softmax_ops(10) + step_start[10][4], w0, step_start[10][2] - 2)
    for t in range(1, 31):
        if t == 10: continue
        l = softmax_ops(t) + step_start[t][4]
        for n, k in rec: pr(step_start[t-1][2] + P["sm_start"] + n).ops.append(l[k])
    l = softmax_ops(0) + step_start[0][4]
    nrel = step_start[1][1] - (step_start[0][2] + P["sm_start"])
    for n, k in rec:
        if n < nrel: pr(pz).post.append(l[k])
        else: pr(step_start[0][1] + n - nrel).ops.append(l[k])
    place(softmax_ops(31), step_start[30][2] + P["sm_start"], step_start[30][3] - 1, pace=False)
    place(wa_late, step_start[0][1], step_start[0][3] - 1, pace=False)
    pr(step_start[29][2]).mem.append(I(f"global_load_dword v{V_POLL}, v{V_DBG}, s[{S_DBG}:{S_DBG+1}] sc1", tag="HS"))
    def allsum(x, t):
        return [I(f"v_mov_b32 v{t}, v{x}"), I(f"v_permlane32_swap_b32 v{x}, v{t}"), I(f"v_add_f32 v{x}, v{x}, v{t}"),
                I(f"v_mov_b32 v{t}, v{x}"), I(f"v_permlane16_swap_b32 v{x}, v{t}"), I(f"v_add_f32 v{x}, v{x}, v{t}")]
    lsum = inter(allsum(V_L[0], V_T0), allsum(V_L[1], V_T1)) + [I(f"v_rcp_f32 v{V_RI[qb]}, v{V_L[qb]}") for qb in range(2)]
    def oconv(q):
        l = []
        for qb in range(2):
            X = O0 + 16*q + 4*qb; Y = X + 8; D = O0 + 8*q + 4*qb
            l.append([(D, X), (D + 1, X + 2), (D + 2, Y), (D + 3, Y + 2)])
        o = l[0] + l[1]
        if q == 0:
            pass
        return [I(f"v_cvt_pk_bf16_f32 v{d}, v{x}, v{x+1}") for d, x in o]
    place(oconv(0) + oconv(1), pm_end - 10, pm_end - 1)
    pr(pm_end - 1).post += stamp_ins()
    for q in range(2, 8):
        place(oconv(q), pm_end + 4 * (q - 2), pm_end + 4 * (q - 2) + 3)
    place(lsum, pm_end + 24, pm_end + 33)
    STG = [PB[0], PB[1]]
    def finish(u):
        sc = [I(f"s_lshl_b32 s{S_T0}, s{S_OS}, 12"), I(f"s_add_u32 s{S_T0}, s{S_T0}, s{S_PB}")], [I(x) for x in nxt(S_OS)]
        l = []
        for qb in range(2):
            a = ACC[u & 1] + 16 * qb; st = STG[qb]
            for q in range(8):
                l.append(I(f"v_mul_f32 v{a+2*q}, v{V_RI[qb]}, v{a+2*q}"))
                l.append(I(f"v_mul_f32 v{a+2*q+1}, v{V_RI[qb]}, v{a+2*q+1}"))
                l.append(I(f"v_cvt_pk_bf16_f32 v{st+q}, v{a+2*q}, v{a+2*q+1}"))
                if q & 3 == 3:
                    l.append(I(f"buffer_store_dwordx4 {vr(st+q-3,4)}, v{V_L16}, s[{S_P}:{S_P+3}], s{S_T0} offen offset:{qb*2048+(q>>2)*1024} {P['st_aux']}", tag="PST"))
        return sc, l
    for u in range(1, 7):
        pb = otile[2 * u]
        sc, l = finish(u - 1)
        pr(pb).sc1.extend(sc[0]); pr(pb + 1).sc1.extend(sc[1])
        place(l, pb + 2, pb + 31)
    sc, l = finish(6)
    pr(npair[0] - 1).post += [I("@stop")] + sc[0] + l

    def gap_order(mem, ops):
        first = list(mem); rest = []
        for i in ops:
            if i.kind == "vmem" and not any(x.wr & i.rd for x in rest): first.append(i)
            else: rest.append(i)
        return first + rest
    def emit_list(l):
        for i in l:
            if i.kind == "pseudo" and i.op == "@bulk0":
                for x in bulk0: s.add(x)
            else: s.add(i)
    emit_list(head.sc0 + head.post)
    starts = {x[1]: x[0] for x in step_start}
    worst = 0
    for p, q in enumerate(PR):
        if p in starts and starts[p] % 4 == 1: s.add(I(f"@block {starts[p]//4}"))
        mem = q.reads + q.mem
        best = None
        e0 = max(0, sum(cost(x) for x in q.sc0) - 1); e1 = len(q.sc1)
        for r0 in range(len(mem), -1, -1):
            for k in range(len(q.ops) + 1):
                c0 = e0 + r0 + sum(cost(x) for x in q.ops[:k]); c1 = e1 + len(mem) - r0 + sum(cost(x) for x in q.ops[k:])
                sc_ = (max(c0, 2) + max(c1, 2), max(c0, c1), -r0)
                if best is None or sc_ < best[0]: best = (sc_, r0, k)
        _, r0, k = best
        worst += best[0][0] - 4
        emit_list(q.pre)
        s.add(q.m[0]); emit_list(q.sc0); emit_list(gap_order(mem[:r0], q.ops[:k]))
        s.add(q.m[1]); s.add(I("@waitnext " + " ".join(q.vmtags))); emit_list(q.sc1); emit_list(gap_order(mem[r0:], q.ops[k:]))
        emit_list(q.post)
    if P.get("verbose"): print("overfull slots:", worst)

    for i in stamp_ins(): s.add(i)
    s("s_waitcnt vmcnt(0)\ns_barrier")
    for i in stamp_ins(): s.add(i)
    s(f"""
    s_cmp_lg_u32 s{S_WAVE}, 0
    s_cbranch_scc1 L_wait
    s_mov_b32 s{S_CNT}, 0
    L_hs:
    v_readfirstlane_b32 s{S_T0}, v{V_POLL}
    s_cmp_ge_u32 s{S_T0}, 16
    s_cbranch_scc1 L_hsok
    s_add_u32 s{S_CNT}, s{S_CNT}, 1
    s_cmp_ge_u32 s{S_CNT}, 0x40000
    s_cbranch_scc1 L_hsok
    s_sleep 8
    global_load_dword v{V_POLL}, v{V_DBG}, s[{S_DBG}:{S_DBG+1}] sc1
    s_waitcnt vmcnt(0)
    s_branch L_hs
    L_hsok:
    s_mov_b64 exec, 0xffff
    global_store_dword v{V_FLG2}, v{V_ONE}, s[{S_FL}:{S_FL+1}] sc1
    L_poll:
    global_load_dword v{V_POLL}, v{V_FLG}, s[{S_FL}:{S_FL+1}] sc1
    s_waitcnt vmcnt(0)
    v_cmp_ne_u32 vcc, 1, v{V_POLL}
    s_cbranch_vccz L_pollok
    s_add_u32 s{S_CNT}, s{S_CNT}, 1
    s_cmp_ge_u32 s{S_CNT}, 0x40000
    s_cbranch_scc1 L_pollok
    s_sleep {P['sleep']}
    s_branch L_poll
    L_pollok:
    s_mov_b64 exec, -1
    L_wait:
    s_barrier
    """)
    for i in stamp_ins(): s.add(i)
    s(f"""
    s_lshl_b32 s{S_T0}, s{S_H}, 2
    s_add_u32 s{S_T0}, s{S_T0}, s{S_WAVE}
    s_cmp_ge_u32 s{S_T0}, 56
    s_cbranch_scc1 L_done
    s_lshl_b32 s{S_T1}, s{S_T0}, 11
    """)
    for h in range(16):
        for j in range(2):
            s(f"buffer_load_dwordx4 {vr(O0+8*h+4*j,4)}, v{V_L16}, s[{S_P}:{S_P+3}], s{S_T1} offen offset:{1024*j} {P['ld_aux']}")
        if h < 15: s(f"s_add_u32 s{S_T1}, s{S_T1}, {PART_H}")
    s(f"""
    s_mul_i32 s{S_T1}, s{S_T0}, 4682
    s_lshr_b32 s{S_T1}, s{S_T1}, 16
    s_mul_i32 s30, s{S_T1}, 14
    s_sub_u32 s30, s{S_T0}, s30
    s_lshl_b32 s31, s{S_B}, 2
    s_add_u32 s31, s31, s{S_T1}
    s_lshl_b32 s31, s31, 1
    s_and_b32 s3, s30, 1
    s_add_u32 s31, s31, s3
    s_mul_i32 s31, s31, {16*1792}
    s_lshr_b32 s30, s30, 1
    s_lshl_b32 s30, s30, 7
    s_add_u32 s31, s31, s30
    s_mul_i32 s30, s{S_BR}, 896
    s_add_u32 s31, s31, s30
    s_mov_b32 s30, 0xffff0000
    """)
    A0 = SB[0]
    for h in range(16):
        for q in range(8):
            r = O0 + 8 * h + q
            if h == 0:
                s(f"v_lshlrev_b32 v{A0+2*q}, 16, v{r}\nv_and_b32 v{A0+2*q+1}, s30, v{r}")
            else:
                s(f"v_lshlrev_b32 v{TT[0]}, 16, v{r}\nv_and_b32 v{TT[1]}, s30, v{r}\n"
                  f"v_pk_add_f32 {vr(A0+2*q,2)}, {vr(A0+2*q,2)}, {vr(TT[0],2)}")
    for q in range(8):
        s(f"v_cvt_pk_bf16_f32 v{PB[0]+q}, v{A0+2*q}, v{A0+2*q+1}")
    for jn in range(4):
        s(f"buffer_store_dwordx2 {vr(PB[0]+2*jn,2)}, v{V_OUT}, s[{S_OUT}:{S_OUT+3}], s31 offen offset:{32*jn}")
    s("L_done:")
    if P["stamps"]:
        s("s_waitcnt vmcnt(0)\ns_barrier")
        for i in stamp_ins(): s.add(i)
        s(f"""
        s_lshl_b32 s3, s2, 7
        v_lshrrev_b32 v59, 2, v{V_L16}
        v_add_u32 v59, s3, v59
        s_cmp_lg_u32 s{S_WAVE}, 0
        s_cbranch_scc1 L_end
        s_mov_b32 exec_hi, 0
        global_store_dword v59, v{V_ST}, s[{S_WS}:{S_WS+1}]
        v_add_u32 v59, 0x10000, v59
        global_store_dword v59, v70, s[{S_WS}:{S_WS+1}]
        v_add_u32 v59, 0x10000, v59
        global_store_dword v59, v71, s[{S_WS}:{S_WS+1}]
        """)
    s("L_end:\ns_endpgm")

    ins = resolve(s.ins, pair_waits=False, verbose=P.get("verbose"))
    marks = [k for k, i in enumerate(ins) if i.kind == "pseudo" and i.op == "@block"]
    assert len(marks) == 8
    blocks = [text_of(ins[marks[b]:marks[b+1]]) for b in range(7)]
    for b in range(1, 7):
        if blocks[b] != blocks[0]:
            import difflib
            print("".join(list(difflib.unified_diff(blocks[0].splitlines(1), blocks[b].splitlines(1), n=1))[:60]))
            raise SystemExit(f"block {b} differs from block 0")
    body = text_of(ins[:marks[0]]) + ".p2align 3\nL_loop:\n" + blocks[0] + text_of(ins[marks[7]:])

    r = Stream()
    for lab, par in stubs:
        r(f"L_fix{lab}:\ns_call_b64 s[{S_RET}:{S_RET+1}], L_rescale{par}\ns_branch L_ret{lab}")
    for par in range(2):
        r(f"L_rescale{par}:\ns_nop 15\n@fence")
        S = SB[par]; S2 = SB[1 - par]
        for qb, x in enumerate((V_T0, V_T1)):
            for i in rowmax(S + 8*qb, x) + allmax(x, TT[0]): r.add(i)
            r(f"v_max_f32 v{x}, 0, v{x}\nv_exp_f32 v{TT[1]}, -v{x}")
            for n in range(4): r(f"v_sub_f32 v{NM+4*qb+n}, v{NM+4*qb+n}, v{x}")
            for n in range(8): r(f"v_sub_f32 v{S+8*qb+n}, v{S+8*qb+n}, v{x}\nv_sub_f32 v{S2+8*qb+n}, v{S2+8*qb+n}, v{x}")
            r(f"v_mul_f32 v{V_L[qb]}, v{V_L[qb]}, v{TT[1]}")
            for jj in range(16):
                for n in range(4): r(f"v_mul_f32 v{O0+8*jj+4*qb+n}, v{TT[1]}, v{O0+8*jj+4*qb+n}")
        for i in softmax_ops(par): r.add(i)
        r(f"s_nop 3\ns_setpc_b64 s[{S_RET}:{S_RET+1}]")
    body += text_of(resolve(r.ins)) + "L_codeend:\n"
    return whole_file(["; @launch grid=(256,1,1) block=(256,1,1) lds=163840"], [kernel_block(KN, body, 512, 102, 256)])

if __name__ == "__main__":
    out = sys.argv[1]
    kw = {}
    for a in sys.argv[2:]:
        k, v = a.split("=", 1)
        try: v = eval(v)
        except Exception: pass
        kw[k] = v
    open(out, "w").write(build(**kw))
```

```python
import sys, math, struct
from asmlib import *
from stream import *

def f2u(x): return struct.unpack("<I", struct.pack("<f", x))[0]

DEF = dict(LA=4, PDK=3, PDV=2, kv_aux="nt", wq_aux="nt", wo_aux="", x_aux="", stamps=False,
           st_aux="sc1", ld_aux="sc1", rot=1, orot=1, wsoff=0x1000000, thr=4096.0, early_k=10, sleep=2, dsp=2,
           sm_start=2, ann="s", cpf=1)

O0 = 128
SB = [96, 112]
PB = [80, 88]
NM = 72
TT = list(range(0, 8))
V_L = [64, 65]; V_LT = [66, 67]; V_T0, V_T1 = 62, 63; V_RI = [60, 61]
KA = list(range(8, 12))
TA1 = list(range(12, 20))
TA0 = list(range(20, 28))
XA = [28, 29]
KD = [30, 31]; VD = [32, 33]; QD = list(range(34, 38)); XD = list(range(38, 42)); WD = list(range(42, 46))
WA = [list(range(46, 50)), list(range(20, 24)), list(range(24, 28))]
V_L16 = 50; V_OUT = 51
V_FLG = 52; V_FLG2 = 53; V_ONE = 54; V_POLL = 55; V_DBG = 56; V_ST = 57; V_CP = 68
A_Q = 0; A_F = 64; NF = 16; A_X = 128

S_X, S_K, S_V, S_WQ, S_WO, S_P, S_OUT = 32, 36, 40, 44, 48, 52, 56
S_DBG = 26; S_WS = 28
S_W4K, S_WAVE, S_BR, S_B, S_H, S_G = 60, 61, 62, 63, 64, 65
S_KOFF, S_VOFF, S_QU, S_T0, S_T1, S_THR, S_CNT, S_OU, S_OS, S_PB = 66, 67, 68, 69, 70, 72, 73, 74, 75, 76
S_RET = 78; S_FL = 80; S_C = 82
S_ST = 84; S_G4 = 88; S_ONE = 89; S_PC = 90

PART_W = 28672; PART_H = 4 * PART_W; PART_G = 16 * PART_H
FLAG_OFF = 0x100000

def vr(a, n): return f"v[{a}:{a+n-1}]"
def ar(a, n): return f"a[{a}:{a+n-1}]"
def cost(i):
    if i.kind == "trans" or i.op.startswith("v_permlane"): return 2
    if i.kind in ("label", "pseudo"): return 0
    return 1

class Pair:
    def __init__(self):
        self.m = []; self.reads = []; self.mem = []; self.ops = []; self.sc0 = []; self.sc1 = []
        self.pre = []; self.post = []; self.vmtags = []; self.drain = []
    def free(self):
        return 4 - len(self.reads) - len(self.mem) - sum(cost(i) for i in self.ops) - max(0, len(self.sc0) - 1) - len(self.sc1)

def build(**kw):
    P = dict(DEF); P.update(kw)
    LA = P["LA"]
    ADV = "0" if P.get("noadv") else "0x4000"
    s = Stream()
    nstamp = [0]
    def stamp_ins():
        if not P["stamps"]: return []
        k = nstamp[0]; nstamp[0] += 1
        assert k < 16
        return [I("s_waitcnt lgkmcnt(0)", blind=True), I(f"s_memrealtime s[{S_ST}:{S_ST+1}]"), I(f"s_memtime s[{S_ST+2}:{S_ST+3}]"),
                I("s_waitcnt lgkmcnt(0)", blind=True), I(f"v_writelane_b32 v{V_ST}, s{S_ST}, {k}"), I(f"v_writelane_b32 v{V_ST}, s{S_ST+2}, {16+k}")]

    s("s_cmp_ge_u32 s2, 256\ns_cbranch_scc1 L_end")
    for i in stamp_ins(): s.add(i)
    s(f"""
    s_load_dwordx16 s[4:19], s[0:1], 0
    s_load_dwordx8 s[20:27], s[0:1], 64
    s_load_dwordx2 s[28:29], s[0:1], 96
    v_lshrrev_b32 v1, 6, v0
    v_and_b32 v2, 63, v0
    s_and_b32 s30, s2, 7
    v_readfirstlane_b32 s{S_WAVE}, v1
    s_lshr_b32 s31, s2, 3
    s_lshr_b32 s{S_BR}, s31, 4
    s_bfe_u32 s3, s31, 0x10003
    s_and_b32 s{S_B}, s31, 7
    s_lshl_b32 s{S_H}, s30, 1
    s_add_u32 s{S_H}, s{S_H}, s3
    s_lshl_b32 s{S_G}, s{S_BR}, 3
    s_add_u32 s{S_G}, s{S_G}, s{S_B}
    s_lshl_b32 s{S_W4K}, s{S_WAVE}, 12
    """)
    def rotation(dst, mode):
        if mode == 0: s(f"s_mov_b32 s{dst}, 0"); return
        if mode == 1: s(f"s_mul_i32 s{dst}, s3, 3\ns_add_u32 s{dst}, s{dst}, s{S_B}")
        if mode == 2: s(f"s_mov_b32 s{dst}, s{S_B}")
        if mode == 3: s(f"s_and_b32 s{dst}, s{S_B}, 1\ns_mul_i32 s{dst}, s{dst}, 3")
        if mode == 4: s(f"s_and_b32 s{dst}, s{S_B}, 3\ns_lshl_b32 s{dst}, s{dst}, 1")
        s(f"s_cmp_ge_u32 s{dst}, 7\ns_cselect_b32 s{S_T0}, 7, 0\ns_sub_u32 s{dst}, s{dst}, s{S_T0}")
    rotation(S_QU, P["rot"]); rotation(S_OU, P["orot"])
    s(f"""
    s_mov_b32 s{S_OS}, s{S_OU}
    s_lshl_b32 s{S_T0}, s{S_B}, 3
    s_add_u32 s{S_T0}, s{S_T0}, s30
    s_lshl_b32 s{S_T1}, s{S_B}, 4
    s_add_u32 s{S_T1}, s{S_T1}, s{S_H}
    s_cmp_eq_u32 s{S_BR}, 0
    s_cselect_b32 s31, s{S_T0}, s{S_T1}
    s_lshl_b32 s31, s31, 19
    """)
    s(f"""
    v_lshrrev_b32 v3, 5, v2
    v_and_b32 v4, 31, v2
    v_lshlrev_b32 v{V_L16}, 4, v2
    v_lshrrev_b32 v5, 3, v2
    v_and_b32 v6, 7, v2
    v_lshrrev_b32 v7, 4, v2
    v_lshl_add_u32 v58, v1, 5, v5
    v_mul_u32_u24 v58, 896, v58
    v_xor_b32 v59, v6, v7
    v_lshl_add_u32 v{XD[0]}, v59, 4, v58
    v_xor_b32 v59, 4, v59
    v_lshl_add_u32 v{XD[1]}, v59, 4, v58
    v_add_u32 v{XD[2]}, {2*6144}, v{XD[0]}
    v_add_u32 v{XD[3]}, {3*6144}, v{XD[1]}
    v_add_u32 v{XD[1]}, 6144, v{XD[1]}
    """)
    s(f"""
    v_lshlrev_b32 v59, 1, v7
    v_xor_b32 v59, v59, v6
    v_lshl_add_u32 v{WD[0]}, v59, 4, v58
    v_add_u32 v{WD[1]}, 6144, v{WD[0]}
    v_add_u32 v{WD[2]}, {2*6144}, v{WD[0]}
    v_add_u32 v{WD[3]}, {3*6144}, v{WD[0]}
    """)
    s(f"""
    v_lshl_add_u32 v5, v1, 3, v3
    v_and_b32 v6, 1, v1
    v_lshl_add_u32 v6, v6, 2, v3
    v_lshlrev_b32 v6, 1, v6
    v_xor_b32 v6, v6, v4
    v_lshlrev_b32 v6, 4, v6
    v_xor_b32 v59, 64, v6
    v_lshl_add_u32 v{VD[0]}, v5, 9, v6
    v_lshl_add_u32 v{VD[1]}, v5, 9, v59
    v_lshl_add_u32 v{QD[0]}, v5, 13, v6
    v_lshl_add_u32 v{QD[1]}, v5, 13, v59
    v_add_u32 v{QD[2]}, {2*15360}, v{QD[0]}
    v_add_u32 v{QD[3]}, {3*15360}, v{QD[1]}
    v_add_u32 v{QD[1]}, 15360, v{QD[1]}
    """)
    s(f"""
    v_lshl_add_u32 v6, v1, 2, v3
    v_xor_b32 v6, v6, v4
    v_lshlrev_b32 v6, 4, v6
    v_xor_b32 v59, 32, v6
    v_lshl_add_u32 v{KD[0]}, v5, 9, v6
    v_lshl_add_u32 v{KD[1]}, v5, 9, v59
    """)
    s("s_waitcnt lgkmcnt(0)")
    s(f"""
    s_cmp_eq_u32 s{S_BR}, 0
    s_cselect_b32 s{S_X}, s4, s14
    s_cselect_b32 s{S_X+1}, s5, s15
    s_cselect_b32 s{S_WQ}, s10, s20
    s_cselect_b32 s{S_WQ+1}, s11, s21
    s_cselect_b32 s{S_K}, s6, s16
    s_cselect_b32 s{S_K+1}, s7, s17
    s_cselect_b32 s{S_V}, s8, s18
    s_cselect_b32 s{S_V+1}, s9, s19
    s_cselect_b32 s{S_WO}, s12, s22
    s_cselect_b32 s{S_WO+1}, s13, s23
    s_mul_i32 s{S_T0}, s{S_B}, 114688
    s_add_u32 s{S_X}, s{S_X}, s{S_T0}
    s_addc_u32 s{S_X+1}, s{S_X+1}, 0
    s_mov_b32 s{S_X+2}, 114688
    s_mov_b32 s{S_X+3}, 0x20000
    s_lshl_b32 s{S_T0}, s{S_H}, 9
    s_add_u32 s{S_WQ}, s{S_WQ}, s{S_T0}
    s_addc_u32 s{S_WQ+1}, s{S_WQ+1}, 0
    s_sub_u32 s{S_WQ+2}, {448*8192}, s{S_T0}
    s_mov_b32 s{S_WQ+3}, 0x20000
    """)

    def dma(tile, slot, regs, srd, soff, aux, pre=[], post=[], **meta):
        l = [I(f"buffer_load_dwordx4 v{regs[i]}, s[{srd}:{srd+3}], {soff} offen offset:{1024*i} {aux} lds".replace("  ", " "),
               tile=tile, slot=slot, **meta) for i in range(4)]
        return ([I(x) for x in pre] + [I(f"s_add_u32 m0, s{S_W4K}, {slot*16384}")], l, [I(x) for x in post])
    WQ_SLOT = [6, 7, 4, 2, 5, 3]
    nxt = lambda r: [f"s_add_u32 s{r}, s{r}, 1", f"s_cmp_eq_u32 s{r}, 7", f"s_cselect_b32 s{r}, 0, s{r}"]
    def dma_x(u): return dma(f"X{u}", 8 + (u & 1), XD, S_X, f"s{S_T0}", P["x_aux"], pre=[f"s_lshl_b32 s{S_T0}, s{S_QU}, 7"])
    def dma_wq(j):
        if j & 1 == 0: return dma(f"WQ{j}", WQ_SLOT[j % 6], QD, S_WQ, f"s{S_T1}", P["wq_aux"], pre=[f"s_lshl_b32 s{S_T1}, s{S_QU}, 19"])
        return dma(f"WQ{j}", WQ_SLOT[j % 6], QD, S_WQ, f"s{S_T1}", P["wq_aux"], pre=[f"s_add_u32 s{S_T1}, s{S_T1}, 0x40000"], post=nxt(S_QU))
    def dma_k(t): return dma(f"K{t}", t % 4, KD * 2, S_K, f"s{S_KOFF}", P["kv_aux"], post=[f"s_add_u32 s{S_KOFF}, s{S_KOFF}, {ADV}"])
    def dma_v(t): return dma(f"V{t}", 4 + t % 4, VD * 2, S_V, f"s{S_VOFF}", P["kv_aux"], post=[f"s_add_u32 s{S_VOFF}, s{S_VOFF}, {ADV}"])
    WO_SLOT = [8, 9, 0, 1, 2, 4, 3, 5, 6, 7, 8, 9, 0, 1]
    def dma_wo(j):
        if j & 1 == 0: return dma(f"WO{j}", WO_SLOT[j], WD, S_WO, f"s{S_T1}", P["wo_aux"], pre=[f"s_lshl_b32 s{S_T1}, s{S_OU}, 7"], unread_ok=True)
        return dma(f"WO{j}", WO_SLOT[j], WD, S_WO, f"s{S_T1}", P["wo_aux"], pre=[f"s_add_u32 s{S_T1}, s{S_T1}, 114688"], post=nxt(S_OU), unread_ok=True)
    def flat(d): return d[0] + d[1] + d[2]

    for d in (dma_x(0), dma_wq(0), dma_wq(1)):
        for i in flat(d): s.add(i)
    if P["cpf"]:
        s(f"""
        s_getpc_b64 s[{S_PC}:{S_PC+1}]
        L_pc:
        s_lshl_b32 s{S_T0}, s{S_B}, 2
        s_add_u32 s{S_T0}, s{S_T0}, s{S_WAVE}
        s_lshl_b32 s{S_T0}, s{S_T0}, 11
        v_and_b32 v{V_CP}, 15, v2
        v_lshl_add_u32 v{V_CP}, v{V_CP}, 7, s{S_T0}
        v_min_u32 v{V_CP}, (L_codeend-L_pc-4), v{V_CP}
        """)
        s(f"global_load_dword v{V_CP+1}, v{V_CP}, s[{S_PC}:{S_PC+1}]")
    s(f"""
    s_add_u32 s{S_K}, s{S_K}, s31
    s_addc_u32 s{S_K+1}, s{S_K+1}, 0
    s_mov_b32 s{S_K+2}, 0x80000
    s_mov_b32 s{S_K+3}, 0x20000
    s_add_u32 s{S_V}, s{S_V}, s31
    s_addc_u32 s{S_V+1}, s{S_V+1}, 0
    s_mov_b32 s{S_V+2}, 0x80000
    s_mov_b32 s{S_V+3}, 0x20000
    s_mul_i32 s{S_T0}, s{S_H}, 229376
    s_add_u32 s{S_WO}, s{S_WO}, s{S_T0}
    s_addc_u32 s{S_WO+1}, s{S_WO+1}, 0
    s_mov_b32 s{S_WO+2}, 229376
    s_mov_b32 s{S_WO+3}, 0x20000
    s_mul_i32 s{S_T0}, s{S_G}, {PART_G}
    s_add_u32 s{S_T0}, s{S_T0}, {P['wsoff']}
    s_add_u32 s{S_P}, s{S_WS}, s{S_T0}
    s_addc_u32 s{S_P+1}, s{S_WS+1}, 0
    s_mov_b32 s{S_P+2}, {PART_G}
    s_mov_b32 s{S_P+3}, 0x20000
    s_mov_b32 s{S_OUT}, s24
    s_mov_b32 s{S_OUT+1}, s25
    s_mov_b32 s{S_OUT+2}, {8*128*896*2}
    s_mov_b32 s{S_OUT+3}, 0x20000
    s_mul_i32 s{S_PB}, s{S_H}, {PART_H}
    s_mul_i32 s{S_T0}, s{S_WAVE}, {PART_W}
    s_add_u32 s{S_PB}, s{S_PB}, s{S_T0}
    s_lshl_b32 s{S_T0}, s{S_G}, 12
    s_add_u32 s{S_T0}, s{S_T0}, {FLAG_OFF}
    s_add_u32 s{S_FL}, s{S_WS}, s{S_T0}
    s_addc_u32 s{S_FL+1}, s{S_WS+1}, 0
    s_mov_b32 s{S_KOFF}, 0
    s_mov_b32 s{S_VOFF}, 0
    s_mov_b32 s{S_C}, {f2u(math.log2(math.e)/16.0):#x}
    s_mov_b32 s{S_C+1}, s{S_C}
    s_mov_b32 s{S_THR}, {f2u(P['thr']):#x}
    s_lshl_b32 s{S_G4}, s{S_G}, 4
    s_mov_b32 s{S_ONE}, 1
    """)
    s(f"""
    v_and_b32 v58, 15, v2
    s_lshl_b32 s{S_T0}, s{S_H}, 8
    v_lshl_add_u32 v{V_FLG}, v58, 2, s{S_T0}
    s_lshl_b32 s{S_T0}, s{S_H}, 2
    v_lshl_add_u32 v{V_FLG2}, v58, 8, s{S_T0}
    v_mov_b32 v{V_POLL}, 0
    v_mov_b32 v{V_DBG}, s{S_G4}
    v_mov_b32 v{V_ONE}, 1
    """)
    s(f"""
    v_bfe_u32 v5, v2, 2, 2
    v_and_b32 v6, 3, v2
    v_lshl_add_u32 v59, v7, 3, v5
    v_lshlrev_b32 v59, 9, v59
    v_lshl_add_u32 v59, v6, 3, v59
    v_and_b32 v60, 1, v7
    v_lshl_add_u32 v60, v60, 2, v5
    """)
    for j in range(8):
        s(f"""
        v_xor_b32 v61, {j}, v60
        v_lshl_add_u32 v{TA0[j]}, v61, 5, v59
        v_add_u32 v{TA1[j]}, 0x10000, v{TA0[j]}
        """)
    s(f"""
    v_lshrrev_b32 v59, 1, v58
    v_xor_b32 v59, v59, v7
    v_lshlrev_b32 v60, 7, v58
    v_lshl_add_u32 v60, v1, 12, v60
    v_add_u32 v60, 0x20000, v60
    v_lshl_add_u32 v{XA[0]}, v59, 4, v60
    v_xor_b32 v{XA[1]}, 64, v{XA[0]}
    """)
    for d in (dma_x(1), dma_wq(2), dma_wq(3)):
        for i in flat(d): s.add(i)
    late = Stream()
    late(f"""
    v_lshrrev_b32 v59, 2, v58
    v_and_b32 v60, 3, v58
    v_lshl_add_u32 v59, v59, 3, v60
    v_lshlrev_b32 v59, 9, v59
    v_xor_b32 v60, v58, v7
    """)
    for k in range(4):
        late(f"v_xor_b32 v61, {4*k}, v60\nv_lshl_add_u32 v{KA[k]}, v61, 4, v59")
    late(f"""
    v_lshl_add_u32 v59, v7, 2, v5
    v_bfe_u32 v60, v59, 1, 2
    v_lshlrev_b32 v59, 7, v59
    v_lshl_add_u32 v59, v6, 3, v59
    """)
    for k in range(4):
        late(f"v_xor_b32 v61, {k}, v60\nv_lshl_add_u32 v{WA[0][k]}, v61, 5, v59")
    late(f"""
    v_mul_u32_u24 v59, 1792, v58
    v_lshl_add_u32 v{V_OUT}, v7, 3, v59
    """)

    PR = []; head = Pair()
    def pr(p):
        if p < 0: return head
        while len(PR) <= p: PR.append(Pair())
        return PR[p]
    npair = [0]
    def frag(p): return A_F + 4 * (p % NF)
    def add_pair(m0, m1):
        p = npair[0]; npair[0] += 1
        pr(p).m = [I(m0), I(m1)]
        return p
    def mf(d, a, b, c): return f"v_mfma_f32_16x16x32_bf16 {vr(d,4)}, {a}, {b}, {c}"
    def rd_at(p, bp, l, bulk=None):
        q = p - LA
        if bulk is not None and q <= bp: bulk.extend(l)
        else: pr(max(q, bp)).reads.extend(l)
    def tread(p, tile, slot, areg, off):
        f = frag(p)
        return [I(f"ds_read_b64_tr_b16 {ar(f,2)}, v{areg} offset:{off}", tile=tile, slot=slot),
                I(f"ds_read_b64_tr_b16 {ar(f+2,2)}, v{areg} offset:{off+2048}", tile=tile, slot=slot)]
    def barrier(bp, tiles):
        pr(bp - 1).vmtags.extend(tiles); pr(bp).sc0.insert(0, I("s_barrier"))
    def place_dma(ds, poss):
        q = 0
        for pre, loads, post in ds:
            for n, ld in enumerate(loads):
                p = poss[q]; q += 1
                if n == 0:
                    pr(p - 1).sc0.extend(pre)
                pr(p).mem.append(ld)
                if n == 3 and post: pr(p + 1).sc0[0:0] = [] ; pr(p + 1).sc0.extend(post)
    def place(l, p0, p1, pace=True, win=8):
        fr = [max(0, pr(p).free()) for p in range(p0, p1 + 1)]
        F = sum(fr); C = sum(cost(i) for i in l); cum = 0; done = 0
        todo = list(range(len(l))); rec = []
        dep = lambda a, b: (a.wr & (b.rd | b.wr)) or (a.rd & b.wr)
        for n, p in enumerate(range(p0, p1 + 1)):
            cum += fr[n]
            while todo:
                if pace and F > C and done > C * cum / F: break
                pick = None
                for x, k in enumerate(todo[:win]):
                    if cost(l[k]) > pr(p).free(): continue
                    if any(dep(l[y], l[k]) for y in todo[:x]): continue
                    if any((o.wr & l[k].rd) for o in pr(p).ops): continue
                    if cost(l[k]) == 2 and len(pr(p).ops) >= 2: continue
                    pick = k; break
                if pick is None: break
                todo.remove(pick); pr(p).ops.append(l[pick]); done += cost(l[pick]); rec.append((n, pick))
        if todo:
            if P.get("verbose"): print("overflow", p0, p1, len(todo))
            for k in todo: pr(p1).ops.append(l[k]); rec.append((p1 - p0, k))
        return rec

    for j in range(14):
        u = j >> 1; slot = WQ_SLOT[j % 6]; ta = TA1 if slot >= 4 else TA0; base = (slot & 3) * 16384
        pb = npair[0]; bp = pb - LA
        bulk = None
        if j == 0:
            head.post += [I("@waitvm WQ0 X0"), I("s_barrier")]; bulk = head.post; bp = -1
        else: barrier(bp, [f"WQ{j}", f"X{u}"])
        if P.get("qstamps") and j % 2 == 0: (head.post if j == 0 else pr(bp).post).extend(stamp_ins())
        if j & 1 == 0:
            for q in range(4):
                xr = I(f"ds_read_b128 {ar(A_X + 16*(u&1) + 4*q, 4)}, v{XA[q>>1]} offset:{(u&1)*16384 + (q&1)*2048}", tile=f"X{u}", slot=8 + (u & 1), private=True)
                if j == 0: head.post.append(xr)
                else: pr(bp + q).reads.append(xr)
        for jj in range(16):
            p = npair[0]
            rd_at(p, bp, tread(p, f"WQ{j}", slot, ta[jj & 7], base + (jj >> 3) * 256), bulk)
            xb = A_X + 16 * (u & 1) + 8 * (j & 1)
            add_pair(*[mf(O0 + 8*jj + 4*qb, ar(frag(p), 4), ar(xb + 4*qb, 4), "0" if j == 0 else vr(O0 + 8*jj + 4*qb, 4)) for qb in range(2)])
        b0 = pb - LA
        if j & 1 == 0:
            ds = []
            if j + 4 <= 13: ds = [dma_wq(j + 4), dma_x(u + 2), dma_wq(j + 5)]
            elif j == 10: ds = [dma_k(0), dma_k(1), dma_v(0)]
            elif j == 12: ds = ([dma_k(2)] if P["PDK"] >= 2 else []) + ([dma_v(1)] if P["PDV"] >= 2 else []) + ([dma_k(3)] if P["PDK"] >= 3 else [])
            poss = [b0 + 2 + (n * 30) // 12 for n in range(12)]
            if j == 0: poss = [1 + (n * 26) // 12 for n in range(12)]
            place_dma(ds, poss)
        if j == 1:
            pr(pb).post += [I(f"s_cmp_lg_u32 s{S_WAVE}, 0"), I("s_cbranch_scc1 L_noclr"), I("s_mov_b64 exec, 0xffff"),
                            I(f"global_atomic_swap v{V_T1}, v{V_FLG}, v{V_POLL}, s[{S_FL}:{S_FL+1}] sc0", untracked=True),
                            I("s_mov_b64 exec, -1"), I("L_noclr:")]
        if j == 8:
            if P["ann"] == "s":
                pr(pb).post += [I(f"s_cmp_lg_u32 s{S_WAVE}, 0"), I("s_cbranch_scc1 L_noann"),
                                I(f"s_atomic_add s{S_ONE}, s[{S_DBG}:{S_DBG+1}], s{S_G4}"), I("L_noann:")]
            else:
                pr(pb).post += [I(f"s_cmp_lg_u32 s{S_WAVE}, 0"), I("s_cbranch_scc1 L_noann"), I("s_mov_b64 exec, 1"),
                                I(f"global_atomic_add v{V_DBG}, v{V_ONE}, s[{S_DBG}:{S_DBG+1}]", untracked=True), I("s_mov_b64 exec, -1"), I("L_noann:")]
    pq_end = npair[0]
    place(late.ins, 40, 100)

    def softmax_ops(t):
        S = SB[t & 1]; Pp = PB[t & 1]; l = []
        T = lambda e: TT[e & 7]
        for e in range(17):
            if e < 16: l.append(I(f"v_exp_f32 v{T(e)}, v{S+e}"))
            d = e - 1
            if d >= 0:
                lt = V_LT[d >> 3]
                if d & 7 == 1: l.append(I(f"v_add_f32 v{lt}, v{T(d-1)}, v{T(d)}"))
                elif d & 7 > 1: l.append(I(f"v_add_f32 v{lt}, v{lt}, v{T(d)}"))
                if d & 1: l.append(I(f"v_cvt_pk_bf16_f32 v{Pp+(d>>1)}, v{T(d-1)}, v{T(d)}"))
        return l
    def allmax(x, t):
        return [I(f"v_mov_b32 v{t}, v{x}"), I(f"v_permlane32_swap_b32 v{x}, v{t}"), I(f"v_max_f32 v{x}, v{x}, v{t}"),
                I(f"v_mov_b32 v{t}, v{x}"), I(f"v_permlane16_swap_b32 v{x}, v{t}"), I(f"v_max_f32 v{x}, v{x}, v{t}")]
    def rowmax(S, x):
        return [I(f"v_max3_f32 v{x}, v{S}, v{S+1}, v{S+2}"), I(f"v_max3_f32 v{x}, v{x}, v{S+3}, v{S+4}"),
                I(f"v_max3_f32 v{x}, v{x}, v{S+5}, v{S+6}"), I(f"v_max_f32 v{x}, v{x}, v{S+7}")]
    def inter(a, b):
        o = []
        for x, y in zip(a, b): o += [x, y]
        return o
    def qk(t, bp, bulk=None):
        slot = t % 4; S = SB[t & 1]
        for q in range(8):
            for kb in range(2):
                p = npair[0]
                rd_at(p, bp, [I(f"ds_read_b128 {ar(frag(p),4)}, v{KA[q&3]} offset:{slot*16384 + (q>>2)*256 + kb*2048}", tile=f"K{t}", slot=slot)], bulk)
                add_pair(*[mf(S + 8*qb + 4*kb, ar(frag(p), 4), ar(A_Q + 8*q + 4*qb, 4),
                              (("0" if t == 0 else vr(NM + 4*qb, 4)) if q == 0 else vr(S + 8*qb + 4*kb, 4))) for qb in range(2)])
    def pv(t, bp, bulk=None):
        slot = 4 + t % 4
        for jj in range(16):
            p = npair[0]
            rd_at(p, bp, tread(p, f"V{t}", slot, TA1[jj & 7], (t % 4) * 16384 + (jj >> 3) * 256), bulk)
            add_pair(*[mf(O0 + 8*jj + 4*qb, ar(frag(p), 4), vr(PB[t & 1] + 4*qb, 4), "0" if t == 0 else vr(O0 + 8*jj + 4*qb, 4)) for qb in range(2)])

    def qconv(q):
        l = []
        for qb in range(2):
            X = O0 + 16*q + 4*qb; Y = X + 8
            l += [I(f"v_pk_mul_f32 {vr(r,2)}, {vr(r,2)}, s[{S_C}:{S_C+1}]") for r in (X, X + 2, Y, Y + 2)]
        for qb in range(2):
            X = O0 + 16*q + 4*qb; Y = X + 8
            l += [I(f"v_cvt_pk_bf16_f32 v{X}, v{X}, v{X+1}"), I(f"v_cvt_pk_bf16_f32 v{Y}, v{Y}, v{Y+1}"),
                  I(f"v_cvt_pk_bf16_f32 v{X+1}, v{X+2}, v{X+3}"), I(f"v_cvt_pk_bf16_f32 v{Y+1}, v{Y+2}, v{Y+3}")]
        for sw in ("32", "16"):
            for qb in range(2):
                X = O0 + 16*q + 4*qb; Y = X + 8
                l += [I(f"v_permlane{sw}_swap_b32 v{X}, v{Y}"), I(f"v_permlane{sw}_swap_b32 v{X+1}, v{Y+1}")]
        for qb in range(2):
            X = O0 + 16*q + 4*qb; Y = X + 8
            l += [I(f"v_accvgpr_write_b32 a{A_Q+8*q+4*qb+n}, v{r}") for n, r in enumerate((X, X + 1, Y, Y + 1))]
        return l
    barrier(pq_end - LA, ["K0"])
    p0 = npair[0]
    qk(0, pq_end - LA)
    place(qconv(0), pq_end - 12, pq_end - 1)
    pr(pq_end - 1).post += stamp_ins()
    for q in range(1, 8):
        l = qconv(q); h = len(l) // 2
        pr(p0 + 2*q - 2).ops += l[:h]; pr(p0 + 2*q - 1).ops += l[h:]
    pz = npair[0] - 1
    init = inter(rowmax(SB[0], V_T0) + allmax(V_T0, TT[0]), rowmax(SB[0] + 8, V_T1) + allmax(V_T1, TT[1]))
    for qb, x in enumerate((V_T0, V_T1)):
        init += [I(f"v_sub_f32 v{NM+4*qb+n}, 0, v{x}") for n in range(4)]
    for qb, x in enumerate((V_T0, V_T1)):
        init += [I(f"v_sub_f32 v{SB[0]+8*qb+n}, v{SB[0]+8*qb+n}, v{x}") for n in range(8)]
    init += [I(f"v_mov_b32 v{V_L[0]}, 0"), I(f"v_mov_b32 v{V_L[1]}, 0")]
    bulk0 = []
    pr(pz).post += [I("@waitvm K1 V0"), I("s_barrier"), I("@bulk0")] + init + stamp_ins()
    wa_late = [I(f"v_add_u32 v{WA[w][k]}, {0x10000*w}, v{WA[0][k]}") for w in (1, 2) for k in range(4)]

    stubs = []; step_start = []
    bp = pz
    for t in range(32):
        ps = npair[0]; step_start.append(ps)
        inloop = 1 <= t <= 28
        lab = f"{t%4}" if inloop else f"p{t}"
        if t <= 4 or t > 28: stubs.append((lab, t & 1))
        chk = [I(f"v_max_f32 v{V_T0}, v{V_LT[0]}, v{V_LT[1]}"), I(f"v_cmp_nge_f32 vcc, s{S_THR}, v{V_T0}")]
        br = [I(f"s_cbranch_vccnz L_fix{lab}"), I(f"L_ret{lab}:")]
        acc = [I(f"v_add_f32 v{V_L[qb]}, v{V_L[qb]}, v{V_LT[qb]}") for qb in range(2)]
        bulk31 = []
        if t < 31:
            qk(t + 1, bp, bulk0 if t == 0 else None)
            pp = npair[0]
            pv(t, bp)
        else:
            pp = npair[0]
            pv(t, bp, bulk31)
            pr(ps - 1).post += chk + br + [I("@waitvm V31"), I("s_barrier")] + bulk31
        pe = npair[0]
        nb = pe - LA
        if t < 30: barrier(nb, [f"K{t+2}", f"V{t+1}"])
        ds = []
        tv = t + P["PDV"]; tk = t + 1 + P["PDK"]
        if tv <= 31: ds.append(dma_v(tv))
        if tk <= 31 or inloop: ds.append(dma_k(tk))
        if P["PDK"] <= P["PDV"] and len(ds) == 2: ds = ds[::-1]
        if t == 29: ds.append(dma_wo(0))
        if t == 30: ds += [dma_wo(1), dma_wo(2)]
        if t == 31: ds += [dma_wo(3)]
        dsp = P["dsp"] if len(ds) <= 2 else 2
        place_dma(ds, [ps + 1 + dsp * n for n in range(12)])
        if inloop and t % 4 == 0:
            pr(pe - 1).sc0.append(I(f"s_add_u32 s{S_CNT}, s{S_CNT}, 1"))
            pr(pe - 1).post.append(I("s_cbranch_scc0 L_loop"))
        if P.get("lstamps"):
            pr(ps + 2).post += [I("s_waitcnt lgkmcnt(0)", blind=True), I(f"s_memrealtime s[{S_ST}:{S_ST+1}]"), I(f"s_memtime s[{S_ST+2}:{S_ST+3}]"),
                I("v_mov_b32_dpp v70, v70 wave_shr:1 row_mask:0xf bank_mask:0xf"), I("v_mov_b32_dpp v71, v71 wave_shr:1 row_mask:0xf bank_mask:0xf"),
                I("s_waitcnt lgkmcnt(0)", blind=True), I(f"v_writelane_b32 v70, s{S_ST}, 0"), I(f"v_writelane_b32 v71, s{S_ST+2}, 0")]
        if t == 0: pr(pe - 2).sc0.append(I(f"s_mov_b32 s{S_CNT}, -7"))
        if P["cpf"] >= 2 and inloop and t % 4 == 1:
            pr(pp + 5).mem.append(I(f"global_load_dword v{V_CP+1}, v{V_CP}, s[{S_PC}:{S_PC+1}]", nodep=True))
        yield_info = (t, ps, pp, pe, chk, br, acc)
        step_start[-1] = yield_info
        bp = nb if t < 30 else pe - 1
    pm_end = npair[0]

    ACC = [SB[0], O0 + 64]
    otile = []
    for j in range(14):
        u = j >> 1; kh = j & 1; slot = WO_SLOT[j]; wa = WA[slot >> 2]; base = (slot & 3) * 16384
        pb = npair[0]; bp = pb - LA; otile.append(pb)
        barrier(bp, [f"WO{j}"])
        for q in range(4):
            for jn in range(4):
                p = npair[0]
                rd_at(p, bp, tread(p, f"WO{j}", slot, wa[jn], base + q * 4096))
                a = ACC[u & 1] + 4 * jn
                add_pair(*[mf(a + 16*qb, ar(frag(p), 4), vr(O0 + 8*(4*kh + q) + 4*qb, 4), "0" if (kh == 0 and q == 0) else vr(a + 16*qb, 4)) for qb in range(2)])
        ds = {0: [4, 5], 1: [6, 7], 2: [8, 9], 3: [10, 11], 4: [12], 5: [13]}.get(j, [])
        place_dma([dma_wo(x) for x in ds], [bp + 1 + 2 * n for n in range(8)])

    for (t, ps, pp, pe, chk, br, acc) in step_start:
        if t < 31: pr(pp - 1).sc0.extend(br)
        place(acc, pp, pp + 1, pace=False)
    w0 = step_start[9][2] + P["sm_start"]
    rec = place(softmax_ops(10) + step_start[10][4], w0, step_start[10][2] - 2)
    for t in range(1, 31):
        if t == 10: continue
        l = softmax_ops(t) + step_start[t][4]
        for n, k in rec: pr(step_start[t-1][2] + P["sm_start"] + n).ops.append(l[k])
    l = softmax_ops(0) + step_start[0][4]
    nrel = step_start[1][1] - (step_start[0][2] + P["sm_start"])
    for n, k in rec:
        if n < nrel: pr(pz).post.append(l[k])
        else: pr(step_start[0][1] + n - nrel).ops.append(l[k])
    place(softmax_ops(31), step_start[30][2] + P["sm_start"], step_start[30][3] - 1, pace=False)
    place(wa_late, step_start[0][1], step_start[0][3] - 1, pace=False)
    pr(step_start[29][2]).mem.append(I(f"global_load_dword v{V_POLL}, v{V_DBG}, s[{S_DBG}:{S_DBG+1}] sc1", tag="HS"))
    def allsum(x, t):
        return [I(f"v_mov_b32 v{t}, v{x}"), I(f"v_permlane32_swap_b32 v{x}, v{t}"), I(f"v_add_f32 v{x}, v{x}, v{t}"),
                I(f"v_mov_b32 v{t}, v{x}"), I(f"v_permlane16_swap_b32 v{x}, v{t}"), I(f"v_add_f32 v{x}, v{x}, v{t}")]
    lsum = inter(allsum(V_L[0], V_T0), allsum(V_L[1], V_T1)) + [I(f"v_rcp_f32 v{V_RI[qb]}, v{V_L[qb]}") for qb in range(2)]
    def oconv(q):
        l = []
        for qb in range(2):
            X = O0 + 16*q + 4*qb; Y = X + 8; D = O0 + 8*q + 4*qb
            l.append([(D, X), (D + 1, X + 2), (D + 2, Y), (D + 3, Y + 2)])
        o = l[0] + l[1]
        if q == 0:
            pass
        return [I(f"v_cvt_pk_bf16_f32 v{d}, v{x}, v{x+1}") for d, x in o]
    place(oconv(0) + oconv(1), pm_end - 10, pm_end - 1)
    pr(pm_end - 1).post += stamp_ins()
    for q in range(2, 8):
        place(oconv(q), pm_end + 4 * (q - 2), pm_end + 4 * (q - 2) + 3)
    place(lsum, pm_end + 24, pm_end + 33)
    STG = [PB[0], PB[1]]
    def finish(u):
        sc = [I(f"s_lshl_b32 s{S_T0}, s{S_OS}, 12"), I(f"s_add_u32 s{S_T0}, s{S_T0}, s{S_PB}")], [I(x) for x in nxt(S_OS)]
        l = []
        for qb in range(2):
            a = ACC[u & 1] + 16 * qb; st = STG[qb]
            for q in range(8):
                l.append(I(f"v_mul_f32 v{a+2*q}, v{V_RI[qb]}, v{a+2*q}"))
                l.append(I(f"v_mul_f32 v{a+2*q+1}, v{V_RI[qb]}, v{a+2*q+1}"))
                l.append(I(f"v_cvt_pk_bf16_f32 v{st+q}, v{a+2*q}, v{a+2*q+1}"))
                if q & 3 == 3:
                    l.append(I(f"buffer_store_dwordx4 {vr(st+q-3,4)}, v{V_L16}, s[{S_P}:{S_P+3}], s{S_T0} offen offset:{qb*2048+(q>>2)*1024} {P['st_aux']}", tag="PST"))
        return sc, l
    for u in range(1, 7):
        pb = otile[2 * u]
        sc, l = finish(u - 1)
        pr(pb).sc1.extend(sc[0]); pr(pb + 1).sc1.extend(sc[1])
        place(l, pb + 2, pb + 31)
    sc, l = finish(6)
    pr(npair[0] - 1).post += [I("@stop")] + sc[0] + l

    def gap_order(mem, ops):
        first = list(mem); rest = []
        for i in ops:
            if i.kind == "vmem" and not any(x.wr & i.rd for x in rest): first.append(i)
            else: rest.append(i)
        return first + rest
    def emit_list(l):
        for i in l:
            if i.kind == "pseudo" and i.op == "@bulk0":
                for x in bulk0: s.add(x)
            else: s.add(i)
    emit_list(head.sc0 + head.post)
    starts = {x[1]: x[0] for x in step_start}
    worst = 0
    for p, q in enumerate(PR):
        if p in starts and starts[p] % 4 == 1: s.add(I(f"@block {starts[p]//4}"))
        mem = q.reads + q.mem
        best = None
        e0 = max(0, sum(cost(x) for x in q.sc0) - 1); e1 = len(q.sc1)
        for r0 in range(len(mem), -1, -1):
            for k in range(len(q.ops) + 1):
                c0 = e0 + r0 + sum(cost(x) for x in q.ops[:k]); c1 = e1 + len(mem) - r0 + sum(cost(x) for x in q.ops[k:])
                sc_ = (max(c0, 2) + max(c1, 2), max(c0, c1), -r0)
                if best is None or sc_ < best[0]: best = (sc_, r0, k)
        _, r0, k = best
        worst += best[0][0] - 4
        emit_list(q.pre)
        s.add(q.m[0]); emit_list(q.sc0); emit_list(gap_order(mem[:r0], q.ops[:k]))
        s.add(q.m[1]); s.add(I("@waitnext " + " ".join(q.vmtags))); emit_list(q.sc1); emit_list(gap_order(mem[r0:], q.ops[k:]))
        emit_list(q.post)
    if P.get("verbose"): print("overfull slots:", worst)

    for i in stamp_ins(): s.add(i)
    s("s_waitcnt vmcnt(0)\ns_barrier")
    for i in stamp_ins(): s.add(i)
    s(f"""
    s_cmp_lg_u32 s{S_WAVE}, 0
    s_cbranch_scc1 L_wait
    s_mov_b32 s{S_CNT}, 0
    L_hs:
    v_readfirstlane_b32 s{S_T0}, v{V_POLL}
    s_cmp_ge_u32 s{S_T0}, 16
    s_cbranch_scc1 L_hsok
    s_add_u32 s{S_CNT}, s{S_CNT}, 1
    s_cmp_ge_u32 s{S_CNT}, 0x40000
    s_cbranch_scc1 L_hsok
    s_sleep 8
    global_load_dword v{V_POLL}, v{V_DBG}, s[{S_DBG}:{S_DBG+1}] sc1
    s_waitcnt vmcnt(0)
    s_branch L_hs
    L_hsok:
    s_mov_b64 exec, 0xffff
    global_store_dword v{V_FLG2}, v{V_ONE}, s[{S_FL}:{S_FL+1}] sc1
    L_poll:
    global_load_dword v{V_POLL}, v{V_FLG}, s[{S_FL}:{S_FL+1}] sc1
    s_waitcnt vmcnt(0)
    v_cmp_ne_u32 vcc, 1, v{V_POLL}
    s_cbranch_vccz L_pollok
    s_add_u32 s{S_CNT}, s{S_CNT}, 1
    s_cmp_ge_u32 s{S_CNT}, 0x40000
    s_cbranch_scc1 L_pollok
    s_sleep {P['sleep']}
    s_branch L_poll
    L_pollok:
    s_mov_b64 exec, -1
    L_wait:
    s_barrier
    """)
    for i in stamp_ins(): s.add(i)
    s(f"""
    s_lshl_b32 s{S_T0}, s{S_H}, 2
    s_add_u32 s{S_T0}, s{S_T0}, s{S_WAVE}
    s_cmp_ge_u32 s{S_T0}, 56
    s_cbranch_scc1 L_done
    s_lshl_b32 s{S_T1}, s{S_T0}, 11
    """)
    for h in range(16):
        for j in range(2):
            s(f"buffer_load_dwordx4 {vr(O0+8*h+4*j,4)}, v{V_L16}, s[{S_P}:{S_P+3}], s{S_T1} offen offset:{1024*j} {P['ld_aux']}")
        if h < 15: s(f"s_add_u32 s{S_T1}, s{S_T1}, {PART_H}")
    s(f"""
    s_mul_i32 s{S_T1}, s{S_T0}, 4682
    s_lshr_b32 s{S_T1}, s{S_T1}, 16
    s_mul_i32 s30, s{S_T1}, 14
    s_sub_u32 s30, s{S_T0}, s30
    s_lshl_b32 s31, s{S_B}, 2
    s_add_u32 s31, s31, s{S_T1}
    s_lshl_b32 s31, s31, 1
    s_and_b32 s3, s30, 1
    s_add_u32 s31, s31, s3
    s_mul_i32 s31, s31, {16*1792}
    s_lshr_b32 s30, s30, 1
    s_lshl_b32 s30, s30, 7
    s_add_u32 s31, s31, s30
    s_mul_i32 s30, s{S_BR}, 896
    s_add_u32 s31, s31, s30
    s_mov_b32 s30, 0xffff0000
    """)
    A0 = SB[0]
    for h in range(16):
        for q in range(8):
            r = O0 + 8 * h + q
            if h == 0:
                s(f"v_lshlrev_b32 v{A0+2*q}, 16, v{r}\nv_and_b32 v{A0+2*q+1}, s30, v{r}")
            else:
                s(f"v_lshlrev_b32 v{TT[0]}, 16, v{r}\nv_and_b32 v{TT[1]}, s30, v{r}\n"
                  f"v_pk_add_f32 {vr(A0+2*q,2)}, {vr(A0+2*q,2)}, {vr(TT[0],2)}")
    for q in range(8):
        s(f"v_cvt_pk_bf16_f32 v{PB[0]+q}, v{A0+2*q}, v{A0+2*q+1}")
    for jn in range(4):
        s(f"buffer_store_dwordx2 {vr(PB[0]+2*jn,2)}, v{V_OUT}, s[{S_OUT}:{S_OUT+3}], s31 offen offset:{32*jn}")
    s("L_done:")
    if P["stamps"]:
        s("s_waitcnt vmcnt(0)\ns_barrier")
        for i in stamp_ins(): s.add(i)
        s(f"""
        s_lshl_b32 s3, s2, 7
        v_lshrrev_b32 v59, 2, v{V_L16}
        v_add_u32 v59, s3, v59
        s_cmp_lg_u32 s{S_WAVE}, 0
        s_cbranch_scc1 L_end
        s_mov_b32 exec_hi, 0
        global_store_dword v59, v{V_ST}, s[{S_WS}:{S_WS+1}]
        v_add_u32 v59, 0x10000, v59
        global_store_dword v59, v70, s[{S_WS}:{S_WS+1}]
        v_add_u32 v59, 0x10000, v59
        global_store_dword v59, v71, s[{S_WS}:{S_WS+1}]
        """)
    s("L_end:\ns_endpgm")

    ins = resolve(s.ins, pair_waits=False, verbose=P.get("verbose"))
    marks = [k for k, i in enumerate(ins) if i.kind == "pseudo" and i.op == "@block"]
    assert len(marks) == 8
    blocks = [text_of(ins[marks[b]:marks[b+1]]) for b in range(7)]
    for b in range(1, 7):
        if blocks[b] != blocks[0]:
            import difflib
            print("".join(list(difflib.unified_diff(blocks[0].splitlines(1), blocks[b].splitlines(1), n=1))[:60]))
            raise SystemExit(f"block {b} differs from block 0")
    body = text_of(ins[:marks[0]]) + ".p2align 3\nL_loop:\n" + blocks[0] + text_of(ins[marks[7]:])

    r = Stream()
    for lab, par in stubs:
        r(f"L_fix{lab}:\ns_call_b64 s[{S_RET}:{S_RET+1}], L_rescale{par}\ns_branch L_ret{lab}")
    for par in range(2):
        r(f"L_rescale{par}:\ns_nop 15\n@fence")
        S = SB[par]; S2 = SB[1 - par]
        for qb, x in enumerate((V_T0, V_T1)):
            for i in rowmax(S + 8*qb, x) + allmax(x, TT[0]): r.add(i)
            r(f"v_max_f32 v{x}, 0, v{x}\nv_exp_f32 v{TT[1]}, -v{x}")
            for n in range(4): r(f"v_sub_f32 v{NM+4*qb+n}, v{NM+4*qb+n}, v{x}")
            for n in range(8): r(f"v_sub_f32 v{S+8*qb+n}, v{S+8*qb+n}, v{x}\nv_sub_f32 v{S2+8*qb+n}, v{S2+8*qb+n}, v{x}")
            r(f"v_mul_f32 v{V_L[qb]}, v{V_L[qb]}, v{TT[1]}")
            for jj in range(16):
                for n in range(4): r(f"v_mul_f32 v{O0+8*jj+4*qb+n}, v{TT[1]}, v{O0+8*jj+4*qb+n}")
        for i in softmax_ops(par): r.add(i)
        r(f"s_nop 3\ns_setpc_b64 s[{S_RET}:{S_RET+1}]")
    body += text_of(resolve(r.ins)) + "L_codeend:\n"
    return whole_file(["; @launch grid=(256,1,1) block=(256,1,1) lds=163840"], [kernel_block(KN, body, 512, 102, 256)])

if __name__ == "__main__":
    out = sys.argv[1]
    kw = {}
    for a in sys.argv[2:]:
        k, v = a.split("=", 1)
        try: v = eval(v)
        except Exception: pass
        kw[k] = v
    open(out, "w").write(build(**kw))
```

```python
import sys, math, struct
from asmlib import *
from stream import *

def f2u(x): return struct.unpack("<I", struct.pack("<f", x))[0]

DEF = dict(LA=4, PDK=3, PDV=2, kv_aux="nt", wq_aux="nt", wo_aux="", x_aux="", stamps=False,
           st_aux="sc1", ld_aux="sc1", rot=1, orot=1, wsoff=0x1000000, thr=4096.0, early_k=10, sleep=2, dsp=2,
           sm_start=2, ann="s", cpf=1)

O0 = 128
SB = [96, 112]
PB = [80, 88]
NM = 72
TT = list(range(0, 8))
V_L = [64, 65]; V_LT = [66, 67]; V_T0, V_T1 = 62, 63; V_RI = [60, 61]
KA = list(range(8, 12))
TA1 = list(range(12, 20))
TA0 = list(range(20, 28))
XA = [28, 29]
KD = [30, 31]; VD = [32, 33]; QD = list(range(34, 38)); XD = list(range(38, 42)); WD = list(range(42, 46))
WA = [list(range(46, 50)), list(range(20, 24)), list(range(24, 28))]
V_L16 = 50; V_OUT = 51
V_FLG = 52; V_FLG2 = 53; V_ONE = 54; V_POLL = 55; V_DBG = 56; V_ST = 57; V_CP = 68
A_Q = 0; A_F = 64; NF = 16; A_X = 128

S_X, S_K, S_V, S_WQ, S_WO, S_P, S_OUT = 32, 36, 40, 44, 48, 52, 56
S_DBG = 26; S_WS = 28
S_W4K, S_WAVE, S_BR, S_B, S_H, S_G = 60, 61, 62, 63, 64, 65
S_KOFF, S_VOFF, S_QU, S_T0, S_T1, S_THR, S_CNT, S_OU, S_OS, S_PB = 66, 67, 68, 69, 70, 72, 73, 74, 75, 76
S_RET = 78; S_FL = 80; S_C = 82
S_ST = 84; S_G4 = 88; S_ONE = 89; S_PC = 90

PART_W = 28672; PART_H = 4 * PART_W; PART_G = 16 * PART_H
FLAG_OFF = 0x100000

def vr(a, n): return f"v[{a}:{a+n-1}]"
def ar(a, n): return f"a[{a}:{a+n-1}]"
def cost(i):
    if i.kind == "trans" or i.op.startswith("v_permlane"): return 2
    if i.kind in ("label", "pseudo"): return 0
    return 1

class Pair:
    def __init__(self):
        self.m = []; self.reads = []; self.mem = []; self.ops = []; self.sc0 = []; self.sc1 = []
        self.pre = []; self.post = []; self.vmtags = []; self.drain = []
    def free(self):
        return 4 - len(self.reads) - len(self.mem) - sum(cost(i) for i in self.ops) - max(0, len(self.sc0) - 1) - len(self.sc1)

def build(**kw):
    P = dict(DEF); P.update(kw)
    LA = P["LA"]
    ADV = "0" if P.get("noadv") else "0x4000"
    s = Stream()
    nstamp = [0]
    def stamp_ins():
        if P.get("probe") is not None:
            k = nstamp[0]; nstamp[0] += 1
            if k != P["probe"]: return []
            return [I("s_waitcnt lgkmcnt(0)", blind=True), I(f"s_memrealtime s[{S_ST}:{S_ST+1}]"), I("s_waitcnt lgkmcnt(0)", blind=True)]
        if not P["stamps"]: return []
        k = nstamp[0]; nstamp[0] += 1
        assert k < 16
        return [I("s_waitcnt lgkmcnt(0)", blind=True), I(f"s_memrealtime s[{S_ST}:{S_ST+1}]"), I(f"s_memtime s[{S_ST+2}:{S_ST+3}]"),
                I("s_waitcnt lgkmcnt(0)", blind=True), I(f"v_writelane_b32 v{V_ST}, s{S_ST}, {k}"), I(f"v_writelane_b32 v{V_ST}, s{S_ST+2}, {16+k}")]

    s("s_cmp_ge_u32 s2, 256\ns_cbranch_scc1 L_end")
    for i in stamp_ins(): s.add(i)
    s(f"""
    s_load_dwordx16 s[4:19], s[0:1], 0
    s_load_dwordx8 s[20:27], s[0:1], 64
    s_load_dwordx2 s[28:29], s[0:1], 96
    v_lshrrev_b32 v1, 6, v0
    v_and_b32 v2, 63, v0
    s_and_b32 s30, s2, 7
    v_readfirstlane_b32 s{S_WAVE}, v1
    s_lshr_b32 s31, s2, 3
    s_lshr_b32 s{S_BR}, s31, 4
    s_bfe_u32 s3, s31, 0x10003
    s_and_b32 s{S_B}, s31, 7
    s_lshl_b32 s{S_H}, s30, 1
    s_add_u32 s{S_H}, s{S_H}, s3
    s_lshl_b32 s{S_G}, s{S_BR}, 3
    s_add_u32 s{S_G}, s{S_G}, s{S_B}
    s_lshl_b32 s{S_W4K}, s{S_WAVE}, 12
    """)
    def rotation(dst, mode):
        if mode == 0: s(f"s_mov_b32 s{dst}, 0"); return
        if mode == 1: s(f"s_mul_i32 s{dst}, s3, 3\ns_add_u32 s{dst}, s{dst}, s{S_B}")
        if mode == 2: s(f"s_mov_b32 s{dst}, s{S_B}")
        if mode == 3: s(f"s_and_b32 s{dst}, s{S_B}, 1\ns_mul_i32 s{dst}, s{dst}, 3")
        if mode == 4: s(f"s_and_b32 s{dst}, s{S_B}, 3\ns_lshl_b32 s{dst}, s{dst}, 1")
        s(f"s_cmp_ge_u32 s{dst}, 7\ns_cselect_b32 s{S_T0}, 7, 0\ns_sub_u32 s{dst}, s{dst}, s{S_T0}")
    rotation(S_QU, P["rot"]); rotation(S_OU, P["orot"])
    s(f"""
    s_mov_b32 s{S_OS}, s{S_OU}
    s_lshl_b32 s{S_T0}, s{S_B}, 3
    s_add_u32 s{S_T0}, s{S_T0}, s30
    s_lshl_b32 s{S_T1}, s{S_B}, 4
    s_add_u32 s{S_T1}, s{S_T1}, s{S_H}
    s_cmp_eq_u32 s{S_BR}, 0
    s_cselect_b32 s31, s{S_T0}, s{S_T1}
    s_lshl_b32 s31, s31, 19
    """)
    s(f"""
    v_lshrrev_b32 v3, 5, v2
    v_and_b32 v4, 31, v2
    v_lshlrev_b32 v{V_L16}, 4, v2
    v_lshrrev_b32 v5, 3, v2
    v_and_b32 v6, 7, v2
    v_lshrrev_b32 v7, 4, v2
    v_lshl_add_u32 v58, v1, 5, v5
    v_mul_u32_u24 v58, 896, v58
    v_xor_b32 v59, v6, v7
    v_lshl_add_u32 v{XD[0]}, v59, 4, v58
    v_xor_b32 v59, 4, v59
    v_lshl_add_u32 v{XD[1]}, v59, 4, v58
    v_add_u32 v{XD[2]}, {2*6144}, v{XD[0]}
    v_add_u32 v{XD[3]}, {3*6144}, v{XD[1]}
    v_add_u32 v{XD[1]}, 6144, v{XD[1]}
    """)
    s(f"""
    v_lshlrev_b32 v59, 1, v7
    v_xor_b32 v59, v59, v6
    v_lshl_add_u32 v{WD[0]}, v59, 4, v58
    v_add_u32 v{WD[1]}, 6144, v{WD[0]}
    v_add_u32 v{WD[2]}, {2*6144}, v{WD[0]}
    v_add_u32 v{WD[3]}, {3*6144}, v{WD[0]}
    """)
    s(f"""
    v_lshl_add_u32 v5, v1, 3, v3
    v_and_b32 v6, 1, v1
    v_lshl_add_u32 v6, v6, 2, v3
    v_lshlrev_b32 v6, 1, v6
    v_xor_b32 v6, v6, v4
    v_lshlrev_b32 v6, 4, v6
    v_xor_b32 v59, 64, v6
    v_lshl_add_u32 v{VD[0]}, v5, 9, v6
    v_lshl_add_u32 v{VD[1]}, v5, 9, v59
    v_lshl_add_u32 v{QD[0]}, v5, 13, v6
    v_lshl_add_u32 v{QD[1]}, v5, 13, v59
    v_add_u32 v{QD[2]}, {2*15360}, v{QD[0]}
    v_add_u32 v{QD[3]}, {3*15360}, v{QD[1]}
    v_add_u32 v{QD[1]}, 15360, v{QD[1]}
    """)
    s(f"""
    v_lshl_add_u32 v6, v1, 2, v3
    v_xor_b32 v6, v6, v4
    v_lshlrev_b32 v6, 4, v6
    v_xor_b32 v59, 32, v6
    v_lshl_add_u32 v{KD[0]}, v5, 9, v6
    v_lshl_add_u32 v{KD[1]}, v5, 9, v59
    """)
    s("s_waitcnt lgkmcnt(0)")
    s(f"""
    s_cmp_eq_u32 s{S_BR}, 0
    s_cselect_b32 s{S_X}, s4, s14
    s_cselect_b32 s{S_X+1}, s5, s15
    s_cselect_b32 s{S_WQ}, s10, s20
    s_cselect_b32 s{S_WQ+1}, s11, s21
    s_cselect_b32 s{S_K}, s6, s16
    s_cselect_b32 s{S_K+1}, s7, s17
    s_cselect_b32 s{S_V}, s8, s18
    s_cselect_b32 s{S_V+1}, s9, s19
    s_cselect_b32 s{S_WO}, s12, s22
    s_cselect_b32 s{S_WO+1}, s13, s23
    s_mul_i32 s{S_T0}, s{S_B}, 114688
    s_add_u32 s{S_X}, s{S_X}, s{S_T0}
    s_addc_u32 s{S_X+1}, s{S_X+1}, 0
    s_mov_b32 s{S_X+2}, 114688
    s_mov_b32 s{S_X+3}, 0x20000
    s_lshl_b32 s{S_T0}, s{S_H}, 9
    s_add_u32 s{S_WQ}, s{S_WQ}, s{S_T0}
    s_addc_u32 s{S_WQ+1}, s{S_WQ+1}, 0
    s_sub_u32 s{S_WQ+2}, {448*8192}, s{S_T0}
    s_mov_b32 s{S_WQ+3}, 0x20000
    """)

    def dma(tile, slot, regs, srd, soff, aux, pre=[], post=[], **meta):
        l = [I(f"buffer_load_dwordx4 v{regs[i]}, s[{srd}:{srd+3}], {soff} offen offset:{1024*i} {aux} lds".replace("  ", " "),
               tile=tile, slot=slot, **meta) for i in range(4)]
        return ([I(x) for x in pre] + [I(f"s_add_u32 m0, s{S_W4K}, {slot*16384}")], l, [I(x) for x in post])
    WQ_SLOT = [6, 7, 4, 2, 5, 3]
    nxt = lambda r: [f"s_add_u32 s{r}, s{r}, 1", f"s_cmp_eq_u32 s{r}, 7", f"s_cselect_b32 s{r}, 0, s{r}"]
    def dma_x(u): return dma(f"X{u}", 8 + (u & 1), XD, S_X, f"s{S_T0}", P["x_aux"], pre=[f"s_lshl_b32 s{S_T0}, s{S_QU}, 7"])
    def dma_wq(j):
        if j & 1 == 0: return dma(f"WQ{j}", WQ_SLOT[j % 6], QD, S_WQ, f"s{S_T1}", P["wq_aux"], pre=[f"s_lshl_b32 s{S_T1}, s{S_QU}, 19"])
        return dma(f"WQ{j}", WQ_SLOT[j % 6], QD, S_WQ, f"s{S_T1}", P["wq_aux"], pre=[f"s_add_u32 s{S_T1}, s{S_T1}, 0x40000"], post=nxt(S_QU))
    def dma_k(t): return dma(f"K{t}", t % 4, KD * 2, S_K, f"s{S_KOFF}", P["kv_aux"], post=[f"s_add_u32 s{S_KOFF}, s{S_KOFF}, {ADV}"])
    def dma_v(t): return dma(f"V{t}", 4 + t % 4, VD * 2, S_V, f"s{S_VOFF}", P["kv_aux"], post=[f"s_add_u32 s{S_VOFF}, s{S_VOFF}, {ADV}"])
    WO_SLOT = [8, 9, 0, 1, 2, 4, 3, 5, 6, 7, 8, 9, 0, 1]
    def dma_wo(j):
        if j & 1 == 0: return dma(f"WO{j}", WO_SLOT[j], WD, S_WO, f"s{S_T1}", P["wo_aux"], pre=[f"s_lshl_b32 s{S_T1}, s{S_OU}, 7"], unread_ok=True)
        return dma(f"WO{j}", WO_SLOT[j], WD, S_WO, f"s{S_T1}", P["wo_aux"], pre=[f"s_add_u32 s{S_T1}, s{S_T1}, 114688"], post=nxt(S_OU), unread_ok=True)
    def flat(d): return d[0] + d[1] + d[2]

    for d in (dma_x(0), dma_wq(0), dma_wq(1)):
        for i in flat(d): s.add(i)
    if P["cpf"]:
        s(f"""
        s_getpc_b64 s[{S_PC}:{S_PC+1}]
        L_pc:
        s_lshl_b32 s{S_T0}, s{S_B}, 2
        s_add_u32 s{S_T0}, s{S_T0}, s{S_WAVE}
        s_lshl_b32 s{S_T0}, s{S_T0}, 11
        v_and_b32 v{V_CP}, 15, v2
        v_lshl_add_u32 v{V_CP}, v{V_CP}, 7, s{S_T0}
        v_min_u32 v{V_CP}, (L_codeend-L_pc-4), v{V_CP}
        """)
        s(f"global_load_dword v{V_CP+1}, v{V_CP}, s[{S_PC}:{S_PC+1}]")
    s(f"""
    s_add_u32 s{S_K}, s{S_K}, s31
    s_addc_u32 s{S_K+1}, s{S_K+1}, 0
    s_mov_b32 s{S_K+2}, 0x80000
    s_mov_b32 s{S_K+3}, 0x20000
    s_add_u32 s{S_V}, s{S_V}, s31
    s_addc_u32 s{S_V+1}, s{S_V+1}, 0
    s_mov_b32 s{S_V+2}, 0x80000
    s_mov_b32 s{S_V+3}, 0x20000
    s_mul_i32 s{S_T0}, s{S_H}, 229376
    s_add_u32 s{S_WO}, s{S_WO}, s{S_T0}
    s_addc_u32 s{S_WO+1}, s{S_WO+1}, 0
    s_mov_b32 s{S_WO+2}, 229376
    s_mov_b32 s{S_WO+3}, 0x20000
    s_mul_i32 s{S_T0}, s{S_G}, {PART_G}
    s_add_u32 s{S_T0}, s{S_T0}, {P['wsoff']}
    s_add_u32 s{S_P}, s{S_WS}, s{S_T0}
    s_addc_u32 s{S_P+1}, s{S_WS+1}, 0
    s_mov_b32 s{S_P+2}, {PART_G}
    s_mov_b32 s{S_P+3}, 0x20000
    s_mov_b32 s{S_OUT}, s24
    s_mov_b32 s{S_OUT+1}, s25
    s_mov_b32 s{S_OUT+2}, {8*128*896*2}
    s_mov_b32 s{S_OUT+3}, 0x20000
    s_mul_i32 s{S_PB}, s{S_H}, {PART_H}
    s_mul_i32 s{S_T0}, s{S_WAVE}, {PART_W}
    s_add_u32 s{S_PB}, s{S_PB}, s{S_T0}
    s_lshl_b32 s{S_T0}, s{S_G}, 12
    s_add_u32 s{S_T0}, s{S_T0}, {FLAG_OFF}
    s_add_u32 s{S_FL}, s{S_WS}, s{S_T0}
    s_addc_u32 s{S_FL+1}, s{S_WS+1}, 0
    s_mov_b32 s{S_KOFF}, 0
    s_mov_b32 s{S_VOFF}, 0
    s_mov_b32 s{S_C}, {f2u(math.log2(math.e)/16.0):#x}
    s_mov_b32 s{S_C+1}, s{S_C}
    s_mov_b32 s{S_THR}, {f2u(P['thr']):#x}
    s_lshl_b32 s{S_G4}, s{S_G}, 4
    s_mov_b32 s{S_ONE}, 1
    """)
    s(f"""
    v_and_b32 v58, 15, v2
    s_lshl_b32 s{S_T0}, s{S_H}, 8
    v_lshl_add_u32 v{V_FLG}, v58, 2, s{S_T0}
    s_lshl_b32 s{S_T0}, s{S_H}, 2
    v_lshl_add_u32 v{V_FLG2}, v58, 8, s{S_T0}
    v_mov_b32 v{V_POLL}, 0
    v_mov_b32 v{V_DBG}, s{S_G4}
    v_mov_b32 v{V_ONE}, 1
    """)
    s(f"""
    v_bfe_u32 v5, v2, 2, 2
    v_and_b32 v6, 3, v2
    v_lshl_add_u32 v59, v7, 3, v5
    v_lshlrev_b32 v59, 9, v59
    v_lshl_add_u32 v59, v6, 3, v59
    v_and_b32 v60, 1, v7
    v_lshl_add_u32 v60, v60, 2, v5
    """)
    for j in range(8):
        s(f"""
        v_xor_b32 v61, {j}, v60
        v_lshl_add_u32 v{TA0[j]}, v61, 5, v59
        v_add_u32 v{TA1[j]}, 0x10000, v{TA0[j]}
        """)
    s(f"""
    v_lshrrev_b32 v59, 1, v58
    v_xor_b32 v59, v59, v7
    v_lshlrev_b32 v60, 7, v58
    v_lshl_add_u32 v60, v1, 12, v60
    v_add_u32 v60, 0x20000, v60
    v_lshl_add_u32 v{XA[0]}, v59, 4, v60
    v_xor_b32 v{XA[1]}, 64, v{XA[0]}
    """)
    for d in (dma_x(1), dma_wq(2), dma_wq(3)):
        for i in flat(d): s.add(i)
    late = Stream()
    late(f"""
    v_lshrrev_b32 v59, 2, v58
    v_and_b32 v60, 3, v58
    v_lshl_add_u32 v59, v59, 3, v60
    v_lshlrev_b32 v59, 9, v59
    v_xor_b32 v60, v58, v7
    """)
    for k in range(4):
        late(f"v_xor_b32 v61, {4*k}, v60\nv_lshl_add_u32 v{KA[k]}, v61, 4, v59")
    late(f"""
    v_lshl_add_u32 v59, v7, 2, v5
    v_bfe_u32 v60, v59, 1, 2
    v_lshlrev_b32 v59, 7, v59
    v_lshl_add_u32 v59, v6, 3, v59
    """)
    for k in range(4):
        late(f"v_xor_b32 v61, {k}, v60\nv_lshl_add_u32 v{WA[0][k]}, v61, 5, v59")
    late(f"""
    v_mul_u32_u24 v59, 1792, v58
    v_lshl_add_u32 v{V_OUT}, v7, 3, v59
    """)

    PR = []; head = Pair()
    def pr(p):
        if p < 0: return head
        while len(PR) <= p: PR.append(Pair())
        return PR[p]
    npair = [0]
    def frag(p): return A_F + 4 * (p % NF)
    def add_pair(m0, m1):
        p = npair[0]; npair[0] += 1
        pr(p).m = [I(m0), I(m1)]
        return p
    def mf(d, a, b, c): return f"v_mfma_f32_16x16x32_bf16 {vr(d,4)}, {a}, {b}, {c}"
    def rd_at(p, bp, l, bulk=None):
        q = p - LA
        if bulk is not None and q <= bp: bulk.extend(l)
        else: pr(max(q, bp)).reads.extend(l)
    def tread(p, tile, slot, areg, off):
        f = frag(p)
        return [I(f"ds_read_b64_tr_b16 {ar(f,2)}, v{areg} offset:{off}", tile=tile, slot=slot),
                I(f"ds_read_b64_tr_b16 {ar(f+2,2)}, v{areg} offset:{off+2048}", tile=tile, slot=slot)]
    def barrier(bp, tiles):
        pr(bp - 1).vmtags.extend(tiles); pr(bp).sc0.insert(0, I("s_barrier"))
    def place_dma(ds, poss):
        q = 0
        for pre, loads, post in ds:
            for n, ld in enumerate(loads):
                p = poss[q]; q += 1
                if n == 0:
                    pr(p - 1).sc0.extend(pre)
                pr(p).mem.append(ld)
                if n == 3 and post: pr(p + 1).sc0[0:0] = [] ; pr(p + 1).sc0.extend(post)
    def place(l, p0, p1, pace=True, win=8):
        fr = [max(0, pr(p).free()) for p in range(p0, p1 + 1)]
        F = sum(fr); C = sum(cost(i) for i in l); cum = 0; done = 0
        todo = list(range(len(l))); rec = []
        dep = lambda a, b: (a.wr & (b.rd | b.wr)) or (a.rd & b.wr)
        for n, p in enumerate(range(p0, p1 + 1)):
            cum += fr[n]
            while todo:
                if pace and F > C and done > C * cum / F: break
                pick = None
                for x, k in enumerate(todo[:win]):
                    if cost(l[k]) > pr(p).free(): continue
                    if any(dep(l[y], l[k]) for y in todo[:x]): continue
                    if any((o.wr & l[k].rd) for o in pr(p).ops): continue
                    if cost(l[k]) == 2 and len(pr(p).ops) >= 2: continue
                    pick = k; break
                if pick is None: break
                todo.remove(pick); pr(p).ops.append(l[pick]); done += cost(l[pick]); rec.append((n, pick))
        if todo:
            if P.get("verbose"): print("overflow", p0, p1, len(todo))
            for k in todo: pr(p1).ops.append(l[k]); rec.append((p1 - p0, k))
        return rec

    for j in range(14):
        u = j >> 1; slot = WQ_SLOT[j % 6]; ta = TA1 if slot >= 4 else TA0; base = (slot & 3) * 16384
        pb = npair[0]; bp = pb - LA
        bulk = None
        if j == 0:
            head.post += [I("@waitvm WQ0 X0"), I("s_barrier")]; bulk = head.post; bp = -1
        else: barrier(bp, [f"WQ{j}", f"X{u}"])
        if P.get("qstamps") and j % 2 == 0: (head.post if j == 0 else pr(bp).post).extend(stamp_ins())
        if j & 1 == 0:
            for q in range(4):
                xr = I(f"ds_read_b128 {ar(A_X + 16*(u&1) + 4*q, 4)}, v{XA[q>>1]} offset:{(u&1)*16384 + (q&1)*2048}", tile=f"X{u}", slot=8 + (u & 1), private=True)
                if j == 0: head.post.append(xr)
                else: pr(bp + q).reads.append(xr)
        for jj in range(16):
            p = npair[0]
            rd_at(p, bp, tread(p, f"WQ{j}", slot, ta[jj & 7], base + (jj >> 3) * 256), bulk)
            xb = A_X + 16 * (u & 1) + 8 * (j & 1)
            add_pair(*[mf(O0 + 8*jj + 4*qb, ar(frag(p), 4), ar(xb + 4*qb, 4), "0" if j == 0 else vr(O0 + 8*jj + 4*qb, 4)) for qb in range(2)])
        b0 = pb - LA
        if j & 1 == 0:
            ds = []
            if j + 4 <= 13: ds = [dma_wq(j + 4), dma_x(u + 2), dma_wq(j + 5)]
            elif j == 10: ds = [dma_k(0), dma_k(1), dma_v(0)]
            elif j == 12: ds = ([dma_k(2)] if P["PDK"] >= 2 else []) + ([dma_v(1)] if P["PDV"] >= 2 else []) + ([dma_k(3)] if P["PDK"] >= 3 else [])
            poss = [b0 + 2 + (n * 30) // 12 for n in range(12)]
            if j == 0: poss = [1 + (n * 26) // 12 for n in range(12)]
            place_dma(ds, poss)
        if j == 1:
            pr(pb).post += [I(f"s_cmp_lg_u32 s{S_WAVE}, 0"), I("s_cbranch_scc1 L_noclr"), I("s_mov_b64 exec, 0xffff"),
                            I(f"global_atomic_swap v{V_T1}, v{V_FLG}, v{V_POLL}, s[{S_FL}:{S_FL+1}] sc0", untracked=True),
                            I("s_mov_b64 exec, -1"), I("L_noclr:")]
        if j == 8:
            if P["ann"] == "s":
                pr(pb).post += [I(f"s_cmp_lg_u32 s{S_WAVE}, 0"), I("s_cbranch_scc1 L_noann"),
                                I(f"s_atomic_add s{S_ONE}, s[{S_DBG}:{S_DBG+1}], s{S_G4}"), I("L_noann:")]
            else:
                pr(pb).post += [I(f"s_cmp_lg_u32 s{S_WAVE}, 0"), I("s_cbranch_scc1 L_noann"), I("s_mov_b64 exec, 1"),
                                I(f"global_atomic_add v{V_DBG}, v{V_ONE}, s[{S_DBG}:{S_DBG+1}]", untracked=True), I("s_mov_b64 exec, -1"), I("L_noann:")]
    pq_end = npair[0]
    place(late.ins, 40, 100)

    def softmax_ops(t):
        S = SB[t & 1]; Pp = PB[t & 1]; l = []
        T = lambda e: TT[e & 7]
        for e in range(17):
            if e < 16: l.append(I(f"v_exp_f32 v{T(e)}, v{S+e}"))
            d = e - 1
            if d >= 0:
                lt = V_LT[d >> 3]
                if d & 7 == 1: l.append(I(f"v_add_f32 v{lt}, v{T(d-1)}, v{T(d)}"))
                elif d & 7 > 1: l.append(I(f"v_add_f32 v{lt}, v{lt}, v{T(d)}"))
                if d & 1: l.append(I(f"v_cvt_pk_bf16_f32 v{Pp+(d>>1)}, v{T(d-1)}, v{T(d)}"))
        return l
    def allmax(x, t):
        return [I(f"v_mov_b32 v{t}, v{x}"), I(f"v_permlane32_swap_b32 v{x}, v{t}"), I(f"v_max_f32 v{x}, v{x}, v{t}"),
                I(f"v_mov_b32 v{t}, v{x}"), I(f"v_permlane16_swap_b32 v{x}, v{t}"), I(f"v_max_f32 v{x}, v{x}, v{t}")]
    def rowmax(S, x):
        return [I(f"v_max3_f32 v{x}, v{S}, v{S+1}, v{S+2}"), I(f"v_max3_f32 v{x}, v{x}, v{S+3}, v{S+4}"),
                I(f"v_max3_f32 v{x}, v{x}, v{S+5}, v{S+6}"), I(f"v_max_f32 v{x}, v{x}, v{S+7}")]
    def inter(a, b):
        o = []
        for x, y in zip(a, b): o += [x, y]
        return o
    def qk(t, bp, bulk=None):
        slot = t % 4; S = SB[t & 1]
        for q in range(8):
            for kb in range(2):
                p = npair[0]
                rd_at(p, bp, [I(f"ds_read_b128 {ar(frag(p),4)}, v{KA[q&3]} offset:{slot*16384 + (q>>2)*256 + kb*2048}", tile=f"K{t}", slot=slot)], bulk)
                add_pair(*[mf(S + 8*qb + 4*kb, ar(frag(p), 4), ar(A_Q + 8*q + 4*qb, 4),
                              (("0" if t == 0 else vr(NM + 4*qb, 4)) if q == 0 else vr(S + 8*qb + 4*kb, 4))) for qb in range(2)])
    def pv(t, bp, bulk=None):
        slot = 4 + t % 4
        for jj in range(16):
            p = npair[0]
            rd_at(p, bp, tread(p, f"V{t}", slot, TA1[jj & 7], (t % 4) * 16384 + (jj >> 3) * 256), bulk)
            add_pair(*[mf(O0 + 8*jj + 4*qb, ar(frag(p), 4), vr(PB[t & 1] + 4*qb, 4), "0" if t == 0 else vr(O0 + 8*jj + 4*qb, 4)) for qb in range(2)])

    def qconv(q):
        l = []
        for qb in range(2):
            X = O0 + 16*q + 4*qb; Y = X + 8
            l += [I(f"v_pk_mul_f32 {vr(r,2)}, {vr(r,2)}, s[{S_C}:{S_C+1}]") for r in (X, X + 2, Y, Y + 2)]
        for qb in range(2):
            X = O0 + 16*q + 4*qb; Y = X + 8
            l += [I(f"v_cvt_pk_bf16_f32 v{X}, v{X}, v{X+1}"), I(f"v_cvt_pk_bf16_f32 v{Y}, v{Y}, v{Y+1}"),
                  I(f"v_cvt_pk_bf16_f32 v{X+1}, v{X+2}, v{X+3}"), I(f"v_cvt_pk_bf16_f32 v{Y+1}, v{Y+2}, v{Y+3}")]
        for sw in ("32", "16"):
            for qb in range(2):
                X = O0 + 16*q + 4*qb; Y = X + 8
                l += [I(f"v_permlane{sw}_swap_b32 v{X}, v{Y}"), I(f"v_permlane{sw}_swap_b32 v{X+1}, v{Y+1}")]
        for qb in range(2):
            X = O0 + 16*q + 4*qb; Y = X + 8
            l += [I(f"v_accvgpr_write_b32 a{A_Q+8*q+4*qb+n}, v{r}") for n, r in enumerate((X, X + 1, Y, Y + 1))]
        return l
    barrier(pq_end - LA, ["K0"])
    p0 = npair[0]
    qk(0, pq_end - LA)
    place(qconv(0), pq_end - 12, pq_end - 1)
    pr(pq_end - 1).post += stamp_ins()
    for q in range(1, 8):
        l = qconv(q); h = len(l) // 2
        pr(p0 + 2*q - 2).ops += l[:h]; pr(p0 + 2*q - 1).ops += l[h:]
    pz = npair[0] - 1
    init = inter(rowmax(SB[0], V_T0) + allmax(V_T0, TT[0]), rowmax(SB[0] + 8, V_T1) + allmax(V_T1, TT[1]))
    for qb, x in enumerate((V_T0, V_T1)):
        init += [I(f"v_sub_f32 v{NM+4*qb+n}, 0, v{x}") for n in range(4)]
    for qb, x in enumerate((V_T0, V_T1)):
        init += [I(f"v_sub_f32 v{SB[0]+8*qb+n}, v{SB[0]+8*qb+n}, v{x}") for n in range(8)]
    init += [I(f"v_mov_b32 v{V_L[0]}, 0"), I(f"v_mov_b32 v{V_L[1]}, 0")]
    bulk0 = []
    pr(pz).post += [I("@waitvm K1 V0"), I("s_barrier"), I("@bulk0")] + init + stamp_ins()
    wa_late = [I(f"v_add_u32 v{WA[w][k]}, {0x10000*w}, v{WA[0][k]}") for w in (1, 2) for k in range(4)]

    stubs = []; step_start = []
    bp = pz
    for t in range(32):
        ps = npair[0]; step_start.append(ps)
        inloop = 1 <= t <= 28
        lab = f"{t%4}" if inloop else f"p{t}"
        if t <= 4 or t > 28: stubs.append((lab, t & 1))
        chk = [I(f"v_max_f32 v{V_T0}, v{V_LT[0]}, v{V_LT[1]}"), I(f"v_cmp_nge_f32 vcc, s{S_THR}, v{V_T0}")]
        br = [I(f"s_cbranch_vccnz L_fix{lab}"), I(f"L_ret{lab}:")]
        acc = [I(f"v_add_f32 v{V_L[qb]}, v{V_L[qb]}, v{V_LT[qb]}") for qb in range(2)]
        bulk31 = []
        if t < 31:
            qk(t + 1, bp, bulk0 if t == 0 else None)
            pp = npair[0]
            pv(t, bp)
        else:
            pp = npair[0]
            pv(t, bp, bulk31)
            pr(ps - 1).post += chk + br + [I("@waitvm V31"), I("s_barrier")] + bulk31
        pe = npair[0]
        nb = pe - LA
        if t < 30: barrier(nb, [f"K{t+2}", f"V{t+1}"])
        ds = []
        tv = t + P["PDV"]; tk = t + 1 + P["PDK"]
        if tv <= 31: ds.append(dma_v(tv))
        if tk <= 31 or inloop: ds.append(dma_k(tk))
        if P["PDK"] <= P["PDV"] and len(ds) == 2: ds = ds[::-1]
        if t == 29: ds.append(dma_wo(0))
        if t == 30: ds += [dma_wo(1), dma_wo(2)]
        if t == 31: ds += [dma_wo(3)]
        dsp = P["dsp"] if len(ds) <= 2 else 2
        place_dma(ds, [ps + 1 + dsp * n for n in range(12)])
        if inloop and t % 4 == 0:
            pr(pe - 1).sc0.append(I(f"s_add_u32 s{S_CNT}, s{S_CNT}, 1"))
            pr(pe - 1).post.append(I("s_cbranch_scc0 L_loop"))
        if P.get("lstamps"):
            pr(ps + 2).post += [I("s_waitcnt lgkmcnt(0)", blind=True), I(f"s_memrealtime s[{S_ST}:{S_ST+1}]"), I(f"s_memtime s[{S_ST+2}:{S_ST+3}]"),
                I("v_mov_b32_dpp v70, v70 wave_shr:1 row_mask:0xf bank_mask:0xf"), I("v_mov_b32_dpp v71, v71 wave_shr:1 row_mask:0xf bank_mask:0xf"),
                I("s_waitcnt lgkmcnt(0)", blind=True), I(f"v_writelane_b32 v70, s{S_ST}, 0"), I(f"v_writelane_b32 v71, s{S_ST+2}, 0")]
        if t == 0: pr(pe - 2).sc0.append(I(f"s_mov_b32 s{S_CNT}, -7"))
        if P["cpf"] >= 2 and inloop and t % 4 == 1:
            pr(pp + 5).mem.append(I(f"global_load_dword v{V_CP+1}, v{V_CP}, s[{S_PC}:{S_PC+1}]", nodep=True))
        yield_info = (t, ps, pp, pe, chk, br, acc)
        step_start[-1] = yield_info
        bp = nb if t < 30 else pe - 1
    pm_end = npair[0]

    ACC = [SB[0], O0 + 64]
    otile = []
    for j in range(14):
        u = j >> 1; kh = j & 1; slot = WO_SLOT[j]; wa = WA[slot >> 2]; base = (slot & 3) * 16384
        pb = npair[0]; bp = pb - LA; otile.append(pb)
        barrier(bp, [f"WO{j}"])
        for q in range(4):
            for jn in range(4):
                p = npair[0]
                rd_at(p, bp, tread(p, f"WO{j}", slot, wa[jn], base + q * 4096))
                a = ACC[u & 1] + 4 * jn
                add_pair(*[mf(a + 16*qb, ar(frag(p), 4), vr(O0 + 8*(4*kh + q) + 4*qb, 4), "0" if (kh == 0 and q == 0) else vr(a + 16*qb, 4)) for qb in range(2)])
        ds = {0: [4, 5], 1: [6, 7], 2: [8, 9], 3: [10, 11], 4: [12], 5: [13]}.get(j, [])
        place_dma([dma_wo(x) for x in ds], [bp + 1 + 2 * n for n in range(8)])

    for (t, ps, pp, pe, chk, br, acc) in step_start:
        if t < 31: pr(pp - 1).sc0.extend(br)
        place(acc, pp, pp + 1, pace=False)
    w0 = step_start[9][2] + P["sm_start"]
    rec = place(softmax_ops(10) + step_start[10][4], w0, step_start[10][2] - 2)
    for t in range(1, 31):
        if t == 10: continue
        l = softmax_ops(t) + step_start[t][4]
        for n, k in rec: pr(step_start[t-1][2] + P["sm_start"] + n).ops.append(l[k])
    l = softmax_ops(0) + step_start[0][4]
    nrel = step_start[1][1] - (step_start[0][2] + P["sm_start"])
    for n, k in rec:
        if n < nrel: pr(pz).post.append(l[k])
        else: pr(step_start[0][1] + n - nrel).ops.append(l[k])
    place(softmax_ops(31), step_start[30][2] + P["sm_start"], step_start[30][3] - 1, pace=False)
    place(wa_late, step_start[0][1], step_start[0][3] - 1, pace=False)
    pr(step_start[29][2]).mem.append(I(f"global_load_dword v{V_POLL}, v{V_DBG}, s[{S_DBG}:{S_DBG+1}] sc1", tag="HS"))
    def allsum(x, t):
        return [I(f"v_mov_b32 v{t}, v{x}"), I(f"v_permlane32_swap_b32 v{x}, v{t}"), I(f"v_add_f32 v{x}, v{x}, v{t}"),
                I(f"v_mov_b32 v{t}, v{x}"), I(f"v_permlane16_swap_b32 v{x}, v{t}"), I(f"v_add_f32 v{x}, v{x}, v{t}")]
    lsum = inter(allsum(V_L[0], V_T0), allsum(V_L[1], V_T1)) + [I(f"v_rcp_f32 v{V_RI[qb]}, v{V_L[qb]}") for qb in range(2)]
    def oconv(q):
        l = []
        for qb in range(2):
            X = O0 + 16*q + 4*qb; Y = X + 8; D = O0 + 8*q + 4*qb
            l.append([(D, X), (D + 1, X + 2), (D + 2, Y), (D + 3, Y + 2)])
        o = l[0] + l[1]
        if q == 0:
            pass
        return [I(f"v_cvt_pk_bf16_f32 v{d}, v{x}, v{x+1}") for d, x in o]
    place(oconv(0) + oconv(1), pm_end - 10, pm_end - 1)
    pr(pm_end - 1).post += stamp_ins()
    for q in range(2, 8):
        place(oconv(q), pm_end + 4 * (q - 2), pm_end + 4 * (q - 2) + 3)
    place(lsum, pm_end + 24, pm_end + 33)
    STG = [PB[0], PB[1]]
    def finish(u):
        sc = [I(f"s_lshl_b32 s{S_T0}, s{S_OS}, 12"), I(f"s_add_u32 s{S_T0}, s{S_T0}, s{S_PB}")], [I(x) for x in nxt(S_OS)]
        l = []
        for qb in range(2):
            a = ACC[u & 1] + 16 * qb; st = STG[qb]
            for q in range(8):
                l.append(I(f"v_mul_f32 v{a+2*q}, v{V_RI[qb]}, v{a+2*q}"))
                l.append(I(f"v_mul_f32 v{a+2*q+1}, v{V_RI[qb]}, v{a+2*q+1}"))
                l.append(I(f"v_cvt_pk_bf16_f32 v{st+q}, v{a+2*q}, v{a+2*q+1}"))
                if q & 3 == 3:
                    l.append(I(f"buffer_store_dwordx4 {vr(st+q-3,4)}, v{V_L16}, s[{S_P}:{S_P+3}], s{S_T0} offen offset:{qb*2048+(q>>2)*1024} {P['st_aux']}", tag="PST"))
        return sc, l
    for u in range(1, 7):
        pb = otile[2 * u]
        sc, l = finish(u - 1)
        pr(pb).sc1.extend(sc[0]); pr(pb + 1).sc1.extend(sc[1])
        place(l, pb + 2, pb + 31)
    sc, l = finish(6)
    pr(npair[0] - 1).post += [I("@stop")] + sc[0] + l

    def gap_order(mem, ops):
        first = list(mem); rest = []
        for i in ops:
            if i.kind == "vmem" and not any(x.wr & i.rd for x in rest): first.append(i)
            else: rest.append(i)
        return first + rest
    def emit_list(l):
        for i in l:
            if i.kind == "pseudo" and i.op == "@bulk0":
                for x in bulk0: s.add(x)
            else: s.add(i)
    emit_list(head.sc0 + head.post)
    starts = {x[1]: x[0] for x in step_start}
    worst = 0
    for p, q in enumerate(PR):
        if p in starts and starts[p] % 4 == 1: s.add(I(f"@block {starts[p]//4}"))
        mem = q.reads + q.mem
        best = None
        e0 = max(0, sum(cost(x) for x in q.sc0) - 1); e1 = len(q.sc1)
        for r0 in range(len(mem), -1, -1):
            for k in range(len(q.ops) + 1):
                c0 = e0 + r0 + sum(cost(x) for x in q.ops[:k]); c1 = e1 + len(mem) - r0 + sum(cost(x) for x in q.ops[k:])
                sc_ = (max(c0, 2) + max(c1, 2), max(c0, c1), -r0)
                if best is None or sc_ < best[0]: best = (sc_, r0, k)
        _, r0, k = best
        worst += best[0][0] - 4
        emit_list(q.pre)
        s.add(q.m[0]); emit_list(q.sc0); emit_list(gap_order(mem[:r0], q.ops[:k]))
        s.add(q.m[1]); s.add(I("@waitnext " + " ".join(q.vmtags))); emit_list(q.sc1); emit_list(gap_order(mem[r0:], q.ops[k:]))
        emit_list(q.post)
    if P.get("verbose"): print("overfull slots:", worst)

    for i in stamp_ins(): s.add(i)
    s("s_waitcnt vmcnt(0)\ns_barrier")
    for i in stamp_ins(): s.add(i)
    s(f"""
    s_cmp_lg_u32 s{S_WAVE}, 0
    s_cbranch_scc1 L_wait
    s_mov_b32 s{S_CNT}, 0
    L_hs:
    v_readfirstlane_b32 s{S_T0}, v{V_POLL}
    s_cmp_ge_u32 s{S_T0}, 16
    s_cbranch_scc1 L_hsok
    s_add_u32 s{S_CNT}, s{S_CNT}, 1
    s_cmp_ge_u32 s{S_CNT}, 0x40000
    s_cbranch_scc1 L_hsok
    s_sleep 8
    global_load_dword v{V_POLL}, v{V_DBG}, s[{S_DBG}:{S_DBG+1}] sc1
    s_waitcnt vmcnt(0)
    s_branch L_hs
    L_hsok:
    s_mov_b64 exec, 0xffff
    global_store_dword v{V_FLG2}, v{V_ONE}, s[{S_FL}:{S_FL+1}] sc1
    L_poll:
    global_load_dword v{V_POLL}, v{V_FLG}, s[{S_FL}:{S_FL+1}] sc1
    s_waitcnt vmcnt(0)
    v_cmp_ne_u32 vcc, 1, v{V_POLL}
    s_cbranch_vccz L_pollok
    s_add_u32 s{S_CNT}, s{S_CNT}, 1
    s_cmp_ge_u32 s{S_CNT}, 0x40000
    s_cbranch_scc1 L_pollok
    s_sleep {P['sleep']}
    s_branch L_poll
    L_pollok:
    s_mov_b64 exec, -1
    L_wait:
    s_barrier
    """)
    for i in stamp_ins(): s.add(i)
    s(f"""
    s_lshl_b32 s{S_T0}, s{S_H}, 2
    s_add_u32 s{S_T0}, s{S_T0}, s{S_WAVE}
    s_cmp_ge_u32 s{S_T0}, 56
    s_cbranch_scc1 L_done
    s_lshl_b32 s{S_T1}, s{S_T0}, 11
    """)
    for h in range(16):
        for j in range(2):
            s(f"buffer_load_dwordx4 {vr(O0+8*h+4*j,4)}, v{V_L16}, s[{S_P}:{S_P+3}], s{S_T1} offen offset:{1024*j} {P['ld_aux']}")
        if h < 15: s(f"s_add_u32 s{S_T1}, s{S_T1}, {PART_H}")
    s(f"""
    s_mul_i32 s{S_T1}, s{S_T0}, 4682
    s_lshr_b32 s{S_T1}, s{S_T1}, 16
    s_mul_i32 s30, s{S_T1}, 14
    s_sub_u32 s30, s{S_T0}, s30
    s_lshl_b32 s31, s{S_B}, 2
    s_add_u32 s31, s31, s{S_T1}
    s_lshl_b32 s31, s31, 1
    s_and_b32 s3, s30, 1
    s_add_u32 s31, s31, s3
    s_mul_i32 s31, s31, {16*1792}
    s_lshr_b32 s30, s30, 1
    s_lshl_b32 s30, s30, 7
    s_add_u32 s31, s31, s30
    s_mul_i32 s30, s{S_BR}, 896
    s_add_u32 s31, s31, s30
    s_mov_b32 s30, 0xffff0000
    """)
    A0 = SB[0]
    for h in range(16):
        for q in range(8):
            r = O0 + 8 * h + q
            if h == 0:
                s(f"v_lshlrev_b32 v{A0+2*q}, 16, v{r}\nv_and_b32 v{A0+2*q+1}, s30, v{r}")
            else:
                s(f"v_lshlrev_b32 v{TT[0]}, 16, v{r}\nv_and_b32 v{TT[1]}, s30, v{r}\n"
                  f"v_pk_add_f32 {vr(A0+2*q,2)}, {vr(A0+2*q,2)}, {vr(TT[0],2)}")
    for q in range(8):
        s(f"v_cvt_pk_bf16_f32 v{PB[0]+q}, v{A0+2*q}, v{A0+2*q+1}")
    for jn in range(4):
        s(f"buffer_store_dwordx2 {vr(PB[0]+2*jn,2)}, v{V_OUT}, s[{S_OUT}:{S_OUT+3}], s31 offen offset:{32*jn}")
    s("L_done:")
    if P.get("probe") is not None:
        s("s_waitcnt vmcnt(0)\ns_barrier")
        for i in stamp_ins(): s.add(i)
        s(f"""
        L_spin:
        s_sleep 4
        s_memrealtime s[{S_ST+2}:{S_ST+3}]
        s_waitcnt lgkmcnt(0)
        s_sub_u32 s{S_T0}, s{S_ST+2}, s{S_ST}
        s_cmp_lt_u32 s{S_T0}, 10000
        s_cbranch_scc1 L_spin
        """)
    if P["stamps"]:
        s("s_waitcnt vmcnt(0)\ns_barrier")
        for i in stamp_ins(): s.add(i)
        s(f"""
        s_lshl_b32 s3, s2, 7
        v_lshrrev_b32 v59, 2, v{V_L16}
        v_add_u32 v59, s3, v59
        s_cmp_lg_u32 s{S_WAVE}, 0
        s_cbranch_scc1 L_end
        s_mov_b32 exec_hi, 0
        global_store_dword v59, v{V_ST}, s[{S_WS}:{S_WS+1}]
        v_add_u32 v59, 0x10000, v59
        global_store_dword v59, v70, s[{S_WS}:{S_WS+1}]
        v_add_u32 v59, 0x10000, v59
        global_store_dword v59, v71, s[{S_WS}:{S_WS+1}]
        """)
    s("L_end:\ns_endpgm")

    ins = resolve(s.ins, pair_waits=False, verbose=P.get("verbose"))
    marks = [k for k, i in enumerate(ins) if i.kind == "pseudo" and i.op == "@block"]
    assert len(marks) == 8
    blocks = [text_of(ins[marks[b]:marks[b+1]]) for b in range(7)]
    for b in range(1, 7):
        if blocks[b] != blocks[0]:
            import difflib
            print("".join(list(difflib.unified_diff(blocks[0].splitlines(1), blocks[b].splitlines(1), n=1))[:60]))
            raise SystemExit(f"block {b} differs from block 0")
    body = text_of(ins[:marks[0]]) + ".p2align 3\nL_loop:\n" + blocks[0] + text_of(ins[marks[7]:])

    r = Stream()
    for lab, par in stubs:
        r(f"L_fix{lab}:\ns_call_b64 s[{S_RET}:{S_RET+1}], L_rescale{par}\ns_branch L_ret{lab}")
    for par in range(2):
        r(f"L_rescale{par}:\ns_nop 15\n@fence")
        S = SB[par]; S2 = SB[1 - par]
        for qb, x in enumerate((V_T0, V_T1)):
            for i in rowmax(S + 8*qb, x) + allmax(x, TT[0]): r.add(i)
            r(f"v_max_f32 v{x}, 0, v{x}\nv_exp_f32 v{TT[1]}, -v{x}")
            for n in range(4): r(f"v_sub_f32 v{NM+4*qb+n}, v{NM+4*qb+n}, v{x}")
            for n in range(8): r(f"v_sub_f32 v{S+8*qb+n}, v{S+8*qb+n}, v{x}\nv_sub_f32 v{S2+8*qb+n}, v{S2+8*qb+n}, v{x}")
            r(f"v_mul_f32 v{V_L[qb]}, v{V_L[qb]}, v{TT[1]}")
            for jj in range(16):
                for n in range(4): r(f"v_mul_f32 v{O0+8*jj+4*qb+n}, v{TT[1]}, v{O0+8*jj+4*qb+n}")
        for i in softmax_ops(par): r.add(i)
        r(f"s_nop 3\ns_setpc_b64 s[{S_RET}:{S_RET+1}]")
    body += text_of(resolve(r.ins)) + "L_codeend:\n"
    return whole_file(["; @launch grid=(256,1,1) block=(256,1,1) lds=163840"], [kernel_block(KN, body, 512, 102, 256)])

if __name__ == "__main__":
    out = sys.argv[1]
    kw = {}
    for a in sys.argv[2:]:
        k, v = a.split("=", 1)
        try: v = eval(v)
        except Exception: pass
        kw[k] = v
    open(out, "w").write(build(**kw))
```

```python
import sys, math, struct
from asmlib import *
from stream import *

def f2u(x): return struct.unpack("<I", struct.pack("<f", x))[0]

DEF = dict(LA=4, PDK=2, PDV=2, late=2, kv_aux="nt", wq_aux="", wpf=0, prog=0, krot=1, fewb=1, ewo=1, bm=1, wo_aux="", x_aux="", stamps=False,
           st_aux="sc1", ld_aux="sc1", rot=2, orot=2, n1=4, sig=12, pw=4, wsoff=0x1000000, thr=4096.0, early_k=10, sleep=2, dsp=2,
           sm_start=2, ann="s", cpf=1)

O0 = 128
SB = [96, 112]
PB = [80, 88]
NM = 72
TT = list(range(0, 8))
V_L = [64, 65]; V_LT = [66, 67]; V_T0, V_T1 = 62, 63; V_RI = [60, 61]
KA = list(range(8, 12))
TA1 = list(range(12, 20))
TA0 = list(range(20, 28))
XA = [28, 29]
KD = [30, 31]; VD = [32, 33]; QD = list(range(34, 38)); XD = list(range(38, 42)); WD = list(range(42, 46))
WA = [list(range(46, 50)), list(range(20, 24)), list(range(24, 28))]
V_L16 = 50; V_OUT = 51
V_FLG = 52; V_FLG2 = 53; V_ONE = 54; V_POLL = 55; V_DBG = 56; V_ST = 57; V_CP = 68; V_EP = 59
A_Q = 0; A_F = 64; NF = 16; A_X = 128

S_X, S_K, S_V, S_WQ, S_WO, S_P, S_OUT = 32, 36, 40, 44, 48, 52, 56
S_DBG = 26; S_WS = 28
S_W4K, S_WAVE, S_BR, S_B, S_H, S_G = 60, 61, 62, 63, 64, 65
S_KOFF, S_VOFF, S_QU, S_T0, S_T1, S_THR, S_CNT, S_OU, S_OS, S_PB = 66, 67, 68, 69, 70, 72, 73, 74, 75, 76
S_RET = 78; S_FL = 80; S_C = 82
S_ST = 84; S_G4 = 88; S_ONE = 89; S_PC = 90; S_BT = 93; S_RR = [94, 95]; S_RO = [96, 97]; S_RA = [98, 99]; S_LO = 100; S_HI = 101

PART_W = 28672; PART_H = 4 * PART_W; PART_G = 16 * PART_H
FLAG_OFF = 0x100000

def vr(a, n): return f"v[{a}:{a+n-1}]"
def ar(a, n): return f"a[{a}:{a+n-1}]"
def cost(i):
    if i.kind == "trans" or i.op.startswith("v_permlane"): return 2
    if i.kind in ("label", "pseudo"): return 0
    return 1

class Pair:
    def __init__(self):
        self.m = []; self.reads = []; self.mem = []; self.ops = []; self.sc0 = []; self.sc1 = []
        self.pre = []; self.post = []; self.vmtags = []; self.drain = []
    def free(self):
        return 4 - len(self.reads) - len(self.mem) - sum(cost(i) for i in self.ops) - max(0, len(self.sc0) - 1) - sum(cost(i) for i in self.sc1)

def build(**kw):
    P = dict(DEF); P.update(kw)
    LA = P["LA"]
    ADV = "0" if P.get("noadv") else "0x4000"
    s = Stream()
    nstamp = [0]
    def stamp_ins():
        if P.get("probe") is not None:
            k = nstamp[0]; nstamp[0] += 1
            if k != P["probe"]: return []
            return [I("s_waitcnt lgkmcnt(0)", blind=True), I(f"s_memrealtime s[{S_ST}:{S_ST+1}]"), I("s_waitcnt lgkmcnt(0)", blind=True)]
        if not P["stamps"]: return []
        k = nstamp[0]; nstamp[0] += 1
        assert k < 16
        return [I("s_waitcnt lgkmcnt(0)", blind=True), I(f"s_memrealtime s[{S_ST}:{S_ST+1}]"), I(f"s_memtime s[{S_ST+2}:{S_ST+3}]"),
                I("s_waitcnt lgkmcnt(0)", blind=True), I(f"v_writelane_b32 v{V_ST}, s{S_ST}, {k}"), I(f"v_writelane_b32 v{V_ST}, s{S_ST+2}, {16+k}")]

    s("s_cmp_ge_u32 s2, 256\ns_cbranch_scc1 L_end")
    for i in stamp_ins(): s.add(i)
    s(f"""
    s_load_dwordx16 s[4:19], s[0:1], 0
    s_load_dwordx8 s[20:27], s[0:1], 64
    s_load_dwordx2 s[28:29], s[0:1], 96
    v_lshrrev_b32 v1, 6, v0
    v_and_b32 v2, 63, v0
    s_and_b32 s30, s2, 7
    v_readfirstlane_b32 s{S_WAVE}, v1
    s_lshr_b32 s31, s2, 3
    s_lshr_b32 s{S_BR}, s31, 4
    s_bfe_u32 s3, s31, 0x10003
    s_and_b32 s{S_B}, s31, 7
    s_lshl_b32 s{S_H}, s30, 1
    s_add_u32 s{S_H}, s{S_H}, s3
    s_lshl_b32 s{S_G}, s{S_BR}, 3
    s_add_u32 s{S_G}, s{S_G}, s{S_B}
    s_lshl_b32 s{S_W4K}, s{S_WAVE}, 12
    """)
    def rotation(dst, mode):
        if mode == 0: s(f"s_mov_b32 s{dst}, 0"); return
        if mode == 1: s(f"s_mul_i32 s{dst}, s3, 3\ns_add_u32 s{dst}, s{dst}, s{S_B}")
        if mode == 2: s(f"s_mov_b32 s{dst}, s{S_B}")
        if mode == 3: s(f"s_and_b32 s{dst}, s{S_B}, 1\ns_mul_i32 s{dst}, s{dst}, 3")
        if mode == 4: s(f"s_and_b32 s{dst}, s{S_B}, 3\ns_lshl_b32 s{dst}, s{dst}, 1")
        if mode == 5: s(f"s_xor_b32 s{dst}, s{S_B}, s3\ns_and_b32 s{dst}, s{dst}, 1\ns_mul_i32 s{dst}, s{dst}, 3")
        if mode == 6: s(f"s_xor_b32 s{dst}, s{S_B}, s3\ns_and_b32 s{dst}, s{dst}, 1\ns_mul_i32 s{dst}, s{dst}, 4")
        if mode == 7: s(f"s_lshl_b32 s{dst}, s3, 1\ns_add_u32 s{dst}, s{dst}, s{S_B}\ns_and_b32 s{dst}, s{dst}, 3\ns_lshl_b32 s{dst}, s{dst}, 1")
        s(f"s_cmp_ge_u32 s{dst}, 7\ns_cselect_b32 s{S_T0}, 7, 0\ns_sub_u32 s{dst}, s{dst}, s{S_T0}")
    rotation(S_QU, P["rot"]); rotation(S_OU, P["orot"])
    s(f"""
    s_mov_b32 s{S_OS}, s{S_OU}
    s_lshl_b32 s{S_T0}, s{S_B}, 3
    s_add_u32 s{S_T0}, s{S_T0}, s30
    s_lshl_b32 s{S_T1}, s{S_B}, 4
    s_add_u32 s{S_T1}, s{S_T1}, s{S_H}
    s_cmp_eq_u32 s{S_BR}, 0
    s_cselect_b32 s31, s{S_T0}, s{S_T1}
    s_lshl_b32 s31, s31, 19
    """)
    s(f"""
    v_lshrrev_b32 v3, 5, v2
    v_and_b32 v4, 31, v2
    v_lshlrev_b32 v{V_L16}, 4, v2
    v_lshrrev_b32 v5, 3, v2
    v_and_b32 v6, 7, v2
    v_lshrrev_b32 v7, 4, v2
    v_lshl_add_u32 v58, v1, 5, v5
    v_mul_u32_u24 v58, 896, v58
    v_xor_b32 v59, v6, v7
    v_lshl_add_u32 v{XD[0]}, v59, 4, v58
    v_xor_b32 v59, 4, v59
    v_lshl_add_u32 v{XD[1]}, v59, 4, v58
    v_add_u32 v{XD[2]}, {2*6144}, v{XD[0]}
    v_add_u32 v{XD[3]}, {3*6144}, v{XD[1]}
    v_add_u32 v{XD[1]}, 6144, v{XD[1]}
    """)
    s(f"""
    v_lshlrev_b32 v59, 1, v7
    v_xor_b32 v59, v59, v6
    v_lshl_add_u32 v{WD[0]}, v59, 4, v58
    v_add_u32 v{WD[1]}, 6144, v{WD[0]}
    v_add_u32 v{WD[2]}, {2*6144}, v{WD[0]}
    v_add_u32 v{WD[3]}, {3*6144}, v{WD[0]}
    """)
    s(f"""
    v_lshl_add_u32 v5, v1, 3, v3
    v_and_b32 v6, 1, v1
    v_lshl_add_u32 v6, v6, 2, v3
    v_lshlrev_b32 v6, 1, v6
    v_xor_b32 v6, v6, v4
    v_lshlrev_b32 v6, 4, v6
    v_xor_b32 v59, 64, v6
    v_lshl_add_u32 v{VD[0]}, v5, 9, v6
    v_lshl_add_u32 v{VD[1]}, v5, 9, v59
    v_lshl_add_u32 v{QD[0]}, v5, 13, v6
    v_lshl_add_u32 v{QD[1]}, v5, 13, v59
    v_add_u32 v{QD[2]}, {2*15360}, v{QD[0]}
    v_add_u32 v{QD[3]}, {3*15360}, v{QD[1]}
    v_add_u32 v{QD[1]}, 15360, v{QD[1]}
    """)
    s(f"""
    v_lshl_add_u32 v6, v1, 2, v3
    v_xor_b32 v6, v6, v4
    v_lshlrev_b32 v6, 4, v6
    v_xor_b32 v59, 32, v6
    v_lshl_add_u32 v{KD[0]}, v5, 9, v6
    v_lshl_add_u32 v{KD[1]}, v5, 9, v59
    """)
    s("s_waitcnt lgkmcnt(0)")
    s(f"""
    s_cmp_eq_u32 s{S_BR}, 0
    s_cselect_b32 s{S_X}, s4, s14
    s_cselect_b32 s{S_X+1}, s5, s15
    s_cselect_b32 s{S_WQ}, s10, s20
    s_cselect_b32 s{S_WQ+1}, s11, s21
    s_cselect_b32 s{S_K}, s6, s16
    s_cselect_b32 s{S_K+1}, s7, s17
    s_cselect_b32 s{S_V}, s8, s18
    s_cselect_b32 s{S_V+1}, s9, s19
    s_cselect_b32 s{S_WO}, s12, s22
    s_cselect_b32 s{S_WO+1}, s13, s23
    s_mul_i32 s{S_T0}, s{S_B}, 114688
    s_add_u32 s{S_X}, s{S_X}, s{S_T0}
    s_addc_u32 s{S_X+1}, s{S_X+1}, 0
    s_mov_b32 s{S_X+2}, 114688
    s_mov_b32 s{S_X+3}, 0x20000
    s_lshl_b32 s{S_T0}, s{S_H}, 9
    s_add_u32 s{S_WQ}, s{S_WQ}, s{S_T0}
    s_addc_u32 s{S_WQ+1}, s{S_WQ+1}, 0
    s_sub_u32 s{S_WQ+2}, {448*8192}, s{S_T0}
    s_mov_b32 s{S_WQ+3}, 0x20000
    """)

    def dma(tile, slot, regs, srd, soff, aux, pre=[], post=[], **meta):
        l = [I(f"buffer_load_dwordx4 v{regs[i]}, s[{srd}:{srd+3}], {soff} offen offset:{1024*i} {aux} lds".replace("  ", " "),
               tile=tile, slot=slot, **meta) for i in range(4)]
        return ([I(x) for x in pre] + [I(f"s_add_u32 m0, s{S_W4K}, {slot*16384}")], l, [I(x) for x in post])
    WQ_SLOT = [6, 7, 4, 2, 5, 3]
    nxt = lambda r: [f"s_add_u32 s{r}, s{r}, 1", f"s_cmp_eq_u32 s{r}, 7", f"s_cselect_b32 s{r}, 0, s{r}"]
    def dma_x(u): return dma(f"X{u}", 8 + (u & 1), XD, S_X, f"s{S_T0}", P["x_aux"], pre=[f"s_lshl_b32 s{S_T0}, s{S_QU}, 7"])
    def dma_wq(j):
        if j & 1 == 0: return dma(f"WQ{j}", WQ_SLOT[j % 6], QD, S_WQ, f"s{S_T1}", P["wq_aux"], pre=[f"s_lshl_b32 s{S_T1}, s{S_QU}, 19"])
        return dma(f"WQ{j}", WQ_SLOT[j % 6], QD, S_WQ, f"s{S_T1}", P["wq_aux"], pre=[f"s_add_u32 s{S_T1}, s{S_T1}, 0x40000"], post=nxt(S_QU))
    def dma_k(t): return dma(f"K{t}", t % 4, KD * 2, S_K, f"s{S_KOFF}", P["kv_aux"], post=[f"s_add_u32 s{S_KOFF}, s{S_KOFF}, {ADV}"] + ([f"s_and_b32 s{S_KOFF}, s{S_KOFF}, 0x7ffff"] if P["krot"] else []))
    def dma_v(t): return dma(f"V{t}", 4 + t % 4, VD * 2, S_V, f"s{S_VOFF}", P["kv_aux"], post=[f"s_add_u32 s{S_VOFF}, s{S_VOFF}, {ADV}"] + ([f"s_and_b32 s{S_VOFF}, s{S_VOFF}, 0x7ffff"] if P["krot"] else []))
    WO_SLOT = [8, 9, 0, 1, 2, 4, 3, 5, 6, 7, 8, 9, 0, 1]
    WOFF = list(range(4, 18)); SOFF = list(range(18, 24)) + [92]
    def dma_wo(j): return dma(f"WO{j}", WO_SLOT[j], WD, S_WO, f"s{WOFF[j]}", P["wo_aux"], unread_ok=True)
    def flat(d): return d[0] + d[1] + d[2]

    for d in (dma_x(0), dma_wq(0), dma_wq(1)):
        for i in flat(d): s.add(i)
    if P["wpf"]:
        s(f"""
        s_lshl_b32 s{S_T0}, s{S_B}, 2
        s_add_u32 s{S_T0}, s{S_T0}, s{S_WAVE}
        s_mul_i32 s{S_T0}, s{S_T0}, {12*8192}
        s_add_u32 s{S_T0}, s{S_T0}, {64*8192}
        v_min_u32 v59, 47, v2
        v_lshrrev_b32 v60, 2, v59
        v_and_b32 v59, 3, v59
        v_lshlrev_b32 v59, 7, v59
        v_lshl_add_u32 v59, v60, 13, v59
        buffer_load_dword v{V_CP+2}, v59, s[{S_WQ}:{S_WQ+3}], s{S_T0} offen
        """)
    if P["cpf"]:
        s(f"""
        s_getpc_b64 s[{S_PC}:{S_PC+1}]
        L_pc:
        s_lshl_b32 s{S_T0}, s{S_B}, 2
        s_add_u32 s{S_T0}, s{S_T0}, s{S_WAVE}
        s_lshl_b32 s{S_T0}, s{S_T0}, 11
        v_and_b32 v{V_CP}, 15, v2
        v_lshl_add_u32 v{V_CP}, v{V_CP}, 7, s{S_T0}
        v_min_u32 v{V_CP}, (L_codeend-L_pc-4), v{V_CP}
        """)
        s(f"global_load_dword v{V_CP+1}, v{V_CP}, s[{S_PC}:{S_PC+1}]")
    s(f"""
    s_add_u32 s{S_K}, s{S_K}, s31
    s_addc_u32 s{S_K+1}, s{S_K+1}, 0
    s_mov_b32 s{S_K+2}, 0x80000
    s_mov_b32 s{S_K+3}, 0x20000
    s_add_u32 s{S_V}, s{S_V}, s31
    s_addc_u32 s{S_V+1}, s{S_V+1}, 0
    s_mov_b32 s{S_V+2}, 0x80000
    s_mov_b32 s{S_V+3}, 0x20000
    s_mul_i32 s{S_T0}, s{S_H}, 229376
    s_add_u32 s{S_WO}, s{S_WO}, s{S_T0}
    s_addc_u32 s{S_WO+1}, s{S_WO+1}, 0
    s_mov_b32 s{S_WO+2}, 229376
    s_mov_b32 s{S_WO+3}, 0x20000
    s_mul_i32 s{S_T0}, s{S_G}, {PART_G}
    s_add_u32 s{S_T0}, s{S_T0}, {P['wsoff']}
    s_add_u32 s{S_P}, s{S_WS}, s{S_T0}
    s_addc_u32 s{S_P+1}, s{S_WS+1}, 0
    s_mov_b32 s{S_P+2}, {PART_G}
    s_mov_b32 s{S_P+3}, 0x20000
    s_mov_b32 s{S_OUT}, s24
    s_mov_b32 s{S_OUT+1}, s25
    s_mov_b32 s{S_OUT+2}, {8*128*896*2}
    s_mov_b32 s{S_OUT+3}, 0x20000
    s_mul_i32 s{S_PB}, s{S_H}, {PART_H}
    s_mul_i32 s{S_T0}, s{S_WAVE}, {PART_W}
    s_add_u32 s{S_PB}, s{S_PB}, s{S_T0}
    s_lshl_b32 s{S_T0}, s{S_G}, 12
    s_add_u32 s{S_T0}, s{S_T0}, {FLAG_OFF}
    s_add_u32 s{S_FL}, s{S_WS}, s{S_T0}
    s_addc_u32 s{S_FL+1}, s{S_WS+1}, 0
    s_bfe_u32 s{S_KOFF}, s31, {(1 << 16) | (19 + 3):#x}
    s_mul_i32 s{S_KOFF}, s{S_KOFF}, {0x40000 if P['krot'] else 0}
    s_mov_b32 s{S_VOFF}, s{S_KOFF}
    s_mov_b32 s{S_C}, {f2u(math.log2(math.e)/16.0):#x}
    s_mov_b32 s{S_C+1}, s{S_C}
    s_mov_b32 s{S_THR}, {f2u(P['thr']):#x}
    s_lshl_b32 s{S_G4}, s{S_G}, 4
    s_mov_b32 s{S_ONE}, 1
    s_mov_b32 s{S_LO}, 0x3f80
    s_mov_b32 s{S_HI}, 0x3f800000
    s_cmp_eq_u32 s{S_BR}, {P.get('blead', 0)}
    s_cselect_b32 s{S_BT}, -16, {P.get('buntil', 7) - 7}
    """)
    s(f"""
    v_and_b32 v58, 15, v2
    s_lshl_b32 s{S_T0}, s{S_H}, 8
    v_lshl_add_u32 v{V_FLG}, v4, 2, s{S_T0}
    s_lshl_b32 s{S_T0}, s{S_H}, 2
    v_lshl_add_u32 v{V_FLG2}, v58, 8, s{S_T0}
    v_mov_b32 v{V_POLL}, 0
    v_mov_b32 v{V_DBG}, s{S_G4}
    v_mov_b32 v{V_ONE}, 1
    """)
    s(f"""
    v_bfe_u32 v5, v2, 2, 2
    v_and_b32 v6, 3, v2
    v_lshl_add_u32 v59, v7, 3, v5
    v_lshlrev_b32 v59, 9, v59
    v_lshl_add_u32 v59, v6, 3, v59
    v_and_b32 v60, 1, v7
    v_lshl_add_u32 v60, v60, 2, v5
    """)
    for j in range(8):
        s(f"""
        v_xor_b32 v61, {j}, v60
        v_lshl_add_u32 v{TA0[j]}, v61, 5, v59
        v_add_u32 v{TA1[j]}, 0x10000, v{TA0[j]}
        """)
    s(f"""
    v_lshrrev_b32 v59, 1, v58
    v_xor_b32 v59, v59, v7
    v_lshlrev_b32 v60, 7, v58
    v_lshl_add_u32 v60, v1, 12, v60
    v_add_u32 v60, 0x20000, v60
    v_lshl_add_u32 v{XA[0]}, v59, 4, v60
    v_xor_b32 v{XA[1]}, 64, v{XA[0]}
    """)
    for d in (dma_x(1), dma_wq(2), dma_wq(3)):
        for i in flat(d): s.add(i)
    for u in range(7):
        s(f"""
        s_add_u32 s30, s{S_OU}, {u}
        s_sub_u32 s31, s30, 7
        s_min_u32 s30, s30, s31
        s_lshl_b32 s{WOFF[2*u]}, s30, 7
        s_add_u32 s{WOFF[2*u+1]}, s{WOFF[2*u]}, 114688
        s_lshl_b32 s30, s30, 12
        s_add_u32 s{SOFF[u]}, s30, s{S_PB}
        """)
    for st, (u0, n) in enumerate(((0, P["n1"]), (P["n1"], 7 - P["n1"]))):
        if n == 4: s(f"s_mov_b32 s3, s{S_H}")
        else: s(f"s_lshl_b32 s3, s{S_WAVE}, 2\ns_add_u32 s3, s3, s{S_H}\ns_and_b32 s3, s3, 15")
        s(f"""
        s_lshr_b32 s30, s3, 2
        s_add_u32 s30, s30, s{S_OU}
        s_add_u32 s30, s30, {u0}
        s_sub_u32 s31, s30, 7
        s_min_u32 s30, s30, s31
        s_lshl_b32 s31, s30, 2
        s_and_b32 s{S_T0}, s3, 3
        s_add_u32 s31, s31, s{S_T0}
        s_lshl_b32 s31, s31, 10
        s_mul_i32 s{S_RR[st]}, s{S_WAVE}, {PART_W}
        s_add_u32 s{S_RR[st]}, s{S_RR[st]}, s31
        s_lshl_b32 s31, s{S_B}, 2
        s_add_u32 s31, s31, s{S_WAVE}
        s_lshl_b32 s31, s31, 1
        s_bfe_u32 s{S_T0}, s3, 0x10001
        s_add_u32 s31, s31, s{S_T0}
        s_mul_i32 s31, s31, {16*1792}
        s_lshl_b32 s30, s30, 1
        s_and_b32 s{S_T0}, s3, 1
        s_add_u32 s30, s30, s{S_T0}
        s_lshl_b32 s30, s30, 6
        s_add_u32 s31, s31, s30
        s_mul_i32 s30, s{S_BR}, 896
        s_add_u32 s{S_RO[st]}, s31, s30
        s_cmp_lt_u32 s3, {4*n}
        s_cselect_b32 s{S_RA[st]}, 1, 0
        """)
    late = Stream()
    late(f"""
    v_lshrrev_b32 v59, 2, v58
    v_and_b32 v60, 3, v58
    v_lshl_add_u32 v59, v59, 3, v60
    v_lshlrev_b32 v59, 9, v59
    v_xor_b32 v60, v58, v7
    """)
    for k in range(4):
        late(f"v_xor_b32 v61, {4*k}, v60\nv_lshl_add_u32 v{KA[k]}, v61, 4, v59")
    late(f"""
    v_lshl_add_u32 v59, v7, 2, v5
    v_bfe_u32 v60, v59, 1, 2
    v_lshlrev_b32 v59, 7, v59
    v_lshl_add_u32 v59, v6, 3, v59
    """)
    for k in range(4):
        late(f"v_xor_b32 v61, {k}, v60\nv_lshl_add_u32 v{WA[0][k]}, v61, 5, v59")
    late(f"""
    v_mul_u32_u24 v59, 1792, v58
    v_lshl_add_u32 v{V_OUT}, v7, 3, v59
    """)

    PR = []; head = Pair()
    def pr(p):
        if p < 0: return head
        while len(PR) <= p: PR.append(Pair())
        return PR[p]
    npair = [0]
    def frag(p): return A_F + 4 * (p % NF)
    def add_pair(m0, m1):
        p = npair[0]; npair[0] += 1
        pr(p).m = [I(m0), I(m1)]
        return p
    def mf(d, a, b, c): return f"v_mfma_f32_16x16x32_bf16 {vr(d,4)}, {a}, {b}, {c}"
    def rd_at(p, bp, l, bulk=None):
        q = p - LA
        if bulk is not None and q <= bp: bulk.extend(l)
        else: pr(max(q, bp)).reads.extend(l)
    def tread(p, tile, slot, areg, off):
        f = frag(p)
        return [I(f"ds_read_b64_tr_b16 {ar(f,2)}, v{areg} offset:{off}", tile=tile, slot=slot),
                I(f"ds_read_b64_tr_b16 {ar(f+2,2)}, v{areg} offset:{off+2048}", tile=tile, slot=slot)]
    def barrier(bp, tiles):
        pr(bp - 1).vmtags.extend(tiles); pr(bp).sc0.insert(0, I("s_barrier"))
    def place_dma(ds, poss):
        q = 0
        for pre, loads, post in ds:
            for n, ld in enumerate(loads):
                p = poss[q]; q += 1
                if n == 0:
                    pr(p - 1).sc0.extend(pre)
                pr(p).mem.append(ld)
                if n == 3 and post:
                    if len(post) == 2: pr(p + 1).sc0.append(post[0]); pr(p + 2).sc0.append(post[1])
                    else: pr(p + 1).sc0.extend(post)
    def place(l, p0, p1, pace=True, win=8):
        fr = [max(0, pr(p).free()) for p in range(p0, p1 + 1)]
        F = sum(fr); C = sum(cost(i) for i in l); cum = 0; done = 0
        todo = list(range(len(l))); rec = []
        dep = lambda a, b: (a.wr & (b.rd | b.wr)) or (a.rd & b.wr)
        for n, p in enumerate(range(p0, p1 + 1)):
            cum += fr[n]
            while todo:
                if pace and F > C and done > C * cum / F: break
                pick = None
                for x, k in enumerate(todo[:win]):
                    if cost(l[k]) > pr(p).free(): continue
                    if any(dep(l[y], l[k]) for y in todo[:x]): continue
                    if any((o.wr & l[k].rd) for o in pr(p).ops): continue
                    if cost(l[k]) == 2 and len(pr(p).ops) >= 2: continue
                    pick = k; break
                if pick is None: break
                todo.remove(pick); pr(p).ops.append(l[pick]); done += cost(l[pick]); rec.append((n, pick))
        if todo:
            if P.get("verbose"): print("overflow", p0, p1, len(todo))
            for k in todo: pr(p1).ops.append(l[k]); rec.append((p1 - p0, k))
        return rec

    for j in range(14):
        u = j >> 1; slot = WQ_SLOT[j % 6]; ta = TA1 if slot >= 4 else TA0; base = (slot & 3) * 16384
        pb = npair[0]; bp = pb - LA
        bulk = None
        if j == 0:
            head.post += [I("@waitvm WQ0 X0"), I("s_barrier")]; bulk = head.post; bp = -1
        else: barrier(bp, [f"WQ{j}", f"X{u}"] + (["WQ13"] if P["bm"] and j == 12 else []))
        if P.get("qstamps") and j % 2 == 0: (head.post if j == 0 else pr(bp).post).extend(stamp_ins())
        if j & 1 == 0:
            for q in range(4):
                xr = I(f"ds_read_b128 {ar(A_X + 16*(u&1) + 4*q, 4)}, v{XA[q>>1]} offset:{(u&1)*16384 + (q&1)*2048}", tile=f"X{u}", slot=8 + (u & 1), private=True)
                if j == 0: head.post.append(xr)
                else: pr(bp + (q // 2 if P["bm"] and j == 12 else q)).reads.append(xr)
        for jj in range(16):
            p = npair[0]
            j2, blk = j, jj
            if P["bm"] and j >= 12:
                n = (j - 12) * 16 + jj; j2 = 12 + (n & 1); blk = n >> 1
            slot = WQ_SLOT[j2 % 6]; ta = TA1 if slot >= 4 else TA0; base = (slot & 3) * 16384
            rd_at(p, bp, tread(p, f"WQ{j2}", slot, ta[blk & 7], base + (blk >> 3) * 256), bulk)
            xb = A_X + 16 * (u & 1) + 8 * (j2 & 1)
            add_pair(*[mf(O0 + 8*blk + 4*qb, ar(frag(p), 4), ar(xb + 4*qb, 4), "0" if j == 0 else vr(O0 + 8*blk + 4*qb, 4)) for qb in range(2)])
        b0 = pb - LA
        if j & 1 == 0:
            ds = []
            if j + 4 <= 13: ds = [dma_wq(j + 4), dma_x(u + 2), dma_wq(j + 5)]
            elif j == 10: ds = [dma_k(0), dma_k(1), dma_v(0)]
            elif j == 12: ds = ([dma_k(2)] if P["PDK"] >= 2 else []) + ([dma_v(1)] if P["PDV"] >= 2 else []) + ([dma_k(3)] if P["PDK"] >= 3 else [])
            poss = [b0 + 2 + (n * 30) // 12 for n in range(12)]
            if j == 0: poss = [1 + (n * 26) // 12 for n in range(12)]
            place_dma(ds, poss)
        if j == 1:
            pr(pb).post += [I(f"s_cmp_lg_u32 s{S_WAVE}, 0"), I("s_cbranch_scc1 L_noclr"), I("s_mov_b32 exec_hi, 0"),
                            I(f"global_atomic_swap v{V_T1}, v{V_FLG}, v{V_POLL}, s[{S_FL}:{S_FL+1}] sc0", untracked=True),
                            I("s_mov_b64 exec, -1"), I("L_noclr:")]
        if j == 8:
            if P["ann"] == "s":
                pr(pb).post += [I(f"s_cmp_lg_u32 s{S_WAVE}, 0"), I("s_cbranch_scc1 L_noann"),
                                I(f"s_atomic_add s{S_ONE}, s[{S_DBG}:{S_DBG+1}], s{S_G4}"), I("L_noann:")]
            else:
                pr(pb).post += [I(f"s_cmp_lg_u32 s{S_WAVE}, 0"), I("s_cbranch_scc1 L_noann"), I("s_mov_b64 exec, 1"),
                                I(f"global_atomic_add v{V_DBG}, v{V_ONE}, s[{S_DBG}:{S_DBG+1}]", untracked=True), I("s_mov_b64 exec, -1"), I("L_noann:")]
    pq_end = npair[0]
    place(late.ins, 40, 100)

    def softmax_ops(t):
        S = SB[t & 1]; Pp = PB[t & 1]; l = []
        T = lambda e: TT[e & 7]
        for e in range(17):
            if e < 16: l.append(I(f"v_exp_f32 v{T(e)}, v{S+e}"))
            d = e - 1
            if d >= 0:
                lt = V_LT[d >> 3]
                if d & 7 == 1: l.append(I(f"v_add_f32 v{lt}, v{T(d-1)}, v{T(d)}"))
                elif d & 7 > 1: l.append(I(f"v_add_f32 v{lt}, v{lt}, v{T(d)}"))
                if d & 1: l.append(I(f"v_cvt_pk_bf16_f32 v{Pp+(d>>1)}, v{T(d-1)}, v{T(d)}"))
        return l
    def allmax(x, t):
        return [I(f"v_mov_b32 v{t}, v{x}"), I(f"v_permlane32_swap_b32 v{x}, v{t}"), I(f"v_max_f32 v{x}, v{x}, v{t}"),
                I(f"v_mov_b32 v{t}, v{x}"), I(f"v_permlane16_swap_b32 v{x}, v{t}"), I(f"v_max_f32 v{x}, v{x}, v{t}")]
    def rowmax(S, x):
        return [I(f"v_max3_f32 v{x}, v{S}, v{S+1}, v{S+2}"), I(f"v_max3_f32 v{x}, v{x}, v{S+3}, v{S+4}"),
                I(f"v_max3_f32 v{x}, v{x}, v{S+5}, v{S+6}"), I(f"v_max_f32 v{x}, v{x}, v{S+7}")]
    def inter(a, b):
        o = []
        for x, y in zip(a, b): o += [x, y]
        return o
    def qk(t, bp, bulk=None):
        slot = t % 4; S = SB[t & 1]
        for q in range(8):
            for kb in range(2):
                p = npair[0]
                rd_at(p, bp, [I(f"ds_read_b128 {ar(frag(p),4)}, v{KA[q&3]} offset:{slot*16384 + (q>>2)*256 + kb*2048}", tile=f"K{t}", slot=slot)], bulk)
                add_pair(*[mf(S + 8*qb + 4*kb, ar(frag(p), 4), ar(A_Q + 8*q + 4*qb, 4),
                              (("0" if t == 0 else vr(NM + 4*qb, 4)) if q == 0 else vr(S + 8*qb + 4*kb, 4))) for qb in range(2)])
    def pv(t, bp, bulk=None):
        slot = 4 + t % 4
        for jj in range(16):
            p = npair[0]
            rd_at(p, bp, tread(p, f"V{t}", slot, TA1[jj & 7], (t % 4) * 16384 + (jj >> 3) * 256), bulk)
            add_pair(*[mf(O0 + 8*jj + 4*qb, ar(frag(p), 4), vr(PB[t & 1] + 4*qb, 4), "0" if t == 0 else vr(O0 + 8*jj + 4*qb, 4)) for qb in range(2)])

    def qconv(q, pk=True):
        l = []
        for qb in range(2):
            X = O0 + 16*q + 4*qb; Y = X + 8
            if pk: l += [I(f"v_pk_mul_f32 {vr(r,2)}, {vr(r,2)}, s[{S_C}:{S_C+1}]") for r in (X, X + 2, Y, Y + 2)]
            else: l += [I(f"v_mul_f32 v{r}, s{S_C}, v{r}") for r in list(range(X, X + 4)) + list(range(Y, Y + 4))]
        for qb in range(2):
            X = O0 + 16*q + 4*qb; Y = X + 8
            l += [I(f"v_cvt_pk_bf16_f32 v{X}, v{X}, v{X+1}"), I(f"v_cvt_pk_bf16_f32 v{Y}, v{Y}, v{Y+1}"),
                  I(f"v_cvt_pk_bf16_f32 v{X+1}, v{X+2}, v{X+3}"), I(f"v_cvt_pk_bf16_f32 v{Y+1}, v{Y+2}, v{Y+3}")]
        for sw in ("32", "16"):
            for qb in range(2):
                X = O0 + 16*q + 4*qb; Y = X + 8
                l += [I(f"v_permlane{sw}_swap_b32 v{X}, v{Y}"), I(f"v_permlane{sw}_swap_b32 v{X+1}, v{Y+1}")]
        for qb in range(2):
            X = O0 + 16*q + 4*qb; Y = X + 8
            l += [I(f"v_accvgpr_write_b32 a{A_Q+8*q+4*qb+n}, v{r}") for n, r in enumerate((X, X + 1, Y, Y + 1))]
        return l
    barrier(pq_end - LA, ["K0"])
    p0 = npair[0]
    qk(0, pq_end - LA)
    if P["ewo"]: place_dma([dma_wo(0), dma_wo(1)], [p0 + 1 + 2 * n for n in range(8)])
    place(qconv(0, False), pq_end - (26 if P["bm"] else 12), pq_end - 1, pace=False)
    pr(pq_end - 1).post += stamp_ins()
    for q in range(1, 8): pr(pq_end - 1).post += qconv(q)[:8]
    for q in range(1, 8):
        l = qconv(q)[8:]; h = len(l) // 2
        pr(p0 + 2*q - 2).ops += l[:h]; pr(p0 + 2*q - 1).ops += l[h:]
    pz = npair[0] - 1
    init = inter(rowmax(SB[0], V_T0) + allmax(V_T0, TT[0]), rowmax(SB[0] + 8, V_T1) + allmax(V_T1, TT[1]))
    for qb, x in enumerate((V_T0, V_T1)):
        init += [I(f"v_sub_f32 v{NM+4*qb+n}, 0, v{x}") for n in range(4)]
    for qb, x in enumerate((V_T0, V_T1)):
        init += [I(f"v_sub_f32 v{SB[0]+8*qb+n}, v{SB[0]+8*qb+n}, v{x}") for n in range(8)]
    init += [I(f"v_mov_b32 v{V_L[0]}, 0"), I(f"v_mov_b32 v{V_L[1]}, 0")]
    bulk0 = []
    pr(pz).post += [I("@waitvm K1 V0"), I("s_barrier"), I("@bulk0")] + init + stamp_ins()
    wa_late = [I(f"v_add_u32 v{WA[w][k]}, {0x10000*w}, v{WA[0][k]}") for w in (1, 2) for k in range(4)]

    stubs = []; step_start = []
    bp = pz
    for t in range(32):
        ps = npair[0]; step_start.append(ps)
        inloop = 1 <= t <= 28
        lab = f"{t%4}" if inloop else f"p{t}"
        if t <= 4 or t > 28: stubs.append((lab, t & 1))
        chk = [I(f"v_max_f32 v{V_T0}, v{V_LT[0]}, v{V_LT[1]}"), I(f"v_cmp_nge_f32 vcc, s{S_THR}, v{V_T0}")]
        br = [I(f"s_cbranch_vccnz L_fix{lab}"), I(f"L_ret{lab}:")]
        acc = [I(f"v_add_f32 v{V_L[qb]}, v{V_L[qb]}, v{V_LT[qb]}") for qb in range(2)]
        bulk31 = []
        if t < 31:
            qk(t + 1, bp, bulk0 if t == 0 else None)
            pp = npair[0]
            pv(t, bp)
        else:
            pp = npair[0]
            pv(t, bp, bulk31)
            pr(ps - 1).post += chk + br + [I("@waitvm V31"), I("s_barrier")] + bulk31
        pe = npair[0]
        nb = pe - LA
        if t < 30: barrier(nb, [f"K{t+2}", f"V{t+1}"])
        if P.get("bthr") is not None and inloop:
            pr(nb - 1).sc0.append(I(f"s_cmp_lt_i32 s{S_CNT}, s{S_BT}"))
            pr(nb - 1).sc1.extend([I(f"s_cbranch_scc0 L_nt{lab}"), I(f"s_waitcnt vmcnt({P['bthr']})", blind=True), I(f"L_nt{lab}:")])
        ds = []
        tv = t + P["PDV"]; tk = t + 1 + P["PDK"]
        if tv <= 31: ds.append(dma_v(tv))
        if tk <= 31 or inloop: ds.append(dma_k(tk))
        if P["PDK"] <= P["PDV"] and len(ds) == 2: ds = ds[::-1]
        plan = {29: [2], 30: [3, 4, 5], 31: [6]} if P["ewo"] else {29: [0], 30: [1, 2], 31: [3]}
        ds += [dma_wo(x) for x in plan.get(t, [])]
        dsp = P["dsp"] if len(ds) <= 2 else 2
        late = P.get("late", 0)
        if late and t <= 29:
            early = [ps + 2 * late - LA + 3 + dsp * n for n in range(8 - late)]
            assert early[-1] < nb - 1
            poss = early + [nb + 1 + 2 * n for n in range(late)]
        elif late:
            poss = [ps + 2 * late - LA + 3 + 2 * n for n in range(12)] if t == 30 else [ps + 1 + 2 * n for n in range(12)]
        else: poss = [ps + 1 + dsp * n for n in range(12)]
        place_dma(ds, poss)
        if inloop and t % 4 == 0:
            pr(pe - 1).sc0.append(I(f"s_add_u32 s{S_CNT}, s{S_CNT}, 1"))
            pr(pe - 1).post.append(I("s_cbranch_scc0 L_loop"))
        if P.get("lstamps"):
            pr(ps + 2).post += [I("s_waitcnt lgkmcnt(0)", blind=True), I(f"s_memrealtime s[{S_ST}:{S_ST+1}]"), I(f"s_memtime s[{S_ST+2}:{S_ST+3}]"),
                I("v_mov_b32_dpp v70, v70 wave_shr:1 row_mask:0xf bank_mask:0xf"), I("v_mov_b32_dpp v71, v71 wave_shr:1 row_mask:0xf bank_mask:0xf"),
                I("s_waitcnt lgkmcnt(0)", blind=True), I(f"v_writelane_b32 v70, s{S_ST}, 0"), I(f"v_writelane_b32 v71, s{S_ST+2}, 0")]
        if t == 0: pr(pe - 2).sc0.append(I(f"s_mov_b32 s{S_CNT}, -7"))
        if P["cpf"] >= 2 and inloop and t % 4 == 1:
            pr(pp + 5).mem.append(I(f"global_load_dword v{V_CP+1}, v{V_CP}, s[{S_PC}:{S_PC+1}]", nodep=True))
        yield_info = (t, ps, pp, pe, chk, br, acc)
        step_start[-1] = yield_info
        bp = nb if t < 30 else pe - 1
    pm_end = npair[0]

    ACC = [SB[0], O0 + 64]
    otile = []
    for j in range(14):
        u = j >> 1; kh = j & 1; slot = WO_SLOT[j]; wa = WA[slot >> 2]; base = (slot & 3) * 16384
        pb = npair[0]; bp = pb - LA; otile.append(pb)
        if P["fewb"]:
            cover = {0: range(0, 6), 3: [], 6: range(6, 9), 9: range(9, 14)}
            if j in cover: barrier(bp, [f"WO{x}" for x in cover[j]])
        else: barrier(bp, [f"WO{j}"])
        for q in range(4):
            for jn in range(4):
                p = npair[0]
                rd_at(p, bp, tread(p, f"WO{j}", slot, wa[jn], base + q * 4096))
                a = ACC[u & 1] + 4 * jn
                add_pair(*[mf(a + 16*qb, ar(frag(p), 4), vr(O0 + 8*(4*kh + q) + 4*qb, 4), "0" if (kh == 0 and q == 0) else vr(a + 16*qb, 4)) for qb in range(2)])
        if P["ewo"]:
            ds = [j + 7] if j <= 6 else []
            if P["fewb"]: ds = {0: [7], 1: [8], 3: [9], 4: [10], 5: [11], 6: [12], 7: [13]}.get(j, [])
            place_dma([dma_wo(x) for x in ds], [bp + 1 + 4 * n for n in range(4)])
        else:
            ds = {0: [4, 5], 1: [6, 7], 2: [8, 9], 3: [10, 11], 4: [12], 5: [13]}.get(j, [])
            place_dma([dma_wo(x) for x in ds], [bp + 1 + 2 * n for n in range(8)])

    for (t, ps, pp, pe, chk, br, acc) in step_start:
        if t < 31: pr(pp - 1).sc0.extend(br)
        place(acc, pp, pp + 1, pace=False)
    w0 = step_start[9][2] + P["sm_start"]
    rec = place(softmax_ops(10) + step_start[10][4], w0, step_start[10][2] - 2)
    for t in range(1, 31):
        if t == 10: continue
        l = softmax_ops(t) + step_start[t][4]
        for n, k in rec: pr(step_start[t-1][2] + P["sm_start"] + n).ops.append(l[k])
    l = softmax_ops(0) + step_start[0][4]
    nrel = step_start[1][1] - (step_start[0][2] + P["sm_start"])
    for n, k in rec:
        if n < nrel: pr(pz).post.append(l[k])
        else: pr(step_start[0][1] + n - nrel).ops.append(l[k])
    place(softmax_ops(31), step_start[30][2] + P["sm_start"], step_start[30][3] - 1, pace=False)
    place(wa_late, step_start[0][1], step_start[0][3] - 1, pace=False)
    pr(step_start[29][2]).mem.append(I(f"global_load_dword v{V_POLL}, v{V_DBG}, s[{S_DBG}:{S_DBG+1}] sc1", tag="HS"))
    def allsum(x, t):
        return [I(f"v_mov_b32 v{t}, v{x}"), I(f"v_permlane32_swap_b32 v{x}, v{t}"), I(f"v_add_f32 v{x}, v{x}, v{t}"),
                I(f"v_mov_b32 v{t}, v{x}"), I(f"v_permlane16_swap_b32 v{x}, v{t}"), I(f"v_add_f32 v{x}, v{x}, v{t}")]
    lsum = inter(allsum(V_L[0], V_T0), allsum(V_L[1], V_T1)) + [I(f"v_rcp_f32 v{V_RI[qb]}, v{V_L[qb]}") for qb in range(2)]
    def oconv(q):
        l = []
        for qb in range(2):
            X = O0 + 16*q + 4*qb; Y = X + 8; D = O0 + 8*q + 4*qb
            l.append([(D, X), (D + 1, X + 2), (D + 2, Y), (D + 3, Y + 2)])
        o = l[0] + l[1]
        if q == 0:
            pass
        return [I(f"v_cvt_pk_bf16_f32 v{d}, v{x}, v{x+1}") for d, x in o]
    place(oconv(0) + oconv(1), pm_end - 10, pm_end - 1)
    pr(pm_end - 1).post += stamp_ins()
    for q in range(2, 8):
        place(oconv(q), pm_end + 4 * (q - 2), pm_end + 4 * (q - 2) + 3)
    place(lsum, pm_end + 24, pm_end + 33)
    STG = [PB[0], PB[1]]
    def finish(u, pk=False):
        l = []
        for qb in range(2):
            a = ACC[u & 1] + 16 * qb; st = STG[qb]
            for q in range(8):
                if pk: l.append(I(f"v_pk_mul_f32 {vr(a+2*q,2)}, {vr(a+2*q,2)}, {vr(V_RI[0],2)} op_sel:[0,{qb}] op_sel_hi:[1,{qb}]"))
                else:
                    l.append(I(f"v_mul_f32 v{a+2*q}, v{V_RI[qb]}, v{a+2*q}"))
                    l.append(I(f"v_mul_f32 v{a+2*q+1}, v{V_RI[qb]}, v{a+2*q+1}"))
                l.append(I(f"v_cvt_pk_bf16_f32 v{st+q}, v{a+2*q}, v{a+2*q+1}"))
                if q & 3 == 3 and not P.get("nostore"):
                    l.append(I(f"buffer_store_dwordx4 {vr(st+q-3,4)}, v{V_L16}, s[{S_P}:{S_P+3}], s{SOFF[u]} offen offset:{qb*2048+(q>>2)*1024} {P['st_aux']}", tag=f"PST{u}"))
        return l
    bp = otile[0] + 16 * P["sig"] - LA
    barrier(bp, [f"PST{P['n1']-1}"])
    sig = Stream()
    sig(f"""
    s_cmp_lg_u32 s{S_WAVE}, 0
    s_cbranch_scc1 L_nosig1
    v_readfirstlane_b32 s{S_T0}, v{V_POLL}
    s_cmp_lt_u32 s{S_T0}, 16
    s_cbranch_scc1 L_hs
    L_hsok:
    s_mov_b64 exec, 0xffff
    """)
    sig(f"global_store_dword v{V_FLG2}, v{V_ONE}, s[{S_FL}:{S_FL+1}] sc1", untracked=True)
    sig("s_mov_b64 exec, -1\nL_nosig1:")
    pr(bp).post += sig.ins
    if P.get("ostamps"):
        for u in range(1, 7): pr(otile[2 * u] - 1).post += stamp_ins()
    for u in range(1, 7):
        pb = otile[2 * u]
        place(finish(u - 1), pb + (2 if u == 1 else 1), pb + 31, pace=False)
    pr(npair[0] - 1).post += [I("@stop")] + finish(6, True)

    def gap_order(mem, ops):
        first = list(mem); rest = []
        for i in ops:
            if i.kind == "vmem" and not any(x.wr & i.rd for x in rest): first.append(i)
            else: rest.append(i)
        return first + rest
    def emit_list(l):
        for i in l:
            if i.kind == "pseudo" and i.op == "@bulk0":
                for x in bulk0: s.add(x)
            else: s.add(i)
    emit_list(head.sc0 + head.post)
    starts = {x[1]: x[0] for x in step_start}
    worst = 0
    for p, q in enumerate(PR):
        if p in starts and starts[p] % 4 == 1: s.add(I(f"@block {starts[p]//4}"))
        mem = q.reads + q.mem
        best = None
        e0 = max(0, sum(cost(x) for x in q.sc0) - 1); e1 = sum(cost(x) for x in q.sc1)
        for r0 in range(len(mem), -1, -1):
            for k in range(len(q.ops) + 1):
                c0 = e0 + r0 + sum(cost(x) for x in q.ops[:k]); c1 = e1 + len(mem) - r0 + sum(cost(x) for x in q.ops[k:])
                sc_ = (max(c0, 2) + max(c1, 2), max(c0, c1), -r0)
                if best is None or sc_ < best[0]: best = (sc_, r0, k)
        _, r0, k = best
        worst += best[0][0] - 4
        emit_list(q.pre)
        s.add(q.m[0]); emit_list(q.sc0); emit_list(gap_order(mem[:r0], q.ops[:k]))
        s.add(q.m[1]); s.add(I("@waitnext " + " ".join(q.vmtags))); emit_list(q.sc1); emit_list(gap_order(mem[r0:], q.ops[k:]))
        emit_list(q.post)
    if P.get("verbose"): print("overfull slots:", worst)

    poll = f"global_load_dword v{V_EP}, v{V_FLG}, s[{S_FL}:{S_FL+1}] sc1"
    s(poll)
    for i in stamp_ins(): s.add(i)
    s("s_waitcnt vmcnt(0)\ns_barrier")
    for i in stamp_ins(): s.add(i)
    s(f"""
    s_cmp_lg_u32 s{S_WAVE}, 0
    s_cbranch_scc1 L_nosig2
    s_mov_b64 exec, 0xffff
    """)
    s(f"global_store_dword v{V_FLG2}, v{V_ONE}, s[{S_FL}:{S_FL+1}] offset:64 sc1", untracked=True)
    s(f"s_mov_b64 exec, -1\nL_nosig2:\ns_mov_b32 s{S_CNT}, 0")
    tailsubs = Stream()
    tailsubs(f"""
    L_hs:
    s_mov_b32 s{S_CNT}, 0
    L_hs2:
    s_sleep 8
    global_load_dword v{V_POLL}, v{V_DBG}, s[{S_DBG}:{S_DBG+1}] sc1
    s_waitcnt vmcnt(0)
    v_readfirstlane_b32 s{S_T0}, v{V_POLL}
    s_add_u32 s{S_CNT}, s{S_CNT}, 1
    s_cmp_ge_u32 s{S_CNT}, 0x40000
    s_cbranch_scc1 L_hsok
    s_cmp_lt_u32 s{S_T0}, 16
    s_cbranch_scc1 L_hs2
    s_branch L_hsok
    """)
    def waitflags(st):
        mask = 0xffff << (16 * st)
        s(f"""
        L_w{st}:
        v_cmp_ne_u32 vcc, 1, v{V_EP}
        s_and_b32 s{S_T0}, vcc_lo, {mask:#x}
        s_cbranch_scc0 L_ok{st}
        s_add_u32 s{S_CNT}, s{S_CNT}, 1
        s_cmp_ge_u32 s{S_CNT}, 0x40000
        s_cbranch_scc1 L_ok{st}
        s_sleep {P['sleep']}
        """)
        s(poll, untracked=True)
        s(f"s_waitcnt vmcnt(0)", blind=True)
        s(f"s_branch L_w{st}\nL_ok{st}:")
    def loads(st):
        for h in range(16):
            s(f"buffer_load_dwordx4 {vr(O0+64*st+4*h,4)}, v{V_L16}, s[{S_P}:{S_P+3}], s{S_RR[st]} offen {P['ld_aux']}", tag=f"R{st}_{h}")
            if h < 15: s(f"s_add_u32 s{S_RR[st]}, s{S_RR[st]}, {PART_H}")
    def accum(st, h0, h1):
        A0 = SB[st]
        for h in range(h0, h1):
            for q in range(4):
                r = O0 + 64 * st + 4 * h + q
                for z, k in enumerate((S_LO, S_HI)):
                    s(f"v_dot2_f32_bf16 v{A0+2*q+z}, v{r}, s{k}, " + ("0" if h == 0 else f"v{A0+2*q+z}"))
    def final(st):
        A0 = SB[st]
        for q in range(4): s(f"v_cvt_pk_bf16_f32 v{PB[st]+q}, v{A0+2*q}, v{A0+2*q+1}")
        for jn in range(2):
            s(f"buffer_store_dwordx2 {vr(PB[st]+2*jn,2)}, v{V_OUT}, s[{S_OUT}:{S_OUT+3}], s{S_RO[st]} offen offset:{32*jn}")
    s(f"s_cmp_eq_u32 s{S_RA[0]}, 0\ns_cbranch_scc1 L_st2")
    waitflags(0)
    loads(0)
    accum(0, 0, 16 - P["pw"])
    s(poll)
    accum(0, 16 - P["pw"], 16)
    final(0)
    s("s_waitcnt vmcnt(2)")
    s("L_st2:")
    for i in stamp_ins(): s.add(i)
    s(f"s_cmp_eq_u32 s{S_RA[1]}, 0\ns_cbranch_scc1 L_done")
    waitflags(1)
    loads(1)
    accum(1, 0, 16)
    final(1)
    s("L_done:")
    if P.get("probe") is not None:
        s("s_waitcnt vmcnt(0)\ns_barrier")
        for i in stamp_ins(): s.add(i)
        s(f"""
        L_spin:
        s_sleep 4
        s_memrealtime s[{S_ST+2}:{S_ST+3}]
        s_waitcnt lgkmcnt(0)
        s_sub_u32 s{S_T0}, s{S_ST+2}, s{S_ST}
        s_cmp_lt_u32 s{S_T0}, 10000
        s_cbranch_scc1 L_spin
        """)
    if P["stamps"]:
        s("s_waitcnt vmcnt(0)\ns_barrier")
        for i in stamp_ins(): s.add(i)
        s(f"""
        s_lshl_b32 s3, s2, 7
        v_lshrrev_b32 v59, 2, v{V_L16}
        v_add_u32 v59, s3, v59
        s_cmp_lg_u32 s{S_WAVE}, 0
        s_cbranch_scc1 L_end
        s_mov_b32 exec_hi, 0
        global_store_dword v59, v{V_ST}, s[{S_WS}:{S_WS+1}]
        v_add_u32 v59, 0x10000, v59
        global_store_dword v59, v70, s[{S_WS}:{S_WS+1}]
        v_add_u32 v59, 0x10000, v59
        global_store_dword v59, v71, s[{S_WS}:{S_WS+1}]
        """)
    s("L_end:\ns_endpgm")

    ins = resolve(s.ins, pair_waits=False, verbose=P.get("verbose"))
    marks = [k for k, i in enumerate(ins) if i.kind == "pseudo" and i.op == "@block"]
    assert len(marks) == 8
    blocks = [text_of(ins[marks[b]:marks[b+1]]) for b in range(7)]
    for b in range(1, 7):
        if blocks[b] != blocks[0]:
            import difflib
            print("".join(list(difflib.unified_diff(blocks[0].splitlines(1), blocks[b].splitlines(1), n=1))[:60]))
            raise SystemExit(f"block {b} differs from block 0")
    body = text_of(ins[:marks[0]]) + ".p2align 3\nL_loop:\n" + blocks[0] + text_of(ins[marks[7]:])

    r = Stream()
    for lab, par in stubs:
        r(f"L_fix{lab}:\ns_call_b64 s[{S_RET}:{S_RET+1}], L_rescale{par}\ns_branch L_ret{lab}")
    for par in range(2):
        r(f"L_rescale{par}:\ns_nop 15\n@fence")
        S = SB[par]; S2 = SB[1 - par]
        for qb, x in enumerate((V_T0, V_T1)):
            for i in rowmax(S + 8*qb, x) + allmax(x, TT[0]): r.add(i)
            r(f"v_max_f32 v{x}, 0, v{x}\nv_exp_f32 v{TT[1]}, -v{x}")
            for n in range(4): r(f"v_sub_f32 v{NM+4*qb+n}, v{NM+4*qb+n}, v{x}")
            for n in range(8): r(f"v_sub_f32 v{S+8*qb+n}, v{S+8*qb+n}, v{x}\nv_sub_f32 v{S2+8*qb+n}, v{S2+8*qb+n}, v{x}")
            r(f"v_mul_f32 v{V_L[qb]}, v{V_L[qb]}, v{TT[1]}")
            for jj in range(16):
                for n in range(4): r(f"v_mul_f32 v{O0+8*jj+4*qb+n}, v{TT[1]}, v{O0+8*jj+4*qb+n}")
        for i in softmax_ops(par): r.add(i)
        r(f"s_nop 3\ns_setpc_b64 s[{S_RET}:{S_RET+1}]")
    body += text_of(resolve(tailsubs.ins)) + text_of(resolve(r.ins)) + "L_codeend:\n"
    return whole_file(["; @launch grid=(256,1,1) block=(256,1,1) lds=163840"], [kernel_block(KN, body, 512, 102, 256)])

if __name__ == "__main__":
    out = sys.argv[1]
    kw = {}
    for a in sys.argv[2:]:
        k, v = a.split("=", 1)
        try: v = eval(v)
        except Exception: pass
        kw[k] = v
    open(out, "w").write(build(**kw))
```

```python
import sys, math, struct
from asmlib import *
from stream import *

def f2u(x): return struct.unpack("<I", struct.pack("<f", x))[0]

DEF = dict(LA=4, PDK=2, PDV=2, late=2, kv_aux="nt", wq_aux="", wpf=0, prog=0, krot=1, kv10=3, kv12=3, bal=1, x1e=0, out_aux="", fast=0, fewb=1, ewo=1, bm=1, wo_aux="", x_aux="", stamps=False,
           st_aux="sc1", ld_aux="sc1", rot=4, orot=2, n1=4, sig=12, pw=4, wsoff=0x1000000, thr=4096.0, early_k=10, sleep=2, dsp=2,
           sm_start=2, ann="s", cpf=1)

O0 = 128
SB = [96, 112]
PB = [80, 88]
NM = 72
TT = list(range(0, 8))
V_L = [64, 65]; V_LT = [66, 67]; V_T0, V_T1 = 62, 63; V_RI = [60, 61]
KA = list(range(8, 12))
TA1 = list(range(12, 20))
TA0 = list(range(20, 28))
XA = [28, 29]
KD = [30, 31]; VD = [32, 33]; QD = list(range(34, 38)); XD = list(range(38, 42)); WD = list(range(42, 46))
WA = [list(range(46, 50)), list(range(20, 24)), list(range(24, 28))]
V_L16 = 50; V_OUT = 51
V_FLG = 52; V_FLG2 = 53; V_ONE = 54; V_POLL = 55; V_DBG = 56; V_ST = 57; V_CP = 68; V_EP = 59
A_Q = 0; A_F = 64; NF = 16; A_X = 128

S_X, S_K, S_V, S_WQ, S_WO, S_P, S_OUT = 32, 36, 40, 44, 48, 52, 56
S_DBG = 26; S_WS = 28
S_W4K, S_WAVE, S_BR, S_B, S_H, S_G = 60, 61, 62, 63, 64, 65
S_KOFF, S_VOFF, S_QU, S_T0, S_T1, S_THR, S_CNT, S_OU, S_OS, S_PB = 66, 67, 68, 69, 70, 72, 73, 74, 75, 76
S_RET = 78; S_FL = 80; S_C = 82
S_ST = 84; S_G4 = 88; S_ONE = 89; S_PC = 90; S_BT = 93; S_RR = [94, 95]; S_RO = [96, 97]; S_RA = [98, 99]; S_LO = 100; S_HI = 101

PART_W = 28672; PART_H = 4 * PART_W; PART_G = 16 * PART_H
FLAG_OFF = 0x100000

def vr(a, n): return f"v[{a}:{a+n-1}]"
def ar(a, n): return f"a[{a}:{a+n-1}]"
def cost(i):
    if i.kind == "trans" or i.op.startswith("v_permlane"): return 2
    if i.kind in ("label", "pseudo"): return 0
    return 1

class Pair:
    def __init__(self):
        self.m = []; self.reads = []; self.mem = []; self.ops = []; self.sc0 = []; self.sc1 = []
        self.pre = []; self.post = []; self.vmtags = []; self.drain = []
    def free(self):
        return 4 - len(self.reads) - len(self.mem) - sum(cost(i) for i in self.ops) - max(0, len(self.sc0) - 1) - sum(cost(i) for i in self.sc1)

def build(**kw):
    P = dict(DEF); P.update(kw)
    LA = P["LA"]
    ADV = "0" if P.get("noadv") else "0x4000"
    s = Stream()
    nstamp = [0]
    def stamp_ins():
        if P.get("probe") is not None:
            k = nstamp[0]; nstamp[0] += 1
            if k != P["probe"]: return []
            return [I("s_waitcnt lgkmcnt(0)", blind=True), I(f"s_memrealtime s[{S_ST}:{S_ST+1}]"), I("s_waitcnt lgkmcnt(0)", blind=True)]
        if not P["stamps"]: return []
        k = nstamp[0]; nstamp[0] += 1
        assert k < 16
        return [I("s_waitcnt lgkmcnt(0)", blind=True), I(f"s_memrealtime s[{S_ST}:{S_ST+1}]"), I(f"s_memtime s[{S_ST+2}:{S_ST+3}]"),
                I("s_waitcnt lgkmcnt(0)", blind=True), I(f"v_writelane_b32 v{V_ST}, s{S_ST}, {k}"), I(f"v_writelane_b32 v{V_ST}, s{S_ST+2}, {16+k}")]

    s("s_cmp_ge_u32 s2, 256\ns_cbranch_scc1 L_end")
    for i in stamp_ins(): s.add(i)
    s(f"""
    s_load_dwordx16 s[4:19], s[0:1], 0
    s_load_dwordx8 s[20:27], s[0:1], 64
    s_load_dwordx2 s[28:29], s[0:1], 96
    v_lshrrev_b32 v1, 6, v0
    v_and_b32 v2, 63, v0
    s_and_b32 s30, s2, 7
    v_readfirstlane_b32 s{S_WAVE}, v1
    s_lshr_b32 s31, s2, 3
    s_lshr_b32 s{S_BR}, s31, 4
    s_bfe_u32 s3, s31, 0x10003
    s_and_b32 s{S_B}, s31, 7
    s_lshl_b32 s{S_H}, s30, 1
    s_add_u32 s{S_H}, s{S_H}, s3
    s_lshl_b32 s{S_G}, s{S_BR}, 3
    s_add_u32 s{S_G}, s{S_G}, s{S_B}
    s_lshl_b32 s{S_W4K}, s{S_WAVE}, 12
    """)
    def rotation(dst, mode):
        if mode == 0: s(f"s_mov_b32 s{dst}, 0"); return
        if mode == 1: s(f"s_mul_i32 s{dst}, s3, 3\ns_add_u32 s{dst}, s{dst}, s{S_B}")
        if mode == 2: s(f"s_mov_b32 s{dst}, s{S_B}")
        if mode == 3: s(f"s_and_b32 s{dst}, s{S_B}, 1\ns_mul_i32 s{dst}, s{dst}, 3")
        if mode == 4: s(f"s_and_b32 s{dst}, s{S_B}, 3\ns_lshl_b32 s{dst}, s{dst}, 1")
        if mode == 5: s(f"s_xor_b32 s{dst}, s{S_B}, s3\ns_and_b32 s{dst}, s{dst}, 1\ns_mul_i32 s{dst}, s{dst}, 3")
        if mode == 6: s(f"s_xor_b32 s{dst}, s{S_B}, s3\ns_and_b32 s{dst}, s{dst}, 1\ns_mul_i32 s{dst}, s{dst}, 4")
        if mode == 7: s(f"s_lshl_b32 s{dst}, s3, 1\ns_add_u32 s{dst}, s{dst}, s{S_B}\ns_and_b32 s{dst}, s{dst}, 3\ns_lshl_b32 s{dst}, s{dst}, 1")
        s(f"s_cmp_ge_u32 s{dst}, 7\ns_cselect_b32 s{S_T0}, 7, 0\ns_sub_u32 s{dst}, s{dst}, s{S_T0}")
    rotation(S_QU, P["rot"]); rotation(S_OU, P["orot"])
    s(f"""
    s_mov_b32 s{S_OS}, s{S_OU}
    s_lshl_b32 s{S_T0}, s{S_B}, 3
    s_add_u32 s{S_T0}, s{S_T0}, s30
    s_lshl_b32 s{S_T1}, s{S_B}, 4
    s_add_u32 s{S_T1}, s{S_T1}, s{S_H}
    s_cmp_eq_u32 s{S_BR}, 0
    s_cselect_b32 s31, s{S_T0}, s{S_T1}
    s_lshl_b32 s31, s31, 19
    """)
    s(f"""
    v_lshrrev_b32 v3, 5, v2
    v_and_b32 v4, 31, v2
    v_lshlrev_b32 v{V_L16}, 4, v2
    v_lshrrev_b32 v5, 3, v2
    v_and_b32 v6, 7, v2
    v_lshrrev_b32 v7, 4, v2
    v_lshl_add_u32 v58, v1, 5, v5
    v_mul_u32_u24 v58, 896, v58
    v_xor_b32 v59, v6, v7
    v_lshl_add_u32 v{XD[0]}, v59, 4, v58
    v_xor_b32 v59, 4, v59
    v_lshl_add_u32 v{XD[1]}, v59, 4, v58
    v_add_u32 v{XD[2]}, {2*6144}, v{XD[0]}
    v_add_u32 v{XD[3]}, {3*6144}, v{XD[1]}
    v_add_u32 v{XD[1]}, 6144, v{XD[1]}
    """)
    s(f"""
    v_lshlrev_b32 v59, 1, v7
    v_xor_b32 v59, v59, v6
    v_lshl_add_u32 v{WD[0]}, v59, 4, v58
    v_add_u32 v{WD[1]}, 6144, v{WD[0]}
    v_add_u32 v{WD[2]}, {2*6144}, v{WD[0]}
    v_add_u32 v{WD[3]}, {3*6144}, v{WD[0]}
    """)
    s(f"""
    v_lshl_add_u32 v5, v1, 3, v3
    v_and_b32 v6, 1, v1
    v_lshl_add_u32 v6, v6, 2, v3
    v_lshlrev_b32 v6, 1, v6
    v_xor_b32 v6, v6, v4
    v_lshlrev_b32 v6, 4, v6
    v_xor_b32 v59, 64, v6
    v_lshl_add_u32 v{VD[0]}, v5, 9, v6
    v_lshl_add_u32 v{VD[1]}, v5, 9, v59
    v_lshl_add_u32 v{QD[0]}, v5, 13, v6
    v_lshl_add_u32 v{QD[1]}, v5, 13, v59
    v_add_u32 v{QD[2]}, {2*15360}, v{QD[0]}
    v_add_u32 v{QD[3]}, {3*15360}, v{QD[1]}
    v_add_u32 v{QD[1]}, 15360, v{QD[1]}
    """)
    s(f"""
    v_lshl_add_u32 v6, v1, 2, v3
    v_xor_b32 v6, v6, v4
    v_lshlrev_b32 v6, 4, v6
    v_xor_b32 v59, 32, v6
    v_lshl_add_u32 v{KD[0]}, v5, 9, v6
    v_lshl_add_u32 v{KD[1]}, v5, 9, v59
    """)
    s("s_waitcnt lgkmcnt(0)")
    s(f"""
    s_cmp_eq_u32 s{S_BR}, 0
    s_cselect_b32 s{S_X}, s4, s14
    s_cselect_b32 s{S_X+1}, s5, s15
    s_cselect_b32 s{S_WQ}, s10, s20
    s_cselect_b32 s{S_WQ+1}, s11, s21
    s_cselect_b32 s{S_K}, s6, s16
    s_cselect_b32 s{S_K+1}, s7, s17
    s_cselect_b32 s{S_V}, s8, s18
    s_cselect_b32 s{S_V+1}, s9, s19
    s_cselect_b32 s{S_WO}, s12, s22
    s_cselect_b32 s{S_WO+1}, s13, s23
    s_mul_i32 s{S_T0}, s{S_B}, 114688
    s_add_u32 s{S_X}, s{S_X}, s{S_T0}
    s_addc_u32 s{S_X+1}, s{S_X+1}, 0
    s_mov_b32 s{S_X+2}, 114688
    s_mov_b32 s{S_X+3}, 0x20000
    s_lshl_b32 s{S_T0}, s{S_H}, 9
    s_add_u32 s{S_WQ}, s{S_WQ}, s{S_T0}
    s_addc_u32 s{S_WQ+1}, s{S_WQ+1}, 0
    s_sub_u32 s{S_WQ+2}, {448*8192}, s{S_T0}
    s_mov_b32 s{S_WQ+3}, 0x20000
    """)

    def dma(tile, slot, regs, srd, soff, aux, pre=[], post=[], **meta):
        l = [I(f"buffer_load_dwordx4 v{regs[i]}, s[{srd}:{srd+3}], {soff} offen offset:{1024*i} {aux} lds".replace("  ", " "),
               tile=tile, slot=slot, **meta) for i in range(4)]
        return ([I(x) for x in pre] + [I(f"s_add_u32 m0, s{S_W4K}, {slot*16384}")], l, [I(x) for x in post])
    WQ_SLOT = [6, 7, 4, 2, 5, 3]
    nxt = lambda r: [f"s_add_u32 s{r}, s{r}, 1", f"s_cmp_eq_u32 s{r}, 7", f"s_cselect_b32 s{r}, 0, s{r}"]
    def dma_x(u): return dma(f"X{u}", 8 + (u & 1), XD, S_X, f"s{S_T0}", P["x_aux"], pre=[f"s_lshl_b32 s{S_T0}, s{S_QU}, 7"])
    def dma_wq(j):
        if j & 1 == 0: return dma(f"WQ{j}", WQ_SLOT[j % 6], QD, S_WQ, f"s{S_T1}", P["wq_aux"], pre=[f"s_lshl_b32 s{S_T1}, s{S_QU}, 19"])
        return dma(f"WQ{j}", WQ_SLOT[j % 6], QD, S_WQ, f"s{S_T1}", P["wq_aux"], pre=[f"s_add_u32 s{S_T1}, s{S_T1}, 0x40000"], post=nxt(S_QU))
    def dma_k(t): return dma(f"K{t}", t % 4, KD * 2, S_K, f"s{S_KOFF}", P["kv_aux"], post=[f"s_add_u32 s{S_KOFF}, s{S_KOFF}, {ADV}"] + ([f"s_and_b32 s{S_KOFF}, s{S_KOFF}, 0x7ffff"] if P["krot"] else []))
    def dma_v(t): return dma(f"V{t}", 4 + t % 4, VD * 2, S_V, f"s{S_VOFF}", P["kv_aux"], post=[f"s_add_u32 s{S_VOFF}, s{S_VOFF}, {ADV}"] + ([f"s_and_b32 s{S_VOFF}, s{S_VOFF}, 0x7ffff"] if P["krot"] else []))
    WO_SLOT = [8, 9, 0, 1, 2, 4, 3, 5, 6, 7, 8, 9, 0, 1]
    WOFF = list(range(4, 18)); SOFF = list(range(18, 24)) + [92]
    def dma_wo(j): return dma(f"WO{j}", WO_SLOT[j], WD, S_WO, f"s{WOFF[j]}", P["wo_aux"], unread_ok=True)
    def flat(d): return d[0] + d[1] + d[2]

    for d in (dma_x(0), dma_wq(0), dma_wq(1)) + ((dma_x(1),) if P["x1e"] else ()):
        for i in flat(d): s.add(i)
    if P["wpf"]:
        s(f"""
        s_lshl_b32 s{S_T0}, s{S_B}, 2
        s_add_u32 s{S_T0}, s{S_T0}, s{S_WAVE}
        s_mul_i32 s{S_T0}, s{S_T0}, {12*8192}
        s_add_u32 s{S_T0}, s{S_T0}, {64*8192}
        v_min_u32 v59, 47, v2
        v_lshrrev_b32 v60, 2, v59
        v_and_b32 v59, 3, v59
        v_lshlrev_b32 v59, 7, v59
        v_lshl_add_u32 v59, v60, 13, v59
        buffer_load_dword v{V_CP+2}, v59, s[{S_WQ}:{S_WQ+3}], s{S_T0} offen
        """)
    if P["cpf"]:
        s(f"""
        s_getpc_b64 s[{S_PC}:{S_PC+1}]
        L_pc:
        s_lshl_b32 s{S_T0}, s{S_B}, 2
        s_add_u32 s{S_T0}, s{S_T0}, s{S_WAVE}
        s_lshl_b32 s{S_T0}, s{S_T0}, 11
        v_and_b32 v{V_CP}, 15, v2
        v_lshl_add_u32 v{V_CP}, v{V_CP}, 7, s{S_T0}
        v_min_u32 v{V_CP}, (L_codeend-L_pc-4), v{V_CP}
        """)
        s(f"global_load_dword v{V_CP+1}, v{V_CP}, s[{S_PC}:{S_PC+1}]")
    s(f"""
    s_add_u32 s{S_K}, s{S_K}, s31
    s_addc_u32 s{S_K+1}, s{S_K+1}, 0
    s_mov_b32 s{S_K+2}, 0x80000
    s_mov_b32 s{S_K+3}, 0x20000
    s_add_u32 s{S_V}, s{S_V}, s31
    s_addc_u32 s{S_V+1}, s{S_V+1}, 0
    s_mov_b32 s{S_V+2}, 0x80000
    s_mov_b32 s{S_V+3}, 0x20000
    s_mul_i32 s{S_T0}, s{S_H}, 229376
    s_add_u32 s{S_WO}, s{S_WO}, s{S_T0}
    s_addc_u32 s{S_WO+1}, s{S_WO+1}, 0
    s_mov_b32 s{S_WO+2}, 229376
    s_mov_b32 s{S_WO+3}, 0x20000
    s_mul_i32 s{S_T0}, s{S_G}, {PART_G}
    s_add_u32 s{S_T0}, s{S_T0}, {P['wsoff']}
    s_add_u32 s{S_P}, s{S_WS}, s{S_T0}
    s_addc_u32 s{S_P+1}, s{S_WS+1}, 0
    s_mov_b32 s{S_P+2}, {PART_G}
    s_mov_b32 s{S_P+3}, 0x20000
    s_mov_b32 s{S_OUT}, s24
    s_mov_b32 s{S_OUT+1}, s25
    s_mov_b32 s{S_OUT+2}, {8*128*896*2}
    s_mov_b32 s{S_OUT+3}, 0x20000
    s_mul_i32 s{S_PB}, s{S_H}, {PART_H}
    s_mul_i32 s{S_T0}, s{S_WAVE}, {PART_W}
    s_add_u32 s{S_PB}, s{S_PB}, s{S_T0}
    s_lshl_b32 s{S_T0}, s{S_G}, 12
    s_add_u32 s{S_T0}, s{S_T0}, {FLAG_OFF}
    s_add_u32 s{S_FL}, s{S_WS}, s{S_T0}
    s_addc_u32 s{S_FL+1}, s{S_WS+1}, 0
    s_bfe_u32 s{S_KOFF}, s31, {(1 << 16) | (19 + 3):#x}
    s_mul_i32 s{S_KOFF}, s{S_KOFF}, {0x40000 if P['krot'] else 0}
    s_mov_b32 s{S_VOFF}, s{S_KOFF}
    s_mov_b32 s{S_C}, {f2u(math.log2(math.e)/16.0):#x}
    s_mov_b32 s{S_C+1}, s{S_C}
    s_mov_b32 s{S_THR}, {f2u(P['thr']):#x}
    s_lshl_b32 s{S_G4}, s{S_G}, 4
    s_mov_b32 s{S_ONE}, 1
    s_mov_b32 s{S_LO}, 0x3f80
    s_mov_b32 s{S_HI}, 0x3f800000
    s_cmp_eq_u32 s{S_BR}, {P.get('blead', 0)}
    s_cselect_b32 s{S_BT}, -16, {P.get('buntil', 7) - 7}
    """)
    s(f"""
    v_and_b32 v58, 15, v2
    s_lshl_b32 s{S_T0}, s{S_H}, 8
    v_lshl_add_u32 v{V_FLG}, v4, 2, s{S_T0}
    s_lshl_b32 s{S_T0}, s{S_H}, 2
    v_lshl_add_u32 v{V_FLG2}, v58, 8, s{S_T0}
    v_mov_b32 v{V_POLL}, 0
    v_mov_b32 v{V_DBG}, s{S_G4}
    v_mov_b32 v{V_ONE}, 1
    """)
    s(f"""
    v_bfe_u32 v5, v2, 2, 2
    v_and_b32 v6, 3, v2
    v_lshl_add_u32 v59, v7, 3, v5
    v_lshlrev_b32 v59, 9, v59
    v_lshl_add_u32 v59, v6, 3, v59
    v_and_b32 v60, 1, v7
    v_lshl_add_u32 v60, v60, 2, v5
    """)
    for j in range(8):
        s(f"""
        v_xor_b32 v61, {j}, v60
        v_lshl_add_u32 v{TA0[j]}, v61, 5, v59
        v_add_u32 v{TA1[j]}, 0x10000, v{TA0[j]}
        """)
    s(f"""
    v_lshrrev_b32 v59, 1, v58
    v_xor_b32 v59, v59, v7
    v_lshlrev_b32 v60, 7, v58
    v_lshl_add_u32 v60, v1, 12, v60
    v_add_u32 v60, 0x20000, v60
    v_lshl_add_u32 v{XA[0]}, v59, 4, v60
    v_xor_b32 v{XA[1]}, 64, v{XA[0]}
    """)
    for d in (() if P["x1e"] else (dma_x(1),)) + (dma_wq(2), dma_wq(3)):
        for i in flat(d): s.add(i)
    lsc = Stream()
    for u in range(7):
        lsc(f"""
        s_add_u32 s30, s{S_OU}, {u}
        s_sub_u32 s31, s30, 7
        s_min_u32 s30, s30, s31
        s_lshl_b32 s{WOFF[2*u]}, s30, 7
        s_add_u32 s{WOFF[2*u+1]}, s{WOFF[2*u]}, 114688
        s_lshl_b32 s30, s30, 12
        s_add_u32 s{SOFF[u]}, s30, s{S_PB}
        """)
    for st, (u0, n) in enumerate(((0, P["n1"]), (P["n1"], 7 - P["n1"]))):
        if n == 4: lsc(f"s_mov_b32 s3, s{S_H}")
        else: lsc(f"s_lshl_b32 s3, s{S_WAVE}, 2\ns_add_u32 s3, s3, s{S_H}\ns_and_b32 s3, s3, 15")
        lsc(f"""
        s_lshr_b32 s30, s3, 2
        s_add_u32 s30, s30, s{S_OU}
        s_add_u32 s30, s30, {u0}
        s_sub_u32 s31, s30, 7
        s_min_u32 s30, s30, s31
        s_lshl_b32 s31, s30, 2
        s_and_b32 s71, s3, 3
        s_add_u32 s31, s31, s71
        s_lshl_b32 s31, s31, 10
        s_mul_i32 s{S_RR[st]}, s{S_WAVE}, {PART_W}
        s_add_u32 s{S_RR[st]}, s{S_RR[st]}, s31
        s_lshl_b32 s31, s{S_B}, 2
        s_add_u32 s31, s31, s{S_WAVE}
        s_lshl_b32 s31, s31, 1
        s_bfe_u32 s71, s3, 0x10001
        s_add_u32 s31, s31, s71
        s_mul_i32 s31, s31, {16*1792}
        s_lshl_b32 s30, s30, 1
        s_and_b32 s71, s3, 1
        s_add_u32 s30, s30, s71
        s_lshl_b32 s30, s30, 6
        s_add_u32 s31, s31, s30
        s_mul_i32 s30, s{S_BR}, 896
        s_add_u32 s{S_RO[st]}, s31, s30
        s_lshr_b32 s{S_RA[st]}, s3, 2
        s_xor_b32 s{S_RA[st]}, s{S_RA[st]}, {n}
        """)
    late = Stream()
    late(f"""
    v_lshrrev_b32 v59, 2, v58
    v_and_b32 v60, 3, v58
    v_lshl_add_u32 v59, v59, 3, v60
    v_lshlrev_b32 v59, 9, v59
    v_xor_b32 v60, v58, v7
    """)
    for k in range(4):
        late(f"v_xor_b32 v61, {4*k}, v60\nv_lshl_add_u32 v{KA[k]}, v61, 4, v59")
    late(f"""
    v_lshl_add_u32 v59, v7, 2, v5
    v_bfe_u32 v60, v59, 1, 2
    v_lshlrev_b32 v59, 7, v59
    v_lshl_add_u32 v59, v6, 3, v59
    """)
    for k in range(4):
        late(f"v_xor_b32 v61, {k}, v60\nv_lshl_add_u32 v{WA[0][k]}, v61, 5, v59")
    late(f"""
    v_mul_u32_u24 v59, 1792, v58
    v_lshl_add_u32 v{V_OUT}, v7, 3, v59
    """)

    PR = []; head = Pair()
    def pr(p):
        if p < 0: return head
        while len(PR) <= p: PR.append(Pair())
        return PR[p]
    npair = [0]
    def frag(p): return A_F + 4 * (p % NF)
    def add_pair(m0, m1):
        p = npair[0]; npair[0] += 1
        pr(p).m = [I(m0), I(m1)]
        return p
    def mf(d, a, b, c): return f"v_mfma_f32_16x16x32_bf16 {vr(d,4)}, {a}, {b}, {c}"
    def rd_at(p, bp, l, bulk=None):
        q = p - LA
        if bulk is not None and q <= bp: bulk.extend(l)
        else: pr(max(q, bp)).reads.extend(l)
    def tread(p, tile, slot, areg, off):
        f = frag(p)
        return [I(f"ds_read_b64_tr_b16 {ar(f,2)}, v{areg} offset:{off}", tile=tile, slot=slot),
                I(f"ds_read_b64_tr_b16 {ar(f+2,2)}, v{areg} offset:{off+2048}", tile=tile, slot=slot)]
    def barrier(bp, tiles):
        pr(bp - 1).vmtags.extend(tiles); pr(bp).sc0.insert(0, I("s_barrier"))
    def place_dma(ds, poss):
        q = 0
        for pre, loads, post in ds:
            for n, ld in enumerate(loads):
                p = poss[q]; q += 1
                if n == 0:
                    pr(p - 1).sc0.extend(pre)
                pr(p).mem.append(ld)
                if n == 3 and post:
                    if len(post) == 2: pr(p + 1).sc0.append(post[0]); pr(p + 2).sc0.append(post[1])
                    else: pr(p + 1).sc0.extend(post)
    def place(l, p0, p1, pace=True, win=8):
        fr = [max(0, pr(p).free()) for p in range(p0, p1 + 1)]
        F = sum(fr); C = sum(cost(i) for i in l); cum = 0; done = 0
        todo = list(range(len(l))); rec = []
        dep = lambda a, b: (a.wr & (b.rd | b.wr)) or (a.rd & b.wr)
        for n, p in enumerate(range(p0, p1 + 1)):
            cum += fr[n]
            while todo:
                if pace and F > C and done > C * cum / F: break
                pick = None
                for x, k in enumerate(todo[:win]):
                    if cost(l[k]) > pr(p).free(): continue
                    if any(dep(l[y], l[k]) for y in todo[:x]): continue
                    if any((o.wr & l[k].rd) for o in pr(p).ops): continue
                    if cost(l[k]) == 2 and len(pr(p).ops) >= 2: continue
                    pick = k; break
                if pick is None: break
                todo.remove(pick); pr(p).ops.append(l[pick]); done += cost(l[pick]); rec.append((n, pick))
        if todo:
            if P.get("verbose"): print("overflow", p0, p1, len(todo))
            for k in todo: pr(p1).ops.append(l[k]); rec.append((p1 - p0, k))
        return rec

    kvq = [dma_k(0), dma_k(1), dma_v(0)] + ([dma_k(2)] if P["PDK"] >= 2 else []) + ([dma_v(1)] if P["PDV"] >= 2 else []) + ([dma_k(3)] if P["PDK"] >= 3 else [])
    for j in range(14):
        u = j >> 1; slot = WQ_SLOT[j % 6]; ta = TA1 if slot >= 4 else TA0; base = (slot & 3) * 16384
        pb = npair[0]; bp = pb - LA
        bulk = None
        if j == 0:
            head.post += [I("@waitvm WQ0 X0"), I("s_barrier")]; bulk = head.post; bp = -1
        else: barrier(bp, [f"WQ{j}", f"X{u}"] + (["WQ13"] if P["bm"] and j == 12 else []))
        if P.get("qstamps") and j in P["qstamps"]: (head.post if j == 0 else pr(bp).post).extend(stamp_ins())
        if j & 1 == 0:
            for q in range(4):
                xr = I(f"ds_read_b128 {ar(A_X + 16*(u&1) + 4*q, 4)}, v{XA[q>>1]} offset:{(u&1)*16384 + (q&1)*2048}", tile=f"X{u}", slot=8 + (u & 1), private=True)
                if j == 0: head.post.append(xr)
                else: pr(bp + (q // 2 if P["bm"] and j == 12 else q)).reads.append(xr)
        for jj in range(16):
            p = npair[0]
            j2, blk = j, jj
            if P["bm"] and j >= 12:
                n = (j - 12) * 16 + jj; j2 = 12 + (n & 1); blk = n >> 1
            slot = WQ_SLOT[j2 % 6]; ta = TA1 if slot >= 4 else TA0; base = (slot & 3) * 16384
            rd_at(p, bp, tread(p, f"WQ{j2}", slot, ta[blk & 7], base + (blk >> 3) * 256), bulk)
            xb = A_X + 16 * (u & 1) + 8 * (j2 & 1)
            add_pair(*[mf(O0 + 8*blk + 4*qb, ar(frag(p), 4), ar(xb + 4*qb, 4), "0" if j == 0 else vr(O0 + 8*blk + 4*qb, 4)) for qb in range(2)])
        b0 = pb - LA
        if j & 1 == 0:
            ds = []
            if j + 4 <= 13: ds = [dma_wq(j + 4), dma_x(u + 2), dma_wq(j + 5)]
            elif j == 10: ds = kvq[:P["kv10"]]
            elif j == 12: ds = kvq[P["kv10"]:P["kv10"] + P["kv12"]]
            poss = [b0 + 2 + (n * 30) // (4 * max(len(ds), 1)) for n in range(12)]
            if j == 0: poss = [1 + (n * 26) // 12 for n in range(12)]
            place_dma(ds, poss)
        if j == 1:
            pr(pb).post += [I(f"s_cmp_lg_u32 s{S_WAVE}, 0"), I("s_cbranch_scc1 L_noclr"), I("s_mov_b32 exec_hi, 0"),
                            I(f"global_atomic_swap v{V_T1}, v{V_FLG}, v{V_POLL}, s[{S_FL}:{S_FL+1}] sc0", untracked=True),
                            I("s_mov_b64 exec, -1"), I("L_noclr:")]
        if j == 8:
            if P["ann"] == "s":
                pr(pb).post += [I(f"s_cmp_lg_u32 s{S_WAVE}, 0"), I("s_cbranch_scc1 L_noann"),
                                I(f"s_atomic_add s{S_ONE}, s[{S_DBG}:{S_DBG+1}], s{S_G4}"), I("L_noann:")]
            else:
                pr(pb).post += [I(f"s_cmp_lg_u32 s{S_WAVE}, 0"), I("s_cbranch_scc1 L_noann"), I("s_mov_b64 exec, 1"),
                                I(f"global_atomic_add v{V_DBG}, v{V_ONE}, s[{S_DBG}:{S_DBG+1}]", untracked=True), I("s_mov_b64 exec, -1"), I("L_noann:")]
    pq_end = npair[0]
    place(late.ins, 40, 100)
    q = 2
    for i in lsc.ins:
        while pr(q).sc0: q += 1
        pr(q).sc0.append(i)
    assert q < 200

    def softmax_ops(t):
        S = SB[t & 1]; Pp = PB[t & 1]; l = []
        T = lambda e: TT[e & 7]
        for e in range(17):
            if e < 16: l.append(I(f"v_exp_f32 v{T(e)}, v{S+e}"))
            d = e - 1
            if d >= 0:
                lt = V_LT[d >> 3]
                if d & 7 == 1: l.append(I(f"v_add_f32 v{lt}, v{T(d-1)}, v{T(d)}"))
                elif d & 7 > 1: l.append(I(f"v_add_f32 v{lt}, v{lt}, v{T(d)}"))
                if d & 1: l.append(I(f"v_cvt_pk_bf16_f32 v{Pp+(d>>1)}, v{T(d-1)}, v{T(d)}"))
        return l
    def allmax(x, t):
        return [I(f"v_mov_b32 v{t}, v{x}"), I(f"v_permlane32_swap_b32 v{x}, v{t}"), I(f"v_max_f32 v{x}, v{x}, v{t}"),
                I(f"v_mov_b32 v{t}, v{x}"), I(f"v_permlane16_swap_b32 v{x}, v{t}"), I(f"v_max_f32 v{x}, v{x}, v{t}")]
    def rowmax(S, x):
        return [I(f"v_max3_f32 v{x}, v{S}, v{S+1}, v{S+2}"), I(f"v_max3_f32 v{x}, v{x}, v{S+3}, v{S+4}"),
                I(f"v_max3_f32 v{x}, v{x}, v{S+5}, v{S+6}"), I(f"v_max_f32 v{x}, v{x}, v{S+7}")]
    def inter(a, b):
        o = []
        for x, y in zip(a, b): o += [x, y]
        return o
    def qk(t, bp, bulk=None):
        slot = t % 4; S = SB[t & 1]
        for q in range(8):
            for kb in range(2):
                p = npair[0]
                rd_at(p, bp, [I(f"ds_read_b128 {ar(frag(p),4)}, v{KA[q&3]} offset:{slot*16384 + (q>>2)*256 + kb*2048}", tile=f"K{t}", slot=slot)], bulk)
                add_pair(*[mf(S + 8*qb + 4*kb, ar(frag(p), 4), ar(A_Q + 8*q + 4*qb, 4),
                              (("0" if t == 0 else vr(NM + 4*qb, 4)) if q == 0 else vr(S + 8*qb + 4*kb, 4))) for qb in range(2)])
    def pv(t, bp, bulk=None):
        slot = 4 + t % 4
        for jj in range(16):
            p = npair[0]
            rd_at(p, bp, tread(p, f"V{t}", slot, TA1[jj & 7], (t % 4) * 16384 + (jj >> 3) * 256), bulk)
            add_pair(*[mf(O0 + 8*jj + 4*qb, ar(frag(p), 4), vr(PB[t & 1] + 4*qb, 4), "0" if t == 0 else vr(O0 + 8*jj + 4*qb, 4)) for qb in range(2)])

    def qconv(q, pk=True):
        l = []
        for qb in range(2):
            X = O0 + 16*q + 4*qb; Y = X + 8
            if pk: l += [I(f"v_pk_mul_f32 {vr(r,2)}, {vr(r,2)}, s[{S_C}:{S_C+1}]") for r in (X, X + 2, Y, Y + 2)]
            else: l += [I(f"v_mul_f32 v{r}, s{S_C}, v{r}") for r in list(range(X, X + 4)) + list(range(Y, Y + 4))]
        for qb in range(2):
            X = O0 + 16*q + 4*qb; Y = X + 8
            l += [I(f"v_cvt_pk_bf16_f32 v{X}, v{X}, v{X+1}"), I(f"v_cvt_pk_bf16_f32 v{Y}, v{Y}, v{Y+1}"),
                  I(f"v_cvt_pk_bf16_f32 v{X+1}, v{X+2}, v{X+3}"), I(f"v_cvt_pk_bf16_f32 v{Y+1}, v{Y+2}, v{Y+3}")]
        for sw in ("32", "16"):
            for qb in range(2):
                X = O0 + 16*q + 4*qb; Y = X + 8
                l += [I(f"v_permlane{sw}_swap_b32 v{X}, v{Y}"), I(f"v_permlane{sw}_swap_b32 v{X+1}, v{Y+1}")]
        for qb in range(2):
            X = O0 + 16*q + 4*qb; Y = X + 8
            l += [I(f"v_accvgpr_write_b32 a{A_Q+8*q+4*qb+n}, v{r}") for n, r in enumerate((X, X + 1, Y, Y + 1))]
        return l
    barrier(pq_end - LA, ["K0"])
    p0 = npair[0]
    qk(0, pq_end - LA)
    rest = kvq[P["kv10"] + P["kv12"]:]
    tr = rest + ([dma_wo(0), dma_wo(1)] if P["ewo"] else [])
    for d in tr[:-2] if len(tr) > 2 else []: pr(pq_end - 1).post += flat(d)
    place_dma(tr[-2:], [p0 + 1 + 2 * n for n in range(8)])
    place(qconv(0, False), pq_end - (26 if P["bm"] else 12), pq_end - 1, pace=False)
    pr(pq_end - 1).post += stamp_ins()
    for q in range(1, 8): pr(pq_end - 1).post += qconv(q)[:8]
    for q in range(1, 8):
        l = qconv(q)[8:]; h = len(l) // 2
        pr(p0 + 2*q - 2).ops += l[:h]; pr(p0 + 2*q - 1).ops += l[h:]
    pz = npair[0] - 1
    init = inter(rowmax(SB[0], V_T0) + allmax(V_T0, TT[0]), rowmax(SB[0] + 8, V_T1) + allmax(V_T1, TT[1]))
    for qb, x in enumerate((V_T0, V_T1)):
        init += [I(f"v_sub_f32 v{NM+4*qb+n}, 0, v{x}") for n in range(4)]
    for qb, x in enumerate((V_T0, V_T1)):
        init += [I(f"v_sub_f32 v{SB[0]+8*qb+n}, v{SB[0]+8*qb+n}, v{x}") for n in range(8)]
    init += [I(f"v_mov_b32 v{V_L[0]}, 0"), I(f"v_mov_b32 v{V_L[1]}, 0")]
    bulk0 = []
    pr(pz).post += [I("@waitvm K1 V0"), I("s_barrier"), I("@bulk0")] + init + stamp_ins()
    wa_late = [I(f"v_add_u32 v{WA[w][k]}, {0x10000*w}, v{WA[0][k]}") for w in (1, 2) for k in range(4)]

    stubs = []; step_start = []
    bp = pz
    for t in range(32):
        ps = npair[0]; step_start.append(ps)
        inloop = 1 <= t <= 28
        lab = f"{t%4}" if inloop else f"p{t}"
        if t <= 4 or t > 28: stubs.append((lab, t & 1))
        chk = [I(f"v_max_f32 v{V_T0}, v{V_LT[0]}, v{V_LT[1]}"), I(f"v_cmp_nge_f32 vcc, s{S_THR}, v{V_T0}")]
        br = [I(f"s_cbranch_vccnz L_fix{lab}"), I(f"L_ret{lab}:")]
        acc = [I(f"v_add_f32 v{V_L[qb]}, v{V_L[qb]}, v{V_LT[qb]}") for qb in range(2)]
        bulk31 = []
        if t < 31:
            qk(t + 1, bp, bulk0 if t == 0 else None)
            pp = npair[0]
            pv(t, bp)
        else:
            pp = npair[0]
            pv(t, bp, bulk31)
            pr(ps - 1).post += chk + br + [I("@waitvm V31"), I("s_barrier")] + bulk31
        pe = npair[0]
        nb = pe - LA
        if t < 30: barrier(nb, [f"K{t+2}", f"V{t+1}"])
        if P.get("bthr") is not None and inloop:
            pr(nb - 1).sc0.append(I(f"s_cmp_lt_i32 s{S_CNT}, s{S_BT}"))
            pr(nb - 1).sc1.extend([I(f"s_cbranch_scc0 L_nt{lab}"), I(f"s_waitcnt vmcnt({P['bthr']})", blind=True), I(f"L_nt{lab}:")])
        ds = []
        tv = t + P["PDV"]; tk = t + 1 + P["PDK"]
        if tv <= 31: ds.append(dma_v(tv))
        if tk <= 31 or inloop: ds.append(dma_k(tk))
        if P["PDK"] <= P["PDV"] and len(ds) == 2: ds = ds[::-1]
        plan = {29: [2], 30: [3, 4, 5], 31: [6]} if P["ewo"] else {29: [0], 30: [1, 2], 31: [3]}
        ds += [dma_wo(x) for x in plan.get(t, [])]
        dsp = P["dsp"] if len(ds) <= 2 else 2
        late = P.get("late", 0)
        if late and t <= 29:
            early = [ps + 2 * late - LA + 3 + dsp * n for n in range(8 - late)]
            assert early[-1] < nb - 1
            poss = early + [nb + 1 + 2 * n for n in range(late)]
        elif late:
            poss = [ps + 2 * late - LA + 3 + 2 * n for n in range(12)] if t == 30 else [ps + 1 + 2 * n for n in range(12)]
        else: poss = [ps + 1 + dsp * n for n in range(12)]
        place_dma(ds, poss)
        if inloop and t % 4 == 0:
            pr(pe - 1).sc0.append(I(f"s_add_u32 s{S_CNT}, s{S_CNT}, 1"))
            pr(pe - 1).post.append(I("s_cbranch_scc0 L_loop"))
        if P.get("lstamps"):
            pr(ps + 2).post += [I("s_waitcnt lgkmcnt(0)", blind=True), I(f"s_memrealtime s[{S_ST}:{S_ST+1}]"), I(f"s_memtime s[{S_ST+2}:{S_ST+3}]"),
                I("v_mov_b32_dpp v70, v70 wave_shr:1 row_mask:0xf bank_mask:0xf"), I("v_mov_b32_dpp v71, v71 wave_shr:1 row_mask:0xf bank_mask:0xf"),
                I("s_waitcnt lgkmcnt(0)", blind=True), I(f"v_writelane_b32 v70, s{S_ST}, 0"), I(f"v_writelane_b32 v71, s{S_ST+2}, 0")]
        if t == 0: pr(pe - 2).sc0.append(I(f"s_mov_b32 s{S_CNT}, -7"))
        if P["cpf"] >= 2 and inloop and t % 4 == 1:
            pr(pp + 5).mem.append(I(f"global_load_dword v{V_CP+1}, v{V_CP}, s[{S_PC}:{S_PC+1}]", nodep=True))
        yield_info = (t, ps, pp, pe, chk, br, acc)
        step_start[-1] = yield_info
        bp = nb if t < 30 else pe - 1
    pm_end = npair[0]

    ACC = [SB[0], O0 + 64]
    otile = []
    for j in range(14):
        u = j >> 1; kh = j & 1; slot = WO_SLOT[j]; wa = WA[slot >> 2]; base = (slot & 3) * 16384
        pb = npair[0]; bp = pb - LA; otile.append(pb)
        if P["fewb"]:
            cover = {0: range(0, 6), 3: [], 6: range(6, 9), 9: range(9, 14)}
            if j in cover: barrier(bp, [f"WO{x}" for x in cover[j]])
        else: barrier(bp, [f"WO{j}"])
        for q in range(4):
            for jn in range(4):
                p = npair[0]
                rd_at(p, bp, tread(p, f"WO{j}", slot, wa[jn], base + q * 4096))
                a = ACC[u & 1] + 4 * jn
                add_pair(*[mf(a + 16*qb, ar(frag(p), 4), vr(O0 + 8*(4*kh + q) + 4*qb, 4), "0" if (kh == 0 and q == 0) else vr(a + 16*qb, 4)) for qb in range(2)])
        if P["ewo"]:
            ds = [j + 7] if j <= 6 else []
            if P["fewb"]: ds = {0: [7], 1: [8], 3: [9], 4: [10], 5: [11], 6: [12], 7: [13]}.get(j, [])
            place_dma([dma_wo(x) for x in ds], [bp + 1 + 4 * n for n in range(4)])
        else:
            ds = {0: [4, 5], 1: [6, 7], 2: [8, 9], 3: [10, 11], 4: [12], 5: [13]}.get(j, [])
            place_dma([dma_wo(x) for x in ds], [bp + 1 + 2 * n for n in range(8)])

    for (t, ps, pp, pe, chk, br, acc) in step_start:
        if t < 31: pr(pp - 1).sc0.extend(br)
        place(acc, pp, pp + 1, pace=False)
    w0 = step_start[9][2] + P["sm_start"]
    rec = place(softmax_ops(10) + step_start[10][4], w0, step_start[10][2] - 2)
    for t in range(1, 31):
        if t == 10: continue
        l = softmax_ops(t) + step_start[t][4]
        for n, k in rec: pr(step_start[t-1][2] + P["sm_start"] + n).ops.append(l[k])
    l = softmax_ops(0) + step_start[0][4]
    nrel = step_start[1][1] - (step_start[0][2] + P["sm_start"])
    for n, k in rec:
        if n < nrel: pr(pz).post.append(l[k])
        else: pr(step_start[0][1] + n - nrel).ops.append(l[k])
    place(softmax_ops(31), step_start[30][2] + P["sm_start"], step_start[30][3] - 1, pace=False)
    place(wa_late, step_start[0][1], step_start[0][3] - 1, pace=False)
    pr(step_start[29][2]).mem.append(I(f"global_load_dword v{V_POLL}, v{V_DBG}, s[{S_DBG}:{S_DBG+1}] sc1", tag="HS"))
    def allsum(x, t):
        return [I(f"v_mov_b32 v{t}, v{x}"), I(f"v_permlane32_swap_b32 v{x}, v{t}"), I(f"v_add_f32 v{x}, v{x}, v{t}"),
                I(f"v_mov_b32 v{t}, v{x}"), I(f"v_permlane16_swap_b32 v{x}, v{t}"), I(f"v_add_f32 v{x}, v{x}, v{t}")]
    lsum = inter(allsum(V_L[0], V_T0), allsum(V_L[1], V_T1)) + [I(f"v_rcp_f32 v{V_RI[qb]}, v{V_L[qb]}") for qb in range(2)]
    def oconv(q):
        l = []
        for qb in range(2):
            X = O0 + 16*q + 4*qb; Y = X + 8; D = O0 + 8*q + 4*qb
            l.append([(D, X), (D + 1, X + 2), (D + 2, Y), (D + 3, Y + 2)])
        o = l[0] + l[1]
        if q == 0:
            pass
        return [I(f"v_cvt_pk_bf16_f32 v{d}, v{x}, v{x+1}") for d, x in o]
    place(oconv(0) + oconv(1), pm_end - 10, pm_end - 1)
    pr(pm_end - 1).post += stamp_ins()
    for q in range(2, 8):
        place(oconv(q), pm_end + 4 * (q - 2), pm_end + 4 * (q - 2) + 3)
    place(lsum, pm_end + 24, pm_end + 33)
    STG = [PB[0], PB[1]]
    def finish(u, pk=False):
        l = []
        for qb in range(2):
            a = ACC[u & 1] + 16 * qb; st = STG[qb]
            for q in range(8):
                if pk: l.append(I(f"v_pk_mul_f32 {vr(a+2*q,2)}, {vr(a+2*q,2)}, {vr(V_RI[0],2)} op_sel:[0,{qb}] op_sel_hi:[1,{qb}]"))
                else:
                    l.append(I(f"v_mul_f32 v{a+2*q}, v{V_RI[qb]}, v{a+2*q}"))
                    l.append(I(f"v_mul_f32 v{a+2*q+1}, v{V_RI[qb]}, v{a+2*q+1}"))
                l.append(I(f"v_cvt_pk_bf16_f32 v{st+q}, v{a+2*q}, v{a+2*q+1}"))
                if q & 3 == 3 and not P.get("nostore"):
                    l.append(I(f"buffer_store_dwordx4 {vr(st+q-3,4)}, v{V_L16}, s[{S_P}:{S_P+3}], s{SOFF[u]} offen offset:{qb*2048+(q>>2)*1024} {P['st_aux']}", tag=f"PST{u}"))
        return l
    bp = otile[0] + 16 * P["sig"] - LA
    barrier(bp, [f"PST{P['n1']-1}"])
    sig = Stream()
    sig(f"""
    s_cmp_lg_u32 s{S_WAVE}, 0
    s_cbranch_scc1 L_nosig1
    v_readfirstlane_b32 s{S_T0}, v{V_POLL}
    s_cmp_lt_u32 s{S_T0}, 16
    s_cbranch_scc1 L_hs
    L_hsok:
    s_mov_b64 exec, 0xffff
    """)
    sig(f"global_store_dword v{V_FLG2}, v{V_ONE}, s[{S_FL}:{S_FL+1}] sc1", untracked=True)
    sig("s_mov_b64 exec, -1\nL_nosig1:")
    pr(bp).post += sig.ins
    if P.get("ostamps"):
        for u in range(1, 7): pr(otile[2 * u] - 1).post += stamp_ins()
    for u in range(1, 7):
        pb = otile[2 * u]
        place(finish(u - 1), pb + (2 if u == 1 else 1), pb + 31, pace=False)
    pr(npair[0] - 1).post += [I("@stop")] + finish(6, True)

    def gap_order(mem, ops):
        first = list(mem); rest = []
        for i in ops:
            if i.kind == "vmem" and not any(x.wr & i.rd for x in rest): first.append(i)
            else: rest.append(i)
        return first + rest
    def emit_list(l):
        for i in l:
            if i.kind == "pseudo" and i.op == "@bulk0":
                for x in bulk0: s.add(x)
            else: s.add(i)
    emit_list(head.sc0 + head.post)
    starts = {x[1]: x[0] for x in step_start}
    worst = 0
    for p, q in enumerate(PR):
        if p in starts and starts[p] % 4 == 1: s.add(I(f"@block {starts[p]//4}"))
        mem = q.reads + q.mem
        best = None
        e0 = max(0, sum(cost(x) for x in q.sc0) - 1); e1 = sum(cost(x) for x in q.sc1)
        for r0 in range(len(mem), -1, -1):
            for k in range(len(q.ops) + 1):
                c0 = e0 + r0 + sum(cost(x) for x in q.ops[:k]); c1 = e1 + len(mem) - r0 + sum(cost(x) for x in q.ops[k:])
                nr = len(q.reads); ra = min(r0, nr)
                sc_ = (max(c0, 2) + max(c1, 2), max(c0, c1), abs(2 * ra - nr) if P["bal"] else 0, -r0)
                if best is None or sc_ < best[0]: best = (sc_, r0, k)
        _, r0, k = best
        worst += best[0][0] - 4
        emit_list(q.pre)
        s.add(q.m[0]); emit_list(q.sc0); emit_list(gap_order(mem[:r0], q.ops[:k]))
        s.add(q.m[1]); s.add(I("@waitnext " + " ".join(q.vmtags))); emit_list(q.sc1); emit_list(gap_order(mem[r0:], q.ops[k:]))
        emit_list(q.post)
    if P.get("verbose"): print("overfull slots:", worst)

    poll = f"global_load_dword v{V_EP}, v{V_FLG}, s[{S_FL}:{S_FL+1}] sc1"
    s(poll)
    for i in stamp_ins(): s.add(i)
    s("s_waitcnt vmcnt(0)\ns_barrier")
    for i in stamp_ins(): s.add(i)
    s(f"""
    s_cmp_lg_u32 s{S_WAVE}, 0
    s_cbranch_scc1 L_nosig2
    s_mov_b64 exec, 0xffff
    """)
    s(f"global_store_dword v{V_FLG2}, v{V_ONE}, s[{S_FL}:{S_FL+1}] offset:64 sc1", untracked=True)
    s(f"s_mov_b64 exec, -1\nL_nosig2:\ns_mov_b32 s{S_CNT}, 0")
    tailsubs = Stream()
    tailsubs(f"""
    L_hs:
    s_mov_b32 s{S_CNT}, 0
    L_hs2:
    s_sleep 8
    global_load_dword v{V_POLL}, v{V_DBG}, s[{S_DBG}:{S_DBG+1}] sc1
    s_waitcnt vmcnt(0)
    v_readfirstlane_b32 s{S_T0}, v{V_POLL}
    s_add_u32 s{S_CNT}, s{S_CNT}, 1
    s_cmp_ge_u32 s{S_CNT}, 0x40000
    s_cbranch_scc1 L_hsok
    s_cmp_lt_u32 s{S_T0}, 16
    s_cbranch_scc1 L_hs2
    s_branch L_hsok
    """)
    def waitflags(st):
        mask = 0xffff << (16 * st)
        s(f"""
        L_w{st}:
        v_cmp_ne_u32 vcc, 1, v{V_EP}
        s_and_b32 s{S_T0}, vcc_lo, {mask:#x}
        s_cbranch_scc0 L_ok{st}
        s_add_u32 s{S_CNT}, s{S_CNT}, 1
        s_cmp_ge_u32 s{S_CNT}, 0x40000
        s_cbranch_scc1 L_ok{st}
        s_sleep {P['sleep']}
        """)
        s(poll, untracked=True)
        s(f"s_waitcnt vmcnt(0)", blind=True)
        s(f"s_branch L_w{st}\nL_ok{st}:")
    def loads(st):
        for h in range(16):
            s(f"buffer_load_dwordx4 {vr(O0+64*st+4*h,4)}, v{V_L16}, s[{S_P}:{S_P+3}], s{S_RR[st]} offen {P['ld_aux']}", tag=f"R{st}_{h}")
            if h < 15: s(f"s_add_u32 s{S_RR[st]}, s{S_RR[st]}, {PART_H}")
    def accum(st, h0, h1):
        A0 = SB[st]
        for h in range(h0, h1):
            for q in range(4):
                r = O0 + 64 * st + 4 * h + q
                for z, k in enumerate((S_LO, S_HI)):
                    s(f"v_dot2_f32_bf16 v{A0+2*q+z}, v{r}, s{k}, " + ("0" if h == 0 else f"v{A0+2*q+z}"))
    def final(st):
        A0 = SB[st]
        for q in range(4): s(f"v_cvt_pk_bf16_f32 v{PB[st]+q}, v{A0+2*q}, v{A0+2*q+1}")
        for jn in range(2):
            s(f"buffer_store_dwordx2 {vr(PB[st]+2*jn,2)}, v{V_OUT}, s[{S_OUT}:{S_OUT+3}], s{S_RO[st]} offen offset:{32*jn} {P['out_aux']}")
    s(f"s_cmp_eq_u32 s{S_RA[0]}, 0\ns_cbranch_scc1 L_st2")
    waitflags(0)
    loads(0)
    accum(0, 0, 16 - P["pw"])
    s(poll)
    accum(0, 16 - P["pw"], 16)
    final(0)
    s("s_waitcnt vmcnt(2)")
    s("L_st2:")
    for i in stamp_ins(): s.add(i)
    s(f"s_cmp_eq_u32 s{S_RA[1]}, 0\ns_cbranch_scc1 L_done")
    waitflags(1)
    loads(1)
    accum(1, 0, 16)
    final(1)
    s("L_done:")
    if P.get("probe") is not None:
        s("s_waitcnt vmcnt(0)\ns_barrier")
        for i in stamp_ins(): s.add(i)
        s(f"""
        L_spin:
        s_sleep 4
        s_memrealtime s[{S_ST+2}:{S_ST+3}]
        s_waitcnt lgkmcnt(0)
        s_sub_u32 s{S_T0}, s{S_ST+2}, s{S_ST}
        s_cmp_lt_u32 s{S_T0}, 10000
        s_cbranch_scc1 L_spin
        """)
    if P["stamps"]:
        s("s_waitcnt vmcnt(0)\ns_barrier")
        for i in stamp_ins(): s.add(i)
        s(f"""
        s_lshl_b32 s3, s2, 7
        v_lshrrev_b32 v59, 2, v{V_L16}
        v_add_u32 v59, s3, v59
        s_cmp_lg_u32 s{S_WAVE}, 0
        s_cbranch_scc1 L_end
        s_mov_b32 exec_hi, 0
        global_store_dword v59, v{V_ST}, s[{S_WS}:{S_WS+1}]
        v_add_u32 v59, 0x10000, v59
        global_store_dword v59, v70, s[{S_WS}:{S_WS+1}]
        v_add_u32 v59, 0x10000, v59
        global_store_dword v59, v71, s[{S_WS}:{S_WS+1}]
        """)
    s("L_end:\ns_endpgm")

    ins = resolve(s.ins, pair_waits=False, verbose=P.get("verbose"))
    marks = [k for k, i in enumerate(ins) if i.kind == "pseudo" and i.op == "@block"]
    assert len(marks) == 8
    blocks = [text_of(ins[marks[b]:marks[b+1]]) for b in range(7)]
    for b in range(1, 7):
        if blocks[b] != blocks[0]:
            import difflib
            print("".join(list(difflib.unified_diff(blocks[0].splitlines(1), blocks[b].splitlines(1), n=1))[:60]))
            raise SystemExit(f"block {b} differs from block 0")
    body = text_of(ins[:marks[0]]) + ".p2align 3\nL_loop:\n" + blocks[0] + text_of(ins[marks[7]:])

    r = Stream()
    for lab, par in stubs:
        r(f"L_fix{lab}:\ns_call_b64 s[{S_RET}:{S_RET+1}], L_rescale{par}\ns_branch L_ret{lab}")
    for par in range(2):
        r(f"L_rescale{par}:\ns_nop 15\n@fence")
        S = SB[par]; S2 = SB[1 - par]
        for qb, x in enumerate((V_T0, V_T1)):
            for i in rowmax(S + 8*qb, x) + allmax(x, TT[0]): r.add(i)
            r(f"v_max_f32 v{x}, 0, v{x}\nv_exp_f32 v{TT[1]}, -v{x}")
            for n in range(4): r(f"v_sub_f32 v{NM+4*qb+n}, v{NM+4*qb+n}, v{x}")
            for n in range(8): r(f"v_sub_f32 v{S+8*qb+n}, v{S+8*qb+n}, v{x}\nv_sub_f32 v{S2+8*qb+n}, v{S2+8*qb+n}, v{x}")
            r(f"v_mul_f32 v{V_L[qb]}, v{V_L[qb]}, v{TT[1]}")
            for jj in range(16):
                for n in range(4): r(f"v_mul_f32 v{O0+8*jj+4*qb+n}, v{TT[1]}, v{O0+8*jj+4*qb+n}")
        for i in softmax_ops(par): r.add(i)
        r(f"s_nop 3\ns_setpc_b64 s[{S_RET}:{S_RET+1}]")
    body += text_of(resolve(tailsubs.ins)) + text_of(resolve(r.ins)) + "L_codeend:\n"
    return whole_file(["; @launch grid=(256,1,1) block=(256,1,1) lds=163840"], [kernel_block(KN, body, 512, 102, 256)])

if __name__ == "__main__":
    out = sys.argv[1]
    kw = {}
    for a in sys.argv[2:]:
        k, v = a.split("=", 1)
        try: v = eval(v)
        except Exception: pass
        kw[k] = v
    open(out, "w").write(build(**kw))
```

```python
import sys, math, struct
from asmlib import *
from stream import *

def f2u(x): return struct.unpack("<I", struct.pack("<f", x))[0]

DEF = dict(LA=4, PDK=2, PDV=2, late=2, kv_aux="nt", wq_aux="", wpf=0, prog=0, krot=1, kperm=0, ek=(2,6), eki=0, xlast=1, fa=(3,1,18), fb=(3,1,18), kv10=2, kv12=1, bal=1, x1e=0, out_aux="sc1", fast=0, fewb=1, ewo=1, bm=1, wo_aux="", x_aux="", stamps=False,
           st_aux="sc1", ld_aux="sc1", rot=4, orot=2, n1=4, sig=12, pw=4, wsoff=0x1000000, thr=4096.0, early_k=10, sleep=2, dsp=2,
           sm_start=2, ann="s", cpf=1)

O0 = 128
SB = [96, 112]
PB = [80, 88]
NM = 72
TT = list(range(0, 8))
V_L = [64, 65]; V_LT = [66, 67]; V_T0, V_T1 = 62, 63; V_RI = [60, 61]
KA = list(range(8, 12))
TA1 = list(range(12, 20))
TA0 = list(range(20, 28))
XA = [28, 29]
KD = [30, 31]; VD = [32, 33]; QD = list(range(34, 38)); XD = list(range(38, 42)); WD = list(range(42, 46))
WA = [list(range(46, 50)), list(range(20, 24)), list(range(24, 28))]
V_L16 = 50; V_OUT = 51
V_FLG = 52; V_FLG2 = 53; V_ONE = 54; V_POLL = 55; V_DBG = 56; V_ST = 57; V_CP = 68; V_EP = 59
A_Q = 0; A_F = 64; NF = 16; A_X = 128

S_X, S_K, S_V, S_WQ, S_WO, S_P, S_OUT = 32, 36, 40, 44, 48, 52, 56
S_DBG = 26; S_WS = 28
S_W4K, S_WAVE, S_BR, S_B, S_H, S_G = 60, 61, 62, 63, 64, 65
S_KOFF, S_VOFF, S_QU, S_T0, S_T1, S_THR, S_CNT, S_OU, S_OS, S_PB = 66, 67, 68, 69, 70, 72, 73, 74, 75, 76
S_RET = 78; S_FL = 80; S_C = 82
S_ST = 84; S_G4 = 88; S_ONE = 89; S_PC = 90; S_BT = 93; S_RR = [94, 95]; S_RO = [96, 97]; S_RA = [98, 99]; S_LO = 100; S_HI = 101

PART_W = 28672; PART_H = 4 * PART_W; PART_G = 16 * PART_H
FLAG_OFF = 0x100000

def vr(a, n): return f"v[{a}:{a+n-1}]"
def ar(a, n): return f"a[{a}:{a+n-1}]"
def cost(i):
    if i.kind == "trans" or i.op.startswith("v_permlane"): return 2
    if i.kind in ("label", "pseudo"): return 0
    return 1

class Pair:
    def __init__(self):
        self.m = []; self.reads = []; self.mem = []; self.ops = []; self.sc0 = []; self.sc1 = []
        self.pre = []; self.post = []; self.vmtags = []; self.drain = []
    def free(self):
        return 4 - len(self.reads) - len(self.mem) - sum(cost(i) for i in self.ops) - max(0, len(self.sc0) - 1) - sum(cost(i) for i in self.sc1)

def build(**kw):
    P = dict(DEF); P.update(kw)
    LA = P["LA"]
    ADV = "0" if P.get("noadv") else "0x4000"
    s = Stream()
    nstamp = [0]
    def stamp_ins():
        if P.get("probe") is not None:
            k = nstamp[0]; nstamp[0] += 1
            if k != P["probe"]: return []
            return [I("s_waitcnt lgkmcnt(0)", blind=True), I(f"s_memrealtime s[{S_ST}:{S_ST+1}]"), I("s_waitcnt lgkmcnt(0)", blind=True)]
        if not P["stamps"]: return []
        k = nstamp[0]; nstamp[0] += 1
        assert k < 16
        return [I("s_waitcnt lgkmcnt(0)", blind=True), I(f"s_memrealtime s[{S_ST}:{S_ST+1}]"), I(f"s_memtime s[{S_ST+2}:{S_ST+3}]"),
                I("s_waitcnt lgkmcnt(0)", blind=True), I(f"v_writelane_b32 v{V_ST}, s{S_ST}, {k}"), I(f"v_writelane_b32 v{V_ST}, s{S_ST+2}, {16+k}")]

    s("s_cmp_ge_u32 s2, 256\ns_cbranch_scc1 L_end")
    for i in stamp_ins(): s.add(i)
    s(f"""
    s_load_dwordx16 s[4:19], s[0:1], 0
    s_load_dwordx8 s[20:27], s[0:1], 64
    s_load_dwordx2 s[28:29], s[0:1], 96
    v_lshrrev_b32 v1, 6, v0
    v_and_b32 v2, 63, v0
    s_and_b32 s30, s2, 7
    v_readfirstlane_b32 s{S_WAVE}, v1
    s_lshr_b32 s31, s2, 3
    s_lshr_b32 s{S_BR}, s31, 4
    s_bfe_u32 s3, s31, 0x10003
    s_and_b32 s{S_B}, s31, 7
    s_lshl_b32 s{S_H}, s30, 1
    s_add_u32 s{S_H}, s{S_H}, s3
    s_lshl_b32 s{S_G}, s{S_BR}, 3
    s_add_u32 s{S_G}, s{S_G}, s{S_B}
    s_lshl_b32 s{S_W4K}, s{S_WAVE}, 12
    """)
    def rotation(dst, mode):
        if mode == 0: s(f"s_mov_b32 s{dst}, 0"); return
        if mode == 1: s(f"s_mul_i32 s{dst}, s3, 3\ns_add_u32 s{dst}, s{dst}, s{S_B}")
        if mode == 2: s(f"s_mov_b32 s{dst}, s{S_B}")
        if mode == 3: s(f"s_and_b32 s{dst}, s{S_B}, 1\ns_mul_i32 s{dst}, s{dst}, 3")
        if mode == 4: s(f"s_and_b32 s{dst}, s{S_B}, 3\ns_lshl_b32 s{dst}, s{dst}, 1")
        if mode == 5: s(f"s_xor_b32 s{dst}, s{S_B}, s3\ns_and_b32 s{dst}, s{dst}, 1\ns_mul_i32 s{dst}, s{dst}, 3")
        if mode == 6: s(f"s_xor_b32 s{dst}, s{S_B}, s3\ns_and_b32 s{dst}, s{dst}, 1\ns_mul_i32 s{dst}, s{dst}, 4")
        if mode == 7: s(f"s_lshl_b32 s{dst}, s3, 1\ns_add_u32 s{dst}, s{dst}, s{S_B}\ns_and_b32 s{dst}, s{dst}, 3\ns_lshl_b32 s{dst}, s{dst}, 1")
        s(f"s_cmp_ge_u32 s{dst}, 7\ns_cselect_b32 s{S_T0}, 7, 0\ns_sub_u32 s{dst}, s{dst}, s{S_T0}")
    rotation(S_QU, P["rot"]); rotation(S_OU, P["orot"])
    s(f"""
    s_mov_b32 s{S_OS}, s{S_OU}
    s_lshl_b32 s{S_T0}, s{S_B}, 3
    s_add_u32 s{S_T0}, s{S_T0}, s30
    s_lshl_b32 s{S_T1}, s{S_B}, 4
    s_add_u32 s{S_T1}, s{S_T1}, s{S_H}
    s_cmp_eq_u32 s{S_BR}, 0
    s_cselect_b32 s31, s{S_T0}, s{S_T1}
    s_lshl_b32 s31, s31, 19
    """)
    s(f"""
    v_lshrrev_b32 v3, 5, v2
    v_and_b32 v4, 31, v2
    v_lshlrev_b32 v{V_L16}, 4, v2
    v_lshrrev_b32 v5, 3, v2
    v_and_b32 v6, 7, v2
    v_lshrrev_b32 v7, 4, v2
    v_lshl_add_u32 v58, v1, 5, v5
    v_mul_u32_u24 v58, 896, v58
    v_xor_b32 v59, v6, v7
    v_lshl_add_u32 v{XD[0]}, v59, 4, v58
    v_xor_b32 v59, 4, v59
    v_lshl_add_u32 v{XD[1]}, v59, 4, v58
    v_add_u32 v{XD[2]}, {2*6144}, v{XD[0]}
    v_add_u32 v{XD[3]}, {3*6144}, v{XD[1]}
    v_add_u32 v{XD[1]}, 6144, v{XD[1]}
    """)
    s(f"""
    v_lshlrev_b32 v59, 1, v7
    v_xor_b32 v59, v59, v6
    v_lshl_add_u32 v{WD[0]}, v59, 4, v58
    v_add_u32 v{WD[1]}, 6144, v{WD[0]}
    v_add_u32 v{WD[2]}, {2*6144}, v{WD[0]}
    v_add_u32 v{WD[3]}, {3*6144}, v{WD[0]}
    """)
    s(f"""
    v_lshl_add_u32 v5, v1, 3, v3
    v_and_b32 v6, 1, v1
    v_lshl_add_u32 v6, v6, 2, v3
    v_lshlrev_b32 v6, 1, v6
    v_xor_b32 v6, v6, v4
    v_lshlrev_b32 v6, 4, v6
    v_xor_b32 v59, 64, v6
    v_lshl_add_u32 v{VD[0]}, v5, 9, v6
    v_lshl_add_u32 v{VD[1]}, v5, 9, v59
    v_lshl_add_u32 v{QD[0]}, v5, 13, v6
    v_lshl_add_u32 v{QD[1]}, v5, 13, v59
    v_add_u32 v{QD[2]}, {2*15360}, v{QD[0]}
    v_add_u32 v{QD[3]}, {3*15360}, v{QD[1]}
    v_add_u32 v{QD[1]}, 15360, v{QD[1]}
    """)
    s(f"""
    v_lshl_add_u32 v6, v1, 2, v3
    v_xor_b32 v6, v6, v4
    v_lshlrev_b32 v6, 4, v6
    v_xor_b32 v59, 32, v6
    v_lshl_add_u32 v{KD[0]}, v5, 9, v6
    v_lshl_add_u32 v{KD[1]}, v5, 9, v59
    """)
    s("s_waitcnt lgkmcnt(0)")
    s(f"""
    s_cmp_eq_u32 s{S_BR}, 0
    s_cselect_b32 s{S_X}, s4, s14
    s_cselect_b32 s{S_X+1}, s5, s15
    s_cselect_b32 s{S_WQ}, s10, s20
    s_cselect_b32 s{S_WQ+1}, s11, s21
    s_cselect_b32 s{S_K}, s6, s16
    s_cselect_b32 s{S_K+1}, s7, s17
    s_cselect_b32 s{S_V}, s8, s18
    s_cselect_b32 s{S_V+1}, s9, s19
    s_cselect_b32 s{S_WO}, s12, s22
    s_cselect_b32 s{S_WO+1}, s13, s23
    s_mul_i32 s{S_T0}, s{S_B}, 114688
    s_add_u32 s{S_X}, s{S_X}, s{S_T0}
    s_addc_u32 s{S_X+1}, s{S_X+1}, 0
    s_mov_b32 s{S_X+2}, 114688
    s_mov_b32 s{S_X+3}, 0x20000
    s_lshl_b32 s{S_T0}, s{S_H}, 9
    s_add_u32 s{S_WQ}, s{S_WQ}, s{S_T0}
    s_addc_u32 s{S_WQ+1}, s{S_WQ+1}, 0
    s_sub_u32 s{S_WQ+2}, {448*8192}, s{S_T0}
    s_mov_b32 s{S_WQ+3}, 0x20000
    """)

    def dma(tile, slot, regs, srd, soff, aux, pre=[], post=[], **meta):
        l = [I(f"buffer_load_dwordx4 v{regs[i]}, s[{srd}:{srd+3}], {soff} offen offset:{1024*i} {aux} lds".replace("  ", " "),
               tile=tile, slot=slot, **meta) for i in range(4)]
        return ([I(x) for x in pre] + [I(f"s_add_u32 m0, s{S_W4K}, {slot*16384}")], l, [I(x) for x in post])
    WQ_SLOT = [6, 7, 4, 2, 5, 3]
    nxt = lambda r: [f"s_add_u32 s{r}, s{r}, 1", f"s_cmp_eq_u32 s{r}, 7", f"s_cselect_b32 s{r}, 0, s{r}"]
    def dma_x(u): return dma(f"X{u}", 8 + (u & 1), XD, S_X, f"s{S_T0}", P["x_aux"], pre=[f"s_lshl_b32 s{S_T0}, s{S_QU}, 7"])
    def dma_wq(j):
        if j & 1 == 0: return dma(f"WQ{j}", WQ_SLOT[j % 6], QD, S_WQ, f"s{S_T1}", P["wq_aux"], pre=[f"s_lshl_b32 s{S_T1}, s{S_QU}, 19"])
        return dma(f"WQ{j}", WQ_SLOT[j % 6], QD, S_WQ, f"s{S_T1}", P["wq_aux"], pre=[f"s_add_u32 s{S_T1}, s{S_T1}, 0x40000"], post=nxt(S_QU))
    def dma_k(t): return dma(f"K{t}", t % 4, (KD + [68, 69]) if P["kperm"] else KD * 2, S_K, f"s{S_KOFF}", P["kv_aux"], post=[f"s_add_u32 s{S_KOFF}, s{S_KOFF}, {ADV}"] + ([f"s_and_b32 s{S_KOFF}, s{S_KOFF}, 0x7ffff"] if P["krot"] else []))
    def dma_v(t): return dma(f"V{t}", 4 + t % 4, (VD + [70, 71]) if P["kperm"] else VD * 2, S_V, f"s{S_VOFF}", P["kv_aux"], post=[f"s_add_u32 s{S_VOFF}, s{S_VOFF}, {ADV}"] + ([f"s_and_b32 s{S_VOFF}, s{S_VOFF}, 0x7ffff"] if P["krot"] else []))
    WO_SLOT = [8, 9, 0, 1, 2, 4, 3, 5, 6, 7, 8, 9, 0, 1]
    WOFF = list(range(4, 18)); SOFF = list(range(18, 24)) + [92]
    def dma_wo(j): return dma(f"WO{j}", WO_SLOT[j], WD, S_WO, f"s{WOFF[j]}", P["wo_aux"], unread_ok=True)
    def flat(d): return d[0] + d[1] + d[2]

    for d in (dma_x(0), dma_wq(0), dma_wq(1)) + ((dma_x(1),) if P["x1e"] else ()):
        for i in flat(d): s.add(i)
    if P["wpf"]:
        s(f"""
        s_lshl_b32 s{S_T0}, s{S_B}, 2
        s_add_u32 s{S_T0}, s{S_T0}, s{S_WAVE}
        s_mul_i32 s{S_T0}, s{S_T0}, {12*8192}
        s_add_u32 s{S_T0}, s{S_T0}, {64*8192}
        v_min_u32 v59, 47, v2
        v_lshrrev_b32 v60, 2, v59
        v_and_b32 v59, 3, v59
        v_lshlrev_b32 v59, 7, v59
        v_lshl_add_u32 v59, v60, 13, v59
        buffer_load_dword v{V_CP+2}, v59, s[{S_WQ}:{S_WQ+3}], s{S_T0} offen
        """)
    if P["cpf"]:
        s(f"""
        s_getpc_b64 s[{S_PC}:{S_PC+1}]
        L_pc:
        s_lshl_b32 s{S_T0}, s{S_B}, 2
        s_add_u32 s{S_T0}, s{S_T0}, s{S_WAVE}
        s_lshl_b32 s{S_T0}, s{S_T0}, 11
        v_and_b32 v{V_CP}, 15, v2
        v_lshl_add_u32 v{V_CP}, v{V_CP}, 7, s{S_T0}
        v_min_u32 v{V_CP}, (L_codeend-L_pc-4), v{V_CP}
        """)
        s(f"global_load_dword a255, v{V_CP}, s[{S_PC}:{S_PC+1}]")
    s(f"""
    s_add_u32 s{S_K}, s{S_K}, s31
    s_addc_u32 s{S_K+1}, s{S_K+1}, 0
    s_mov_b32 s{S_K+2}, 0x80000
    s_mov_b32 s{S_K+3}, 0x20000
    s_add_u32 s{S_V}, s{S_V}, s31
    s_addc_u32 s{S_V+1}, s{S_V+1}, 0
    s_mov_b32 s{S_V+2}, 0x80000
    s_mov_b32 s{S_V+3}, 0x20000
    s_mul_i32 s{S_T0}, s{S_H}, 229376
    s_add_u32 s{S_WO}, s{S_WO}, s{S_T0}
    s_addc_u32 s{S_WO+1}, s{S_WO+1}, 0
    s_mov_b32 s{S_WO+2}, 229376
    s_mov_b32 s{S_WO+3}, 0x20000
    s_mul_i32 s{S_T0}, s{S_G}, {PART_G}
    s_add_u32 s{S_T0}, s{S_T0}, {P['wsoff']}
    s_add_u32 s{S_P}, s{S_WS}, s{S_T0}
    s_addc_u32 s{S_P+1}, s{S_WS+1}, 0
    s_mov_b32 s{S_P+2}, {PART_G}
    s_mov_b32 s{S_P+3}, 0x20000
    s_mov_b32 s{S_OUT}, s24
    s_mov_b32 s{S_OUT+1}, s25
    s_mov_b32 s{S_OUT+2}, {8*128*896*2}
    s_mov_b32 s{S_OUT+3}, 0x20000
    s_mul_i32 s{S_PB}, s{S_H}, {PART_H}
    s_mul_i32 s{S_T0}, s{S_WAVE}, {PART_W}
    s_add_u32 s{S_PB}, s{S_PB}, s{S_T0}
    s_lshl_b32 s{S_T0}, s{S_G}, 12
    s_add_u32 s{S_T0}, s{S_T0}, {FLAG_OFF}
    s_add_u32 s{S_FL}, s{S_WS}, s{S_T0}
    s_addc_u32 s{S_FL+1}, s{S_WS+1}, 0
    s_bfe_u32 s{S_KOFF}, s31, {(P['fa'][1] << 16) | (19 + P['fa'][0]):#x}
    s_lshl_b32 s{S_KOFF}, s{S_KOFF}, {P['fa'][2]}
    s_bfe_u32 s{S_VOFF}, s31, {(P['fb'][1] << 16) | (19 + P['fb'][0]):#x}
    s_lshl_b32 s{S_VOFF}, s{S_VOFF}, {P['fb'][2]}
    s_cmp_eq_u32 s{S_BR}, 0
    s_cselect_b32 s{S_KOFF}, s{S_KOFF}, s{S_VOFF}
    s_mov_b32 s{S_VOFF}, s{S_KOFF}
    s_mov_b32 s{S_C}, {f2u(math.log2(math.e)/16.0):#x}
    s_mov_b32 s{S_C+1}, s{S_C}
    s_mov_b32 s{S_THR}, {f2u(P['thr']):#x}
    s_lshl_b32 s{S_G4}, s{S_G}, 4
    s_mov_b32 s{S_ONE}, 1
    s_mov_b32 s{S_LO}, 0x3f80
    s_mov_b32 s{S_HI}, 0x3f800000
    s_cmp_eq_u32 s{S_BR}, {P.get('blead', 0)}
    s_cselect_b32 s{S_BT}, -16, {P.get('buntil', 7) - 7}
    """)
    if P["kperm"]:
        s(f"""
        v_mul_u32_u24 v59, 3072, v1
        v_sub_u32 v{KD[0]}, v{KD[0]}, v59
        v_sub_u32 v{KD[1]}, v{KD[1]}, v59
        v_sub_u32 v{VD[0]}, v{VD[0]}, v59
        v_sub_u32 v{VD[1]}, v{VD[1]}, v59
        v_add_u32 v68, {2*3072}, v{KD[0]}
        v_add_u32 v69, {3*3072}, v{KD[1]}
        v_add_u32 v{KD[1]}, 3072, v{KD[1]}
        v_add_u32 v70, {2*3072}, v{VD[0]}
        v_add_u32 v71, {3*3072}, v{VD[1]}
        v_add_u32 v{VD[1]}, 3072, v{VD[1]}
        """)
    s(f"""
    v_and_b32 v58, 15, v2
    s_lshl_b32 s{S_T0}, s{S_H}, 8
    v_lshl_add_u32 v{V_FLG}, v4, 2, s{S_T0}
    s_lshl_b32 s{S_T0}, s{S_H}, 2
    v_lshl_add_u32 v{V_FLG2}, v58, 8, s{S_T0}
    v_mov_b32 v{V_POLL}, 0
    v_mov_b32 v{V_DBG}, s{S_G4}
    v_mov_b32 v{V_ONE}, 1
    """)
    s(f"""
    v_bfe_u32 v5, v2, 2, 2
    v_and_b32 v6, 3, v2
    v_lshl_add_u32 v59, v7, 3, v5
    v_lshlrev_b32 v59, 9, v59
    v_lshl_add_u32 v59, v6, 3, v59
    v_and_b32 v60, 1, v7
    v_lshl_add_u32 v60, v60, 2, v5
    """)
    for j in range(8):
        s(f"""
        v_xor_b32 v61, {j}, v60
        v_lshl_add_u32 v{TA0[j]}, v61, 5, v59
        v_add_u32 v{TA1[j]}, 0x10000, v{TA0[j]}
        """)
    s(f"""
    v_lshrrev_b32 v59, 1, v58
    v_xor_b32 v59, v59, v7
    v_lshlrev_b32 v60, 7, v58
    v_lshl_add_u32 v60, v1, 12, v60
    v_add_u32 v60, 0x20000, v60
    v_lshl_add_u32 v{XA[0]}, v59, 4, v60
    v_xor_b32 v{XA[1]}, 64, v{XA[0]}
    """)
    kv0 = [dma_k(n) for n in range(P["eki"])]
    for d in tuple(kv0[:1]) + (() if P["x1e"] else (dma_x(1),)) + (dma_wq(2),) + tuple(kv0[1:]) + (dma_wq(3),):
        for i in flat(d): s.add(i)
    lsc = Stream()
    for u in range(7):
        lsc(f"""
        s_add_u32 s30, s{S_OU}, {u}
        s_sub_u32 s31, s30, 7
        s_min_u32 s30, s30, s31
        s_lshl_b32 s{WOFF[2*u]}, s30, 7
        s_add_u32 s{WOFF[2*u+1]}, s{WOFF[2*u]}, 114688
        s_lshl_b32 s30, s30, 12
        s_add_u32 s{SOFF[u]}, s30, s{S_PB}
        """)
    for st, (u0, n) in enumerate(((0, P["n1"]), (P["n1"], 7 - P["n1"]))):
        if n == 4: lsc(f"s_mov_b32 s3, s{S_H}")
        else: lsc(f"s_lshl_b32 s3, s{S_WAVE}, 2\ns_add_u32 s3, s3, s{S_H}\ns_and_b32 s3, s3, 15")
        lsc(f"""
        s_lshr_b32 s30, s3, 2
        s_add_u32 s30, s30, s{S_OU}
        s_add_u32 s30, s30, {u0}
        s_sub_u32 s31, s30, 7
        s_min_u32 s30, s30, s31
        s_lshl_b32 s31, s30, 2
        s_and_b32 s71, s3, 3
        s_add_u32 s31, s31, s71
        s_lshl_b32 s31, s31, 10
        s_mul_i32 s{S_RR[st]}, s{S_WAVE}, {PART_W}
        s_add_u32 s{S_RR[st]}, s{S_RR[st]}, s31
        s_lshl_b32 s31, s{S_B}, 2
        s_add_u32 s31, s31, s{S_WAVE}
        s_lshl_b32 s31, s31, 1
        s_bfe_u32 s71, s3, 0x10001
        s_add_u32 s31, s31, s71
        s_mul_i32 s31, s31, {16*1792}
        s_lshl_b32 s30, s30, 1
        s_and_b32 s71, s3, 1
        s_add_u32 s30, s30, s71
        s_lshl_b32 s30, s30, 6
        s_add_u32 s31, s31, s30
        s_mul_i32 s30, s{S_BR}, 896
        s_add_u32 s{S_RO[st]}, s31, s30
        s_lshr_b32 s{S_RA[st]}, s3, 2
        s_xor_b32 s{S_RA[st]}, s{S_RA[st]}, {n}
        """)
    late = Stream()
    late(f"""
    v_lshrrev_b32 v59, 2, v58
    v_and_b32 v60, 3, v58
    v_lshl_add_u32 v59, v59, 3, v60
    v_lshlrev_b32 v59, 9, v59
    v_xor_b32 v60, v58, v7
    """)
    for k in range(4):
        late(f"v_xor_b32 v61, {4*k}, v60\nv_lshl_add_u32 v{KA[k]}, v61, 4, v59")
    late(f"""
    v_lshl_add_u32 v59, v7, 2, v5
    v_bfe_u32 v60, v59, 1, 2
    v_lshlrev_b32 v59, 7, v59
    v_lshl_add_u32 v59, v6, 3, v59
    """)
    for k in range(4):
        late(f"v_xor_b32 v61, {k}, v60\nv_lshl_add_u32 v{WA[0][k]}, v61, 5, v59")
    late(f"""
    v_mul_u32_u24 v59, 1792, v58
    v_lshl_add_u32 v{V_OUT}, v7, 4, v59
    """)

    PR = []; head = Pair()
    def pr(p):
        if p < 0: return head
        while len(PR) <= p: PR.append(Pair())
        return PR[p]
    npair = [0]
    def frag(p): return A_F + 4 * (p % NF)
    def add_pair(m0, m1):
        p = npair[0]; npair[0] += 1
        pr(p).m = [I(m0), I(m1)]
        return p
    def mf(d, a, b, c): return f"v_mfma_f32_16x16x32_bf16 {vr(d,4)}, {a}, {b}, {c}"
    def rd_at(p, bp, l, bulk=None, LA=LA):
        q = p - LA
        if bulk is not None and q <= bp: bulk.extend(l)
        else: pr(max(q, bp)).reads.extend(l)
    def tread(p, tile, slot, areg, off):
        f = frag(p)
        return [I(f"ds_read_b64_tr_b16 {ar(f,2)}, v{areg} offset:{off}", tile=tile, slot=slot),
                I(f"ds_read_b64_tr_b16 {ar(f+2,2)}, v{areg} offset:{off+2048}", tile=tile, slot=slot)]
    def barrier(bp, tiles):
        pr(bp - 1).vmtags.extend(tiles); pr(bp).sc0.insert(0, I("s_barrier"))
    def place_dma(ds, poss):
        q = 0
        for pre, loads, post in ds:
            for n, ld in enumerate(loads):
                p = poss[q]; q += 1
                if n == 0:
                    pr(p - 1).sc0.extend(pre)
                pr(p).mem.append(ld)
                if n == 3 and post:
                    if len(post) == 2: pr(p + 1).sc0.append(post[0]); pr(p + 2).sc0.append(post[1])
                    else: pr(p + 1).sc0.extend(post)
    def place(l, p0, p1, pace=True, win=8):
        fr = [max(0, pr(p).free()) for p in range(p0, p1 + 1)]
        F = sum(fr); C = sum(cost(i) for i in l); cum = 0; done = 0
        todo = list(range(len(l))); rec = []
        dep = lambda a, b: (a.wr & (b.rd | b.wr)) or (a.rd & b.wr)
        for n, p in enumerate(range(p0, p1 + 1)):
            cum += fr[n]
            while todo:
                if pace and F > C and done > C * cum / F: break
                pick = None
                for x, k in enumerate(todo[:win]):
                    if cost(l[k]) > pr(p).free(): continue
                    if any(dep(l[y], l[k]) for y in todo[:x]): continue
                    if any((o.wr & l[k].rd) for o in pr(p).ops): continue
                    if cost(l[k]) == 2 and len(pr(p).ops) >= 2: continue
                    pick = k; break
                if pick is None: break
                todo.remove(pick); pr(p).ops.append(l[pick]); done += cost(l[pick]); rec.append((n, pick))
        if todo:
            if P.get("verbose"): print("overflow", p0, p1, len(todo))
            for k in todo: pr(p1).ops.append(l[k]); rec.append((p1 - p0, k))
        return rec

    kvq = [dma_k(0), dma_k(1), dma_v(0)] + ([dma_k(2)] if P["PDK"] >= 2 else []) + ([dma_v(1)] if P["PDV"] >= 2 else []) + ([dma_k(3)] if P["PDK"] >= 3 else [])
    kvq = kvq[P["eki"]:]
    for j in range(14):
        u = j >> 1; slot = WQ_SLOT[j % 6]; ta = TA1 if slot >= 4 else TA0; base = (slot & 3) * 16384
        pb = npair[0]; bp = pb - LA
        bulk = None
        if j == 0:
            head.post += [I("@waitvm WQ0 X0"), I("s_barrier")]; bulk = head.post; bp = -1
        else: barrier(bp, [f"WQ{j}", f"X{u}"] + (["WQ13"] if P["bm"] and j == 12 else []))
        if P.get("qstamps") and j in P["qstamps"]: (head.post if j == 0 else pr(bp).post).extend(stamp_ins())
        if j & 1 == 0:
            for q in range(4):
                xr = I(f"ds_read_b128 {ar(A_X + 16*(u&1) + 4*q, 4)}, v{XA[q>>1]} offset:{(u&1)*16384 + (q&1)*2048}", tile=f"X{u}", slot=8 + (u & 1), private=True)
                if j == 0: head.post.append(xr)
                else: pr(bp + (q // 2 if P["bm"] and j == 12 else q)).reads.append(xr)
        for jj in range(16):
            p = npair[0]
            j2, blk = j, jj
            if P["bm"] and j >= 12:
                n = (j - 12) * 16 + jj; j2 = 12 + (n & 1); blk = n >> 1
            slot = WQ_SLOT[j2 % 6]; ta = TA1 if slot >= 4 else TA0; base = (slot & 3) * 16384
            rd_at(p, bp, tread(p, f"WQ{j2}", slot, ta[blk & 7], base + (blk >> 3) * 256), bulk, P["qla"][u] if isinstance(P.get("qla"), tuple) else P.get("qla", LA))
            xb = A_X + 16 * (u & 1) + 8 * (j2 & 1)
            add_pair(*[mf(O0 + 8*blk + 4*qb, ar(frag(p), 4), ar(xb + 4*qb, 4), "0" if j == 0 else vr(O0 + 8*blk + 4*qb, 4)) for qb in range(2)])
        b0 = pb - LA
        if j & 1 == 0:
            ds = []
            if j + 4 <= 13:
                ds = [dma_wq(j + 4), dma_x(u + 2), dma_wq(j + 5)]
                if P.get("xlast"):
                    dx = ds[1]; ds = [ds[0], (dx[0][:1] + ds[2][0], ds[2][1], ds[2][2]), (dx[0][1:], dx[1], dx[2])]
                if j in P["ek"]: ds.insert(P.get("ekpos", 0), kvq.pop(0))
            elif j == 10: ds = kvq[:P["kv10"]]
            elif j == 12: ds = kvq[P["kv10"]:P["kv10"] + P["kv12"]]
            poss = [b0 + 2 + (n * 30) // (4 * max(len(ds), 1)) for n in range(16)]
            if len(ds) == 4: poss = [b0 + 1 + 2 * n for n in range(16)]
            if len(ds) == 3 and P.get("xlast") and j + 4 <= 13: poss = [b0 + 2 + 4 * n for n in range(4)] + [b0 + 17 + 2 * n for n in range(8)]
            if j == 0 and not P.get("xlast"): poss = [1 + (n * 26) // 12 for n in range(12)] if len(ds) == 3 else [1, 2, 3, 4] + [6 + (n * 22) // 12 + (n // 4) * 0 for n in range(12)]
            if j == 0 and P.get("xlast"): poss = [1, 4, 7, 10] + poss[4:]
            place_dma(ds, poss)
        if j == 1:
            pr(pb).post += [I(f"s_cmp_lg_u32 s{S_WAVE}, 0"), I("s_cbranch_scc1 L_noclr"), I("s_mov_b32 exec_hi, 0"),
                            I(f"global_atomic_swap v{V_T1}, v{V_FLG}, v{V_POLL}, s[{S_FL}:{S_FL+1}] sc0", untracked=True),
                            I("s_mov_b64 exec, -1"), I("L_noclr:")]
        if j == 8:
            if P["ann"] == "s":
                pr(pb).post += [I(f"s_cmp_lg_u32 s{S_WAVE}, 0"), I("s_cbranch_scc1 L_noann"),
                                I(f"s_atomic_add s{S_ONE}, s[{S_DBG}:{S_DBG+1}], s{S_G4}"), I("L_noann:")]
            else:
                pr(pb).post += [I(f"s_cmp_lg_u32 s{S_WAVE}, 0"), I("s_cbranch_scc1 L_noann"), I("s_mov_b64 exec, 1"),
                                I(f"global_atomic_add v{V_DBG}, v{V_ONE}, s[{S_DBG}:{S_DBG+1}]", untracked=True), I("s_mov_b64 exec, -1"), I("L_noann:")]
    pq_end = npair[0]
    place(late.ins, 40, 100)
    q = 2
    for i in lsc.ins:
        while pr(q).sc0: q += 1
        pr(q).sc0.append(i)
    assert q < 200

    def softmax_ops(t):
        S = SB[t & 1]; Pp = PB[t & 1]; l = []
        T = lambda e: TT[e & 7]
        for e in range(17):
            if e < 16: l.append(I(f"v_exp_f32 v{T(e)}, v{S+e}"))
            d = e - 1
            if d >= 0:
                lt = V_LT[d >> 3]
                if d & 7 == 1: l.append(I(f"v_add_f32 v{lt}, v{T(d-1)}, v{T(d)}"))
                elif d & 7 > 1: l.append(I(f"v_add_f32 v{lt}, v{lt}, v{T(d)}"))
                if d & 1: l.append(I(f"v_cvt_pk_bf16_f32 v{Pp+(d>>1)}, v{T(d-1)}, v{T(d)}"))
        return l
    def allmax(x, t):
        return [I(f"v_mov_b32 v{t}, v{x}"), I(f"v_permlane32_swap_b32 v{x}, v{t}"), I(f"v_max_f32 v{x}, v{x}, v{t}"),
                I(f"v_mov_b32 v{t}, v{x}"), I(f"v_permlane16_swap_b32 v{x}, v{t}"), I(f"v_max_f32 v{x}, v{x}, v{t}")]
    def rowmax(S, x):
        return [I(f"v_max3_f32 v{x}, v{S}, v{S+1}, v{S+2}"), I(f"v_max3_f32 v{x}, v{x}, v{S+3}, v{S+4}"),
                I(f"v_max3_f32 v{x}, v{x}, v{S+5}, v{S+6}"), I(f"v_max_f32 v{x}, v{x}, v{S+7}")]
    def inter(a, b):
        o = []
        for x, y in zip(a, b): o += [x, y]
        return o
    def qk(t, bp, bulk=None):
        slot = t % 4; S = SB[t & 1]
        for q in range(8):
            for kb in range(2):
                p = npair[0]
                rd_at(p, bp, [I(f"ds_read_b128 {ar(frag(p),4)}, v{KA[q&3]} offset:{slot*16384 + (q>>2)*256 + kb*2048}", tile=f"K{t}", slot=slot)], bulk)
                add_pair(*[mf(S + 8*qb + 4*kb, ar(frag(p), 4), ar(A_Q + 8*q + 4*qb, 4),
                              (("0" if t == 0 else vr(NM + 4*qb, 4)) if q == 0 else vr(S + 8*qb + 4*kb, 4))) for qb in range(2)])
    def pv(t, bp, bulk=None):
        slot = 4 + t % 4
        for jj in range(16):
            p = npair[0]
            rd_at(p, bp, tread(p, f"V{t}", slot, TA1[jj & 7], (t % 4) * 16384 + (jj >> 3) * 256), bulk)
            add_pair(*[mf(O0 + 8*jj + 4*qb, ar(frag(p), 4), vr(PB[t & 1] + 4*qb, 4), "0" if t == 0 else vr(O0 + 8*jj + 4*qb, 4)) for qb in range(2)])

    def qconv(q, pk=True):
        l = []
        for qb in range(2):
            X = O0 + 16*q + 4*qb; Y = X + 8
            if pk: l += [I(f"v_pk_mul_f32 {vr(r,2)}, {vr(r,2)}, s[{S_C}:{S_C+1}]") for r in (X, X + 2, Y, Y + 2)]
            else: l += [I(f"v_mul_f32 v{r}, s{S_C}, v{r}") for r in list(range(X, X + 4)) + list(range(Y, Y + 4))]
        for qb in range(2):
            X = O0 + 16*q + 4*qb; Y = X + 8
            l += [I(f"v_cvt_pk_bf16_f32 v{X}, v{X}, v{X+1}"), I(f"v_cvt_pk_bf16_f32 v{Y}, v{Y}, v{Y+1}"),
                  I(f"v_cvt_pk_bf16_f32 v{X+1}, v{X+2}, v{X+3}"), I(f"v_cvt_pk_bf16_f32 v{Y+1}, v{Y+2}, v{Y+3}")]
        for sw in ("32", "16"):
            for qb in range(2):
                X = O0 + 16*q + 4*qb; Y = X + 8
                l += [I(f"v_permlane{sw}_swap_b32 v{X}, v{Y}"), I(f"v_permlane{sw}_swap_b32 v{X+1}, v{Y+1}")]
        for qb in range(2):
            X = O0 + 16*q + 4*qb; Y = X + 8
            l += [I(f"v_accvgpr_write_b32 a{A_Q+8*q+4*qb+n}, v{r}") for n, r in enumerate((X, X + 1, Y, Y + 1))]
        return l
    barrier(pq_end - LA, ["K0"])
    p0 = npair[0]
    qk(0, pq_end - LA)
    rest = kvq[P["kv10"] + P["kv12"]:]
    tr = rest + ([dma_wo(0), dma_wo(1)] if P["ewo"] else [])
    for d in tr[:-2] if len(tr) > 2 else []: pr(pq_end - 1).post += flat(d)
    place_dma(tr[-2:], [p0 + 1 + 2 * n for n in range(8)])
    place(qconv(0, False), pq_end - (26 if P["bm"] else 12), pq_end - 1, pace=False)
    pr(pq_end - 1).post += stamp_ins()
    for q in range(1, 8): pr(pq_end - 1).post += qconv(q)[:8]
    for q in range(1, 8):
        l = qconv(q)[8:]; h = len(l) // 2
        pr(p0 + 2*q - 2).ops += l[:h]; pr(p0 + 2*q - 1).ops += l[h:]
    pz = npair[0] - 1
    init = inter(rowmax(SB[0], V_T0) + allmax(V_T0, TT[0]), rowmax(SB[0] + 8, V_T1) + allmax(V_T1, TT[1]))
    for qb, x in enumerate((V_T0, V_T1)):
        init += [I(f"v_sub_f32 v{NM+4*qb+n}, 0, v{x}") for n in range(4)]
    for qb, x in enumerate((V_T0, V_T1)):
        init += [I(f"v_sub_f32 v{SB[0]+8*qb+n}, v{SB[0]+8*qb+n}, v{x}") for n in range(8)]
    init += [I(f"v_mov_b32 v{V_L[0]}, 0"), I(f"v_mov_b32 v{V_L[1]}, 0")]
    bulk0 = []
    pr(pz).post += [I("@waitvm K1 V0"), I("s_barrier"), I("@bulk0")] + init + stamp_ins()
    wa_late = [I(f"v_add_u32 v{WA[w][k]}, {0x10000*w}, v{WA[0][k]}") for w in (1, 2) for k in range(4)]

    stubs = []; step_start = []
    bp = pz
    for t in range(32):
        ps = npair[0]; step_start.append(ps)
        inloop = 1 <= t <= 28
        lab = f"{t%4}" if inloop else f"p{t}"
        if t <= 4 or t > 28: stubs.append((lab, t & 1))
        chk = [I(f"v_max_f32 v{V_T0}, v{V_LT[0]}, v{V_LT[1]}"), I(f"v_cmp_nge_f32 vcc, s{S_THR}, v{V_T0}")]
        br = [I(f"s_cbranch_vccnz L_fix{lab}"), I(f"L_ret{lab}:")]
        acc = [I(f"v_add_f32 v{V_L[qb]}, v{V_L[qb]}, v{V_LT[qb]}") for qb in range(2)]
        bulk31 = []
        if t < 31:
            qk(t + 1, bp, bulk0 if t == 0 else None)
            pp = npair[0]
            pv(t, bp)
        else:
            pp = npair[0]
            pv(t, bp, bulk31)
            pr(ps - 1).post += chk + br + [I("@waitvm V31"), I("s_barrier")] + bulk31
        pe = npair[0]
        nb = pe - LA
        if t < 30: barrier(nb, [f"K{t+2}", f"V{t+1}"])
        if P.get("tap") is not None and inloop:
            pr(nb - 1).sc0.append(I(f"s_cmp_{'ge' if len(P['tap']) > 2 else 'lt'}_i32 s{S_CNT}, {P['tap'][0] - 7}"))
            pr(nb - 1).sc1.extend([I(f"s_cbranch_scc1 L_nt{lab}"), I(f"s_waitcnt vmcnt({P['tap'][1]})", blind=True), I(f"L_nt{lab}:")])
        ds = []
        tv = t + P["PDV"]; tk = t + 1 + P["PDK"]
        if tv <= 31: ds.append(dma_v(tv))
        if tk <= 31 or inloop: ds.append(dma_k(tk))
        if P["PDK"] <= P["PDV"] and len(ds) == 2: ds = ds[::-1]
        plan = {29: [2], 30: [3, 4, 5], 31: [6]} if P["ewo"] else {29: [0], 30: [1, 2], 31: [3]}
        ds += [dma_wo(x) for x in plan.get(t, [])]
        dsp = P["dsp"] if len(ds) <= 2 else 2
        late = P.get("late", 0)
        if late and t <= 29:
            early = [ps + 2 * late - LA + 3 + dsp * n for n in range(8 - late)]
            assert early[-1] < nb - 1
            poss = early + [nb + 1 + 2 * n for n in range(late)]
        elif late:
            poss = [ps + 2 * late - LA + 3 + 2 * n for n in range(12)] if t == 30 else [ps + 1 + 2 * n for n in range(12)]
        else: poss = [ps + 1 + dsp * n for n in range(12)]
        place_dma(ds, poss)
        if inloop and t % 4 == 0:
            pr(pe - 1).sc0.append(I(f"s_add_u32 s{S_CNT}, s{S_CNT}, 1"))
            pr(pe - 1).post.append(I("s_cbranch_scc0 L_loop"))
        if P.get("lstamps"):
            pr(ps + 2).post += [I("s_waitcnt lgkmcnt(0)", blind=True), I(f"s_memrealtime s[{S_ST}:{S_ST+1}]"), I(f"s_memtime s[{S_ST+2}:{S_ST+3}]"),
                I("v_mov_b32_dpp v70, v70 wave_shr:1 row_mask:0xf bank_mask:0xf"), I("v_mov_b32_dpp v71, v71 wave_shr:1 row_mask:0xf bank_mask:0xf"),
                I("s_waitcnt lgkmcnt(0)", blind=True), I(f"v_writelane_b32 v70, s{S_ST}, 0"), I(f"v_writelane_b32 v71, s{S_ST+2}, 0")]
        if t == 0: pr(pe - 2).sc0.append(I(f"s_mov_b32 s{S_CNT}, -7"))
        if P["cpf"] >= 2 and inloop and t % 4 == 1:
            pr(pp + 5).mem.append(I(f"global_load_dword v{V_CP+1}, v{V_CP}, s[{S_PC}:{S_PC+1}]", nodep=True))
        yield_info = (t, ps, pp, pe, chk, br, acc)
        step_start[-1] = yield_info
        bp = nb if t < 30 else pe - 1
    pm_end = npair[0]

    ACC = [SB[0], O0 + 64]
    otile = []
    for j in range(14):
        u = j >> 1; kh = j & 1; slot = WO_SLOT[j]; wa = WA[slot >> 2]; base = (slot & 3) * 16384
        pb = npair[0]; bp = pb - LA; otile.append(pb)
        if P["fewb"]:
            cover = {0: range(0, 6), 3: [], 6: range(6, 9), 9: range(9, 14)}
            if j in cover: barrier(bp, [f"WO{x}" for x in cover[j]])
        else: barrier(bp, [f"WO{j}"])
        for q in range(4):
            for jn in range(4):
                p = npair[0]
                rd_at(p, bp, tread(p, f"WO{j}", slot, wa[jn], base + q * 4096))
                a = ACC[u & 1] + 4 * jn
                add_pair(*[mf(a + 16*qb, ar(frag(p), 4), vr(O0 + 8*(4*kh + q) + 4*qb, 4), "0" if (kh == 0 and q == 0) else vr(a + 16*qb, 4)) for qb in range(2)])
        if P["ewo"]:
            ds = [j + 7] if j <= 6 else []
            if P["fewb"]: ds = {0: [7], 1: [8], 3: [9], 4: [10], 5: [11], 6: [12], 7: [13]}.get(j, [])
            place_dma([dma_wo(x) for x in ds], [bp + 1 + 4 * n for n in range(4)])
        else:
            ds = {0: [4, 5], 1: [6, 7], 2: [8, 9], 3: [10, 11], 4: [12], 5: [13]}.get(j, [])
            place_dma([dma_wo(x) for x in ds], [bp + 1 + 2 * n for n in range(8)])

    for (t, ps, pp, pe, chk, br, acc) in step_start:
        if t < 31: pr(pp - 1).sc0.extend(br)
        place(acc, pp, pp + 1, pace=False)
    w0 = step_start[9][2] + P["sm_start"]
    rec = place(softmax_ops(10) + step_start[10][4], w0, step_start[10][2] - 2)
    for t in range(1, 31):
        if t == 10: continue
        l = softmax_ops(t) + step_start[t][4]
        for n, k in rec: pr(step_start[t-1][2] + P["sm_start"] + n).ops.append(l[k])
    l = softmax_ops(0) + step_start[0][4]
    nrel = step_start[1][1] - (step_start[0][2] + P["sm_start"])
    for n, k in rec:
        if n < nrel: pr(pz).post.append(l[k])
        else: pr(step_start[0][1] + n - nrel).ops.append(l[k])
    place(softmax_ops(31), step_start[30][2] + P["sm_start"], step_start[30][3] - 1, pace=False)
    place(wa_late, step_start[0][1], step_start[0][3] - 1, pace=False)
    pr(step_start[29][2]).mem.append(I(f"global_load_dword v{V_POLL}, v{V_DBG}, s[{S_DBG}:{S_DBG+1}] sc1", tag="HS"))
    def allsum(x, t):
        return [I(f"v_mov_b32 v{t}, v{x}"), I(f"v_permlane32_swap_b32 v{x}, v{t}"), I(f"v_add_f32 v{x}, v{x}, v{t}"),
                I(f"v_mov_b32 v{t}, v{x}"), I(f"v_permlane16_swap_b32 v{x}, v{t}"), I(f"v_add_f32 v{x}, v{x}, v{t}")]
    lsum = inter(allsum(V_L[0], V_T0), allsum(V_L[1], V_T1)) + [I(f"v_rcp_f32 v{V_RI[qb]}, v{V_L[qb]}") for qb in range(2)]
    def oconv(q):
        l = []
        for qb in range(2):
            X = O0 + 16*q + 4*qb; Y = X + 8; D = O0 + 8*q + 4*qb
            l.append([(D, X), (D + 1, X + 2), (D + 2, Y), (D + 3, Y + 2)])
        o = l[0] + l[1]
        if q == 0:
            pass
        return [I(f"v_cvt_pk_bf16_f32 v{d}, v{x}, v{x+1}") for d, x in o]
    place(oconv(0) + oconv(1), pm_end - 10, pm_end - 1)
    pr(pm_end - 1).post += stamp_ins()
    for q in range(2, 8):
        place(oconv(q), pm_end + 4 * (q - 2), pm_end + 4 * (q - 2) + 3)
    place(lsum, pm_end + 24, pm_end + 33)
    STG = [PB[0], PB[1]]
    def finish(u, pk=False):
        l = []
        for qb in range(2):
            a = ACC[u & 1] + 16 * qb; st = STG[qb]
            for q in range(8):
                if pk: l.append(I(f"v_pk_mul_f32 {vr(a+2*q,2)}, {vr(a+2*q,2)}, {vr(V_RI[0],2)} op_sel:[0,{qb}] op_sel_hi:[1,{qb}]"))
                else:
                    l.append(I(f"v_mul_f32 v{a+2*q}, v{V_RI[qb]}, v{a+2*q}"))
                    l.append(I(f"v_mul_f32 v{a+2*q+1}, v{V_RI[qb]}, v{a+2*q+1}"))
                l.append(I(f"v_cvt_pk_bf16_f32 v{st+q}, v{a+2*q}, v{a+2*q+1}"))
                if q & 3 == 3 and not P.get("nostore"):
                    l.append(I(f"buffer_store_dwordx4 {vr(st+q-3,4)}, v{V_L16}, s[{S_P}:{S_P+3}], s{SOFF[u]} offen offset:{qb*2048+(q>>2)*1024} {P['st_aux']}", tag=f"PST{u}"))
        return l
    bp = otile[0] + 16 * P["sig"] - LA
    barrier(bp, [f"PST{P['n1']-1}"])
    sig = Stream()
    sig(f"""
    s_cmp_lg_u32 s{S_WAVE}, 0
    s_cbranch_scc1 L_nosig1
    v_readfirstlane_b32 s{S_T0}, v{V_POLL}
    s_cmp_lt_u32 s{S_T0}, 16
    s_cbranch_scc1 L_hs
    L_hsok:
    s_mov_b64 exec, 0xffff
    """)
    sig(f"global_store_dword v{V_FLG2}, v{V_ONE}, s[{S_FL}:{S_FL+1}] sc1", untracked=True)
    sig("s_mov_b64 exec, -1\nL_nosig1:")
    pr(bp).post += sig.ins
    if P.get("ostamps"):
        for u in range(1, 7): pr(otile[2 * u] - 1).post += stamp_ins()
    for u in range(1, 7):
        pb = otile[2 * u]
        place(finish(u - 1), pb + (2 if u == 1 else 1), pb + 31, pace=False)
    pr(npair[0] - 1).post += [I("@stop")] + finish(6, True)

    def gap_order(mem, ops):
        first = list(mem); rest = []
        for i in ops:
            if i.kind == "vmem" and not any(x.wr & i.rd for x in rest): first.append(i)
            else: rest.append(i)
        return first + rest
    def emit_list(l):
        for i in l:
            if i.kind == "pseudo" and i.op == "@bulk0":
                for x in bulk0: s.add(x)
            else: s.add(i)
    emit_list(head.sc0 + head.post)
    starts = {x[1]: x[0] for x in step_start}
    worst = 0
    for p, q in enumerate(PR):
        if p in starts and starts[p] % 4 == 1: s.add(I(f"@block {starts[p]//4}"))
        mem = q.reads + q.mem
        best = None
        e0 = max(0, sum(cost(x) for x in q.sc0) - 1); e1 = sum(cost(x) for x in q.sc1)
        for r0 in range(len(mem), -1, -1):
            for k in range(len(q.ops) + 1):
                c0 = e0 + r0 + sum(cost(x) for x in q.ops[:k]); c1 = e1 + len(mem) - r0 + sum(cost(x) for x in q.ops[k:])
                nr = len(q.reads); ra = min(r0, nr)
                sc_ = (max(c0, 2) + max(c1, 2), max(c0, c1), abs(2 * ra - nr) if P["bal"] else 0, -r0)
                if best is None or sc_ < best[0]: best = (sc_, r0, k)
        _, r0, k = best
        worst += best[0][0] - 4
        emit_list(q.pre)
        s.add(q.m[0]); emit_list(q.sc0); emit_list(gap_order(mem[:r0], q.ops[:k]))
        s.add(q.m[1]); s.add(I("@waitnext " + " ".join(q.vmtags))); emit_list(q.sc1); emit_list(gap_order(mem[r0:], q.ops[k:]))
        pad = (P.get("qpad", 0) if p < P.get("qpadn", 999) else 0) if p < pq_end else (P.get("mpad", 0) if p < pm_end else P.get("opad", 0))
        if pad: s.add(I(f"s_nop {pad-1}"))
        emit_list(q.post)
    if P.get("verbose"): print("overfull slots:", worst)

    poll = f"global_load_dword v{V_EP}, v{V_FLG}, s[{S_FL}:{S_FL+1}] sc1"
    s(poll)
    for i in stamp_ins(): s.add(i)
    s("s_waitcnt vmcnt(0)\ns_barrier")
    for i in stamp_ins(): s.add(i)
    s(f"""
    s_cmp_lg_u32 s{S_WAVE}, 0
    s_cbranch_scc1 L_nosig2
    s_mov_b64 exec, 0xffff
    """)
    s(f"global_store_dword v{V_FLG2}, v{V_ONE}, s[{S_FL}:{S_FL+1}] offset:64 sc1", untracked=True)
    s(f"s_mov_b64 exec, -1\nL_nosig2:\ns_mov_b32 s{S_CNT}, 0")
    tailsubs = Stream()
    tailsubs(f"""
    L_hs:
    s_mov_b32 s{S_CNT}, 0
    L_hs2:
    s_sleep 8
    global_load_dword v{V_POLL}, v{V_DBG}, s[{S_DBG}:{S_DBG+1}] sc1
    s_waitcnt vmcnt(0)
    v_readfirstlane_b32 s{S_T0}, v{V_POLL}
    s_add_u32 s{S_CNT}, s{S_CNT}, 1
    s_cmp_ge_u32 s{S_CNT}, 0x40000
    s_cbranch_scc1 L_hsok
    s_cmp_lt_u32 s{S_T0}, 16
    s_cbranch_scc1 L_hs2
    s_branch L_hsok
    """)
    def waitflags(st):
        mask = 0xffff << (16 * st)
        s(f"""
        L_w{st}:
        v_cmp_ne_u32 vcc, 1, v{V_EP}
        s_and_b32 s{S_T0}, vcc_lo, {mask:#x}
        s_cbranch_scc0 L_ok{st}
        s_add_u32 s{S_CNT}, s{S_CNT}, 1
        s_cmp_ge_u32 s{S_CNT}, 0x40000
        s_cbranch_scc1 L_ok{st}
        s_sleep {P['sleep']}
        """)
        s(poll, untracked=True)
        s(f"s_waitcnt vmcnt(0)", blind=True)
        s(f"s_branch L_w{st}\nL_ok{st}:")
    def loads(st):
        for h in range(16):
            s(f"buffer_load_dwordx4 {vr(O0+64*st+4*h,4)}, v{V_L16}, s[{S_P}:{S_P+3}], s{S_RR[st]} offen {P['ld_aux']}", tag=f"R{st}_{h}")
            if h < 15: s(f"s_add_u32 s{S_RR[st]}, s{S_RR[st]}, {PART_H}")
    def accum(st, h0, h1):
        A0 = SB[st]
        for h in range(h0, h1):
            for q in range(4):
                r = O0 + 64 * st + 4 * h + q
                for z, k in enumerate((S_LO, S_HI)):
                    s(f"v_dot2_f32_bf16 v{A0+2*q+z}, v{r}, s{k}, " + ("0" if h == 0 else f"v{A0+2*q+z}"))
    def final(st):
        A0 = SB[st]; D = PB[st]
        for q in range(4): s(f"v_cvt_pk_bf16_f32 v{D+q}, v{A0+2*q}, v{A0+2*q+1}")
        for sw in ("32", "16"):
            s(f"v_permlane{sw}_swap_b32 v{D}, v{D+2}\nv_permlane{sw}_swap_b32 v{D+1}, v{D+3}")
        s(f"buffer_store_dwordx4 {vr(D,4)}, v{V_OUT}, s[{S_OUT}:{S_OUT+3}], s{S_RO[st]} offen {P['out_aux']}")
    s(f"s_cmp_eq_u32 s{S_RA[0]}, 0\ns_cbranch_scc1 L_st2")
    waitflags(0)
    loads(0)
    accum(0, 0, 16 - P["pw"])
    s(poll)
    accum(0, 16 - P["pw"], 16)
    final(0)
    s("s_waitcnt vmcnt(1)")
    s("L_st2:")
    for i in stamp_ins(): s.add(i)
    s(f"s_cmp_eq_u32 s{S_RA[1]}, 0\ns_cbranch_scc1 L_done")
    waitflags(1)
    loads(1)
    accum(1, 0, 16)
    final(1)
    s("L_done:")
    if P.get("probe") is not None:
        s("s_waitcnt vmcnt(0)\ns_barrier")
        for i in stamp_ins(): s.add(i)
        s(f"""
        L_spin:
        s_sleep 4
        s_memrealtime s[{S_ST+2}:{S_ST+3}]
        s_waitcnt lgkmcnt(0)
        s_sub_u32 s{S_T0}, s{S_ST+2}, s{S_ST}
        s_cmp_lt_u32 s{S_T0}, 10000
        s_cbranch_scc1 L_spin
        """)
    if P["stamps"]:
        s("s_waitcnt vmcnt(0)\ns_barrier")
        for i in stamp_ins(): s.add(i)
        s(f"""
        s_lshl_b32 s3, s2, 7
        v_lshrrev_b32 v59, 2, v{V_L16}
        v_add_u32 v59, s3, v59
        s_cmp_lg_u32 s{S_WAVE}, 0
        s_cbranch_scc1 L_end
        s_mov_b32 exec_hi, 0
        global_store_dword v59, v{V_ST}, s[{S_WS}:{S_WS+1}]
        v_add_u32 v59, 0x10000, v59
        global_store_dword v59, v70, s[{S_WS}:{S_WS+1}]
        v_add_u32 v59, 0x10000, v59
        global_store_dword v59, v71, s[{S_WS}:{S_WS+1}]
        """)
    s("L_end:\ns_endpgm")

    ins = resolve(s.ins, pair_waits=False, verbose=P.get("verbose"))
    marks = [k for k, i in enumerate(ins) if i.kind == "pseudo" and i.op == "@block"]
    assert len(marks) == 8
    blocks = [text_of(ins[marks[b]:marks[b+1]]) for b in range(7)]
    for b in range(1, 7):
        if blocks[b] != blocks[0]:
            import difflib
            print("".join(list(difflib.unified_diff(blocks[0].splitlines(1), blocks[b].splitlines(1), n=1))[:60]))
            raise SystemExit(f"block {b} differs from block 0")
    body = text_of(ins[:marks[0]]) + ".p2align 3\nL_loop:\n" + blocks[0] + text_of(ins[marks[7]:])

    r = Stream()
    for lab, par in stubs:
        r(f"L_fix{lab}:\ns_call_b64 s[{S_RET}:{S_RET+1}], L_rescale{par}\ns_branch L_ret{lab}")
    for par in range(2):
        r(f"L_rescale{par}:\ns_nop 15\n@fence")
        S = SB[par]; S2 = SB[1 - par]
        for qb, x in enumerate((V_T0, V_T1)):
            for i in rowmax(S + 8*qb, x) + allmax(x, TT[0]): r.add(i)
            r(f"v_max_f32 v{x}, 0, v{x}\nv_exp_f32 v{TT[1]}, -v{x}")
            for n in range(4): r(f"v_sub_f32 v{NM+4*qb+n}, v{NM+4*qb+n}, v{x}")
            for n in range(8): r(f"v_sub_f32 v{S+8*qb+n}, v{S+8*qb+n}, v{x}\nv_sub_f32 v{S2+8*qb+n}, v{S2+8*qb+n}, v{x}")
            r(f"v_mul_f32 v{V_L[qb]}, v{V_L[qb]}, v{TT[1]}")
            for jj in range(16):
                for n in range(4): r(f"v_mul_f32 v{O0+8*jj+4*qb+n}, v{TT[1]}, v{O0+8*jj+4*qb+n}")
        for i in softmax_ops(par): r.add(i)
        r(f"s_nop 3\ns_setpc_b64 s[{S_RET}:{S_RET+1}]")
    body += text_of(resolve(tailsubs.ins)) + text_of(resolve(r.ins)) + "L_codeend:\n"
    return whole_file(["; @launch grid=(256,1,1) block=(256,1,1) lds=163840"], [kernel_block(KN, body, 512, 102, 256)])

if __name__ == "__main__":
    out = sys.argv[1]
    kw = {}
    for a in sys.argv[2:]:
        k, v = a.split("=", 1)
        try: v = eval(v)
        except Exception: pass
        kw[k] = v
    open(out, "w").write(build(**kw))
```

```python
import sys, math, struct
from asmlib import *
from stream import *

def f2u(x): return struct.unpack("<I", struct.pack("<f", x))[0]

DEF = dict(LA=4, PDK=2, PDV=2, late=2, kv_aux="nt", wq_aux="", wpf=0, prog=0, krot=1, early=0, vfirst=3, dl=3, order=(0,1,3,2), obit=4, f2=(0,0,0), pre2=1, merge=1, kperm=0, ek=(2,6), eki=0, xlast=1, fa=(3,1,18), fb=(3,1,18), kv10=2, kv12=1, bal=1, x1e=0, out_aux="sc1", fast=0, fewb=1, ewo=1, bm=1, wo_aux="", x_aux="", stamps=False,
           st_aux="sc1", ld_aux="sc1", rot=4, orot=2, n1=4, sig=12, pw=4, wsoff=0x1000000, thr=4096.0, early_k=10, sleep=2, dsp=2,
           sm_start=2, ann="s", cpf=1)

O0 = 128
SB = [96, 112]
PB = [80, 88]
NM = 72
TT = list(range(0, 8))
V_L = [64, 65]; V_LT = [66, 67]; V_T0, V_T1 = 62, 63; V_RI = [60, 61]
KA = list(range(8, 12))
TA1 = list(range(12, 20))
TA0 = list(range(20, 28))
XA = [28, 29]
KD = [30, 31]; VD = [32, 33]; QD = list(range(34, 38)); XD = list(range(38, 42)); WD = list(range(42, 46))
WA = [list(range(46, 50)), list(range(20, 24)), list(range(24, 28))]
V_L16 = 50; V_OUT = 51
V_FLG = 52; V_FLG2 = 53; V_ONE = 54; V_POLL = 55; V_DBG = 56; V_ST = 57; V_CP = 68; V_EP = 59
A_Q = 0; A_F = 64; NF = 16; A_X = 128

S_X, S_K, S_V, S_WQ, S_WO, S_P, S_OUT = 32, 36, 40, 44, 48, 52, 56
S_DBG = 26; S_WS = 28
S_W4K, S_WAVE, S_BR, S_B, S_H, S_G = 60, 61, 62, 63, 64, 65
S_KOFF, S_VOFF, S_QU, S_T0, S_T1, S_THR, S_CNT, S_OU, S_OS, S_PB = 66, 67, 68, 69, 70, 72, 73, 74, 75, 76
S_RET = 78; S_FL = 80; S_C = 82
S_ST = 84; S_G4 = 88; S_ONE = 89; S_PC = 90; S_BT = 93; S_RR = [94, 95]; S_RO = [96, 97]; S_RA = [98, 99]; S_LO = 100; S_HI = 101; S_ADV = [75, 77, 93, 24]

PART_W = 28672; PART_H = 4 * PART_W; PART_G = 16 * PART_H
FLAG_OFF = 0x100000

def vr(a, n): return f"v[{a}:{a+n-1}]"
def ar(a, n): return f"a[{a}:{a+n-1}]"
def cost(i):
    if i.kind == "trans" or i.op.startswith("v_permlane"): return 2
    if i.kind in ("label", "pseudo"): return 0
    return 1

class Pair:
    def __init__(self):
        self.m = []; self.reads = []; self.mem = []; self.ops = []; self.sc0 = []; self.sc1 = []
        self.pre = []; self.post = []; self.vmtags = []; self.drain = []
    def free(self):
        return 4 - len(self.reads) - len(self.mem) - sum(cost(i) for i in self.ops) - max(0, len(self.sc0) - 1) - sum(cost(i) for i in self.sc1)

def build(**kw):
    P = dict(DEF); P.update(kw)
    LA = P["LA"]
    ADV = "0" if P.get("noadv") else "0x4000"
    s = Stream()
    nstamp = [0]
    def stamp_ins():
        if P.get("probe") is not None:
            k = nstamp[0]; nstamp[0] += 1
            if k != P["probe"]: return []
            return [I("s_waitcnt lgkmcnt(0)", blind=True), I(f"s_memrealtime s[{S_ST}:{S_ST+1}]"), I("s_waitcnt lgkmcnt(0)", blind=True)]
        if not P["stamps"]: return []
        k = nstamp[0]; nstamp[0] += 1
        assert k < 16
        return [I("s_waitcnt lgkmcnt(0)", blind=True), I(f"s_memrealtime s[{S_ST}:{S_ST+1}]"), I(f"s_memtime s[{S_ST+2}:{S_ST+3}]"),
                I("s_waitcnt lgkmcnt(0)", blind=True), I(f"v_writelane_b32 v{V_ST}, s{S_ST}, {k}"), I(f"v_writelane_b32 v{V_ST}, s{S_ST+2}, {16+k}")]

    s("s_cmp_ge_u32 s2, 256\ns_cbranch_scc1 L_end")
    for i in stamp_ins(): s.add(i)
    s(f"""
    s_load_dwordx16 s[4:19], s[0:1], 0
    s_load_dwordx8 s[20:27], s[0:1], 64
    s_load_dwordx2 s[28:29], s[0:1], 96
    s_getpc_b64 s[{S_PC}:{S_PC+1}]
    L_pc:
    s_bfe_u32 s{S_B}, s2, 0x30003
    v_lshrrev_b32 v1, 6, v0
    v_and_b32 v58, 15, v0
    s_lshl_b32 s{S_T0}, s{S_B}, 13
    v_lshl_add_u32 v59, v1, 4, v58
    v_lshl_add_u32 v59, v59, 7, s{S_T0}
    v_min_u32 v59, (L_codeend-L_pc-4), v59
    v_readfirstlane_b32 s{S_WAVE}, v1
    """)
    if P["cpf"]: s(f"global_load_dword a255, v59, s[{S_PC}:{S_PC+1}]")
    s(f"""
    s_and_b32 s30, s2, 7
    s_lshr_b32 s{S_BR}, s2, 7
    s_bfe_u32 s3, s2, 0x10006
    s_lshl_b32 s{S_H}, s30, 1
    s_add_u32 s{S_H}, s{S_H}, s3
    s_lshl_b32 s{S_W4K}, s{S_WAVE}, 12
    """)
    def rotation(dst, mode):
        if mode == 0: s(f"s_mov_b32 s{dst}, 0")
        if mode == 2: s(f"s_sub_u32 s{dst}, s{S_B}, 7\ns_min_u32 s{dst}, s{dst}, s{S_B}")
        if mode == 3: s(f"s_and_b32 s{dst}, s{S_B}, 1\ns_mul_i32 s{dst}, s{dst}, 3")
        if mode == 4: s(f"s_and_b32 s{dst}, s{S_B}, 3\ns_lshl_b32 s{dst}, s{dst}, 1")
    rotation(S_QU, P["rot"])
    s(f"""
    v_and_b32 v2, 63, v0
    v_lshrrev_b32 v5, 3, v2
    v_and_b32 v6, 7, v2
    v_lshrrev_b32 v7, 4, v2
    v_lshl_add_u32 v60, v1, 5, v5
    v_mul_u32_u24 v60, 896, v60
    v_xor_b32 v59, v6, v7
    v_lshl_add_u32 v{XD[0]}, v59, 4, v60
    v_xor_b32 v59, 4, v59
    v_lshl_add_u32 v{XD[1]}, v59, 4, v60
    v_add_u32 v{XD[2]}, {2*6144}, v{XD[0]}
    v_add_u32 v{XD[3]}, {3*6144}, v{XD[1]}
    v_add_u32 v{XD[1]}, 6144, v{XD[1]}
    s_mul_i32 s{S_T1}, s{S_B}, 114688
    s_mov_b32 s{S_X+2}, 114688
    s_mov_b32 s{S_X+3}, 0x20000
    s_lshl_b32 s31, s{S_H}, 9
    s_sub_u32 s{S_WQ+2}, {448*8192}, s31
    s_mov_b32 s{S_WQ+3}, 0x20000
    """)
    s(f"""
    v_lshrrev_b32 v3, 5, v2
    v_and_b32 v4, 31, v2
    v_lshl_add_u32 v5, v1, 3, v3
    v_and_b32 v61, 1, v1
    v_lshl_add_u32 v61, v61, 2, v3
    v_lshlrev_b32 v61, 1, v61
    v_xor_b32 v61, v61, v4
    v_lshlrev_b32 v61, 4, v61
    v_xor_b32 v59, 64, v61
    v_lshl_add_u32 v{QD[0]}, v5, 13, v61
    v_lshl_add_u32 v{QD[1]}, v5, 13, v59
    v_add_u32 v{QD[2]}, {2*15360}, v{QD[0]}
    v_add_u32 v{QD[3]}, {3*15360}, v{QD[1]}
    v_add_u32 v{QD[1]}, 15360, v{QD[1]}
    """)
    s(f"s_cmp_eq_u32 s{S_BR}, 0\ns_waitcnt lgkmcnt(0)")
    s(f"""
    s_cselect_b32 s{S_X}, s4, s14
    s_cselect_b32 s{S_X+1}, s5, s15
    s_cselect_b32 s{S_WQ}, s10, s20
    s_cselect_b32 s{S_WQ+1}, s11, s21
    s_add_u32 s{S_X}, s{S_X}, s{S_T1}
    s_addc_u32 s{S_X+1}, s{S_X+1}, 0
    s_add_u32 s{S_WQ}, s{S_WQ}, s31
    s_addc_u32 s{S_WQ+1}, s{S_WQ+1}, 0
    """)
    if P.get("sstamps"):
        for i in stamp_ins(): s.add(i)

    def dma(tile, slot, regs, srd, soff, aux, pre=[], post=[], **meta):
        l = [I(f"buffer_load_dwordx4 v{regs[i]}, s[{srd}:{srd+3}], {soff} offen offset:{1024*i} {aux} lds".replace("  ", " "),
               tile=tile, slot=slot, **meta) for i in range(4)]
        return ([I(x) for x in pre] + [I(f"s_add_u32 m0, s{S_W4K}, {slot*16384}")], l, [I(x) for x in post])
    WQ_SLOT = [6, 7, 4, 2, 5, 3]
    nxt = lambda r: [f"s_add_u32 s{r}, s{r}, 1", f"s_cmp_eq_u32 s{r}, 7", f"s_cselect_b32 s{r}, 0, s{r}"]
    def dma_x(u): return dma(f"X{u}", 8 + (u & 1), XD, S_X, f"s{S_T0}", P["x_aux"], pre=[f"s_lshl_b32 s{S_T0}, s{S_QU}, 7"])
    def dma_wq(j):
        if j & 1 == 0: return dma(f"WQ{j}", WQ_SLOT[j % 6], QD, S_WQ, f"s{S_T1}", P["wq_aux"], pre=[f"s_lshl_b32 s{S_T1}, s{S_QU}, 19"])
        return dma(f"WQ{j}", WQ_SLOT[j % 6], QD, S_WQ, f"s{S_T1}", P["wq_aux"], pre=[f"s_add_u32 s{S_T1}, s{S_T1}, 0x40000"], post=nxt(S_QU))
    SPAN = P.get("span", 0)
    def inc(order, t):
        o = list(order) + [4 + order[0]]
        return ((o[t % 4 + 1] - o[t % 4]) * 0x4000) & 0x7ffff
    def adv(t):
        if P.get("noadv"): return 0
        if SPAN == 1:
            o = [(x >> 1) * 32768 + (x & 1) * 2048 for x in list(P["order"]) + [4]]
            return (o[t % 4 + 1] - o[t % 4]) & 0x7ffff
        if SPAN == 4:
            o = [x * 1024 for x in P["order"]] + [65536]
            return (o[t % 4 + 1] - o[t % 4]) & 0x7ffff
        if SPAN == 2: return 4096 if t % 2 == 0 else 28672
        if P.get("order2"): return f"s{S_ADV[t % 4]}"
        return inc(P["order"], t)
    KR = KD + [68, 69] if SPAN in (1, 3, 4) else KD * 2; VR = VD + [70, 71] if SPAN in (1, 3, 4) else VD * 2
    def dma_k(t): return dma(f"K{t}", t % 4, KR, S_K, f"s{S_KOFF}", P["kv_aux"], post=[f"s_add_u32 s{S_KOFF}, s{S_KOFF}, {adv(t)}", f"s_and_b32 s{S_KOFF}, s{S_KOFF}, 0x7ffff"])
    def dma_v(t): return dma(f"V{t}", 4 + t % 4, VR, S_V, f"s{S_VOFF}", P["kv_aux"], post=[f"s_add_u32 s{S_VOFF}, s{S_VOFF}, {adv(t)}", f"s_and_b32 s{S_VOFF}, s{S_VOFF}, 0x7ffff"])
    WO_SLOT = [8, 9, 0, 1, 2, 4, 3, 5, 6, 7, 8, 9, 0, 1]
    WOFF = list(range(4, 18)); SOFF = list(range(18, 24)) + [92]
    def dma_wo(j): return dma(f"WO{j}", WO_SLOT[j], WD, S_WO, f"s{WOFF[j]}", P["wo_aux"], unread_ok=True)
    def flat(d): return d[0] + d[1] + d[2]

    for d in (dma_x(0), dma_wq(0), dma_wq(1), dma_x(1)):
        for i in flat(d): s.add(i)
    if P.get("sstamps"):
        for i in stamp_ins(): s.add(i)
    rotation(S_OU, P["orot"])
    s(f"""
    v_lshl_add_u32 v{VD[0]}, v5, 9, v61
    v_lshl_add_u32 v{VD[1]}, v5, 9, v59
    v_lshl_add_u32 v61, v1, 2, v3
    v_xor_b32 v61, v61, v4
    v_lshlrev_b32 v61, 4, v61
    v_xor_b32 v59, 32, v61
    v_lshl_add_u32 v{KD[0]}, v5, 9, v61
    v_lshl_add_u32 v{KD[1]}, v5, 9, v59
    v_lshlrev_b32 v59, 1, v7
    v_xor_b32 v59, v59, v6
    v_lshl_add_u32 v{WD[0]}, v59, 4, v60
    v_add_u32 v{WD[1]}, 6144, v{WD[0]}
    v_add_u32 v{WD[2]}, {2*6144}, v{WD[0]}
    v_add_u32 v{WD[3]}, {3*6144}, v{WD[0]}
    v_lshlrev_b32 v{V_L16}, 4, v2
    s_lshl_b32 s{S_G}, s{S_BR}, 3
    s_add_u32 s{S_G}, s{S_G}, s{S_B}
    s_lshl_b32 s{S_T0}, s{S_B}, 3
    s_add_u32 s{S_T0}, s{S_T0}, s30
    s_lshl_b32 s31, s{S_B}, 4
    s_add_u32 s31, s31, s{S_H}
    s_cmp_eq_u32 s{S_BR}, 0
    s_cselect_b32 s31, s{S_T0}, s31
    s_cselect_b32 s{S_K}, s6, s16
    s_cselect_b32 s{S_K+1}, s7, s17
    s_cselect_b32 s{S_V}, s8, s18
    s_cselect_b32 s{S_V+1}, s9, s19
    s_cselect_b32 s{S_WO}, s12, s22
    s_cselect_b32 s{S_WO+1}, s13, s23
    s_lshl_b32 s31, s31, 19
    """)
    s(f"""
    s_add_u32 s{S_K}, s{S_K}, s31
    s_addc_u32 s{S_K+1}, s{S_K+1}, 0
    s_mov_b32 s{S_K+2}, 0x80000
    s_mov_b32 s{S_K+3}, 0x20000
    s_add_u32 s{S_V}, s{S_V}, s31
    s_addc_u32 s{S_V+1}, s{S_V+1}, 0
    s_mov_b32 s{S_V+2}, 0x80000
    s_mov_b32 s{S_V+3}, 0x20000
    s_mul_i32 s{S_T0}, s{S_H}, 229376
    s_add_u32 s{S_WO}, s{S_WO}, s{S_T0}
    s_addc_u32 s{S_WO+1}, s{S_WO+1}, 0
    s_mov_b32 s{S_WO+2}, 229376
    s_mov_b32 s{S_WO+3}, 0x20000
    s_mul_i32 s{S_T0}, s{S_G}, {PART_G}
    s_add_u32 s{S_T0}, s{S_T0}, {P['wsoff']}
    s_add_u32 s{S_P}, s{S_WS}, s{S_T0}
    s_addc_u32 s{S_P+1}, s{S_WS+1}, 0
    s_mov_b32 s{S_P+2}, {PART_G}
    s_mov_b32 s{S_P+3}, 0x20000
    s_mov_b32 s{S_OUT}, s24
    s_mov_b32 s{S_OUT+1}, s25
    s_mov_b32 s{S_OUT+2}, {8*128*896*2}
    s_mov_b32 s{S_OUT+3}, 0x20000
    s_mul_i32 s{S_PB}, s{S_H}, {PART_H}
    s_mul_i32 s{S_T0}, s{S_WAVE}, {PART_W}
    s_add_u32 s{S_PB}, s{S_PB}, s{S_T0}
    s_lshl_b32 s{S_T0}, s{S_G}, 12
    s_add_u32 s{S_T0}, s{S_T0}, {FLAG_OFF}
    s_add_u32 s{S_FL}, s{S_WS}, s{S_T0}
    s_addc_u32 s{S_FL+1}, s{S_WS+1}, 0
    s_bfe_u32 s{S_KOFF}, s31, {(P['fa'][1] << 16) | (19 + P['fa'][0]):#x}
    s_lshl_b32 s{S_KOFF}, s{S_KOFF}, {P['fa'][2]}
    s_bfe_u32 s{S_VOFF}, s31, {(P['fb'][1] << 16) | (19 + P['fb'][0]):#x}
    s_lshl_b32 s{S_VOFF}, s{S_VOFF}, {P['fb'][2]}
    s_cmp_eq_u32 s{S_BR}, 0
    s_cselect_b32 s{S_KOFF}, s{S_KOFF}, s{S_VOFF}
    s_bfe_u32 s{S_VOFF}, s31, {(P['f2'][1] << 16) | (19 + P['f2'][0]):#x}
    s_lshl_b32 s{S_VOFF}, s{S_VOFF}, {P['f2'][2]}
    s_add_u32 s{S_KOFF}, s{S_KOFF}, s{S_VOFF}
    s_mov_b32 s{S_VOFF}, s{S_KOFF}
    s_mov_b32 s{S_C}, {f2u(math.log2(math.e)/16.0):#x}
    s_mov_b32 s{S_C+1}, s{S_C}
    s_mov_b32 s{S_THR}, {f2u(P['thr']):#x}
    s_lshl_b32 s{S_G4}, s{S_G}, 4
    s_mov_b32 s{S_ONE}, 1
    s_mov_b32 s{S_LO}, 0x3f80
    s_mov_b32 s{S_HI}, 0x3f800000
    """)
    if P.get("order2"):
        s(f"s_bitcmp1_b32 s31, {19 + P['obit']}")
        for t in range(4): s(f"s_mov_b32 s{S_ADV[t]}, {inc(P['order'], t)}\ns_cselect_b32 s{S_ADV[t]}, {inc(P['order2'], t)}, s{S_ADV[t]}")
    if SPAN in (1, 2):
        for r in KD + VD: s(f"v_lshl_add_u32 v{r}, v1, 12, v{r}")
    if SPAN == 1:
        for a, b in zip(KD + VD, (68, 69, 70, 71)): s(f"v_add_u32 v{b}, 2048, v{a}")
    if SPAN == 4:
        s("v_mul_u32_u24 v59, 12288, v1")
        for r in KD + VD: s(f"v_add_u32 v{r}, v{r}, v59")
    if SPAN == 3:
        s("v_mul_u32_u24 v59, 3072, v1")
        for r in KD + VD: s(f"v_sub_u32 v{r}, v{r}, v59")
    if SPAN in (3, 4):
        for a0, a1, b0, b1 in (KD + [68, 69], VD + [70, 71]):
            s(f"v_add_u32 v{b0}, {2*3072}, v{a0}\nv_add_u32 v{b1}, {3*3072}, v{a1}\nv_add_u32 v{a1}, 3072, v{a1}")
    s(f"""
    s_lshl_b32 s{S_T0}, s{S_H}, 8
    v_lshl_add_u32 v{V_FLG}, v4, 2, s{S_T0}
    s_lshl_b32 s{S_T0}, s{S_H}, 2
    v_lshl_add_u32 v{V_FLG2}, v58, 8, s{S_T0}
    v_mov_b32 v{V_POLL}, 0
    v_mov_b32 v{V_DBG}, s{S_G4}
    v_mov_b32 v{V_ONE}, 1
    """)
    s(f"""
    v_bfe_u32 v5, v2, 2, 2
    v_and_b32 v6, 3, v2
    v_lshl_add_u32 v59, v7, 3, v5
    v_lshlrev_b32 v59, 9, v59
    v_lshl_add_u32 v59, v6, 3, v59
    v_and_b32 v60, 1, v7
    v_lshl_add_u32 v60, v60, 2, v5
    """)
    for j in range(8):
        s(f"""
        v_xor_b32 v61, {j}, v60
        v_lshl_add_u32 v{TA0[j]}, v61, 5, v59
        v_add_u32 v{TA1[j]}, 0x10000, v{TA0[j]}
        """)
    s(f"""
    v_lshrrev_b32 v59, 1, v58
    v_xor_b32 v59, v59, v7
    v_lshlrev_b32 v60, 7, v58
    v_lshl_add_u32 v60, v1, 12, v60
    v_add_u32 v60, 0x20000, v60
    v_lshl_add_u32 v{XA[0]}, v59, 4, v60
    v_xor_b32 v{XA[1]}, 64, v{XA[0]}
    """)
    if P.get("sstamps"):
        for i in stamp_ins(): s.add(i)
    for d in [dma_wq(2), dma_wq(3)][:P["pre2"]]:
        for i in flat(d): s.add(i)
    if P.get("sstamps"):
        for i in stamp_ins(): s.add(i)
    lsc = Stream()
    for u in range(7):
        lsc(f"""
        s_add_u32 s30, s{S_OU}, {u}
        s_sub_u32 s31, s30, 7
        s_min_u32 s30, s30, s31
        s_lshl_b32 s{WOFF[2*u]}, s30, 7
        s_add_u32 s{WOFF[2*u+1]}, s{WOFF[2*u]}, 114688
        s_lshl_b32 s30, s30, 12
        s_add_u32 s{SOFF[u]}, s30, s{S_PB}
        """)
    for st, (u0, n) in enumerate(((0, P["n1"]), (P["n1"], 7 - P["n1"]))):
        if n == 4: lsc(f"s_mov_b32 s3, s{S_H}")
        else: lsc(f"s_lshl_b32 s3, s{S_WAVE}, 2\ns_add_u32 s3, s3, s{S_H}\ns_and_b32 s3, s3, 15")
        lsc(f"""
        s_lshr_b32 s30, s3, 2
        s_add_u32 s30, s30, s{S_OU}
        s_add_u32 s30, s30, {u0}
        s_sub_u32 s31, s30, 7
        s_min_u32 s30, s30, s31
        s_lshl_b32 s31, s30, 2
        s_and_b32 s71, s3, 3
        s_add_u32 s31, s31, s71
        s_lshl_b32 s31, s31, 10
        s_mul_i32 s{S_RR[st]}, s{S_WAVE}, {PART_W}
        s_add_u32 s{S_RR[st]}, s{S_RR[st]}, s31
        s_lshl_b32 s31, s{S_B}, 2
        s_add_u32 s31, s31, s{S_WAVE}
        s_lshl_b32 s31, s31, 1
        s_bfe_u32 s71, s3, 0x10001
        s_add_u32 s31, s31, s71
        s_mul_i32 s31, s31, {16*1792}
        s_lshl_b32 s30, s30, 1
        s_and_b32 s71, s3, 1
        s_add_u32 s30, s30, s71
        s_lshl_b32 s30, s30, 6
        s_add_u32 s31, s31, s30
        s_mul_i32 s30, s{S_BR}, 896
        s_add_u32 s{S_RO[st]}, s31, s30
        s_lshr_b32 s{S_RA[st]}, s3, 2
        s_xor_b32 s{S_RA[st]}, s{S_RA[st]}, {n}
        """)
    late = Stream()
    late(f"""
    v_lshrrev_b32 v59, 2, v58
    v_and_b32 v60, 3, v58
    v_lshl_add_u32 v59, v59, 3, v60
    v_lshlrev_b32 v59, 9, v59
    v_bfrev_b32 v61, v7
    v_lshrrev_b32 v{V_OUT}, 30, v61
    v_xor_b32 v60, v58, v{V_OUT}
    """)
    for k in range(4):
        late(f"v_xor_b32 v61, {4*k}, v60\nv_lshl_add_u32 v{KA[k]}, v61, 4, v59")
    late(f"""
    v_lshl_add_u32 v59, v7, 2, v5
    v_bfe_u32 v60, v59, 1, 2
    v_lshlrev_b32 v59, 7, v59
    v_lshl_add_u32 v59, v6, 3, v59
    """)
    for k in range(4):
        late(f"v_xor_b32 v61, {k}, v60\nv_lshl_add_u32 v{WA[0][k]}, v61, 5, v59")
    late(f"""
    v_mul_u32_u24 v59, 1792, v58
    v_lshl_add_u32 v{V_OUT}, v{V_OUT}, 4, v59
    """)

    PR = []; head = Pair()
    def pr(p):
        if p < 0: return head
        while len(PR) <= p: PR.append(Pair())
        return PR[p]
    npair = [0]
    def frag(p): return A_F + 4 * (p % NF)
    def add_pair(m0, m1):
        p = npair[0]; npair[0] += 1
        pr(p).m = [I(m0), I(m1)]
        return p
    def mf(d, a, b, c): return f"v_mfma_f32_16x16x32_bf16 {vr(d,4)}, {a}, {b}, {c}"
    def rd_at(p, bp, l, bulk=None, LA=LA):
        q = p - LA
        if bulk is not None and q <= bp: bulk.extend(l)
        else: pr(max(q, bp)).reads.extend(l)
    def tread(p, tile, slot, areg, off):
        f = frag(p)
        return [I(f"ds_read_b64_tr_b16 {ar(f,2)}, v{areg} offset:{off}", tile=tile, slot=slot),
                I(f"ds_read_b64_tr_b16 {ar(f+2,2)}, v{areg} offset:{off+2048}", tile=tile, slot=slot)]
    def barrier(bp, tiles):
        pr(bp - 1).vmtags.extend(tiles); pr(bp).sc0.insert(0, I("s_barrier"))
    def place_dma(ds, poss):
        q = 0
        for pre, loads, post in ds:
            for n, ld in enumerate(loads):
                p = poss[q]; q += 1
                if n == 0:
                    pr(p - 1).sc0.extend(pre)
                pr(p).mem.append(ld)
                if n == 3 and post:
                    if len(post) == 2: pr(p + 1).sc0.append(post[0]); pr(p + 2).sc0.append(post[1])
                    else: pr(p + 1).sc0.extend(post)
    def place(l, p0, p1, pace=True, win=8):
        fr = [max(0, pr(p).free()) for p in range(p0, p1 + 1)]
        F = sum(fr); C = sum(cost(i) for i in l); cum = 0; done = 0
        todo = list(range(len(l))); rec = []
        dep = lambda a, b: (a.wr & (b.rd | b.wr)) or (a.rd & b.wr)
        for n, p in enumerate(range(p0, p1 + 1)):
            cum += fr[n]
            while todo:
                if pace and F > C and done > C * cum / F: break
                pick = None
                for x, k in enumerate(todo[:win]):
                    if cost(l[k]) > pr(p).free(): continue
                    if any(dep(l[y], l[k]) for y in todo[:x]): continue
                    if any((o.wr & l[k].rd) for o in pr(p).ops): continue
                    if cost(l[k]) == 2 and len(pr(p).ops) >= 2: continue
                    pick = k; break
                if pick is None: break
                todo.remove(pick); pr(p).ops.append(l[pick]); done += cost(l[pick]); rec.append((n, pick))
        if todo:
            if P.get("verbose"): print("overflow", p0, p1, len(todo))
            for k in todo: pr(p1).ops.append(l[k]); rec.append((p1 - p0, k))
        return rec

    kvq = [dma_k(0), dma_k(1), dma_v(0)] + ([dma_k(2)] if P["PDK"] >= 2 else []) + ([dma_v(1)] if P["PDV"] >= 2 else []) + ([dma_k(3)] if P["PDK"] >= 3 else [])
    for j in range(12 if P["merge"] else 14):
        u = j >> 1; slot = WQ_SLOT[j % 6]; ta = TA1 if slot >= 4 else TA0; base = (slot & 3) * 16384
        pb = npair[0]; bp = pb - LA
        bulk = None
        if j == 0:
            head.post += [I("@waitvm WQ0 X0"), I("s_barrier")]; bulk = head.post; bp = -1
        else: barrier(bp, [f"WQ{j}", f"X{u}"] + (["WQ13"] if P["bm"] and j == 12 else []))
        if P.get("qstamps") and j in P["qstamps"]: (head.post if j == 0 else pr(bp).post).extend(stamp_ins())
        if j & 1 == 0:
            for q in range(4):
                xr = I(f"ds_read_b128 {ar(A_X + 16*(u&1) + 4*q, 4)}, v{XA[q>>1]} offset:{(u&1)*16384 + (q&1)*2048}", tile=f"X{u}", slot=8 + (u & 1), private=True)
                if j == 0: head.post.append(xr)
                else: pr(bp + (q // 2 if P["bm"] and j == 12 else q)).reads.append(xr)
        for jj in range(16):
            p = npair[0]
            j2, blk = j, jj
            if P["bm"] and j >= 12:
                n = (j - 12) * 16 + jj; j2 = 12 + (n & 1); blk = n >> 1
            slot = WQ_SLOT[j2 % 6]; ta = TA1 if slot >= 4 else TA0; base = (slot & 3) * 16384
            rd_at(p, bp, tread(p, f"WQ{j2}", slot, ta[blk & 7], base + (blk >> 3) * 256), bulk, P["qla"][u] if isinstance(P.get("qla"), tuple) else P.get("qla", LA))
            xb = A_X + 16 * (u & 1) + 8 * (j2 & 1)
            add_pair(*[mf(O0 + 8*blk + 4*qb, ar(frag(p), 4), ar(xb + 4*qb, 4), "0" if j == 0 else vr(O0 + 8*blk + 4*qb, 4)) for qb in range(2)])
        b0 = pb - LA
        if j & 1 == 0:
            ds = []
            if j + 4 <= 13:
                ds = [dma_wq(j + 4), dma_x(u + 2), dma_wq(j + 5)]
                if P.get("xlast"):
                    dx = ds[1]; ds = [ds[0], (dx[0][:1] + ds[2][0], ds[2][1], ds[2][2]), (dx[0][1:], dx[1], dx[2])]
                if j in P["ek"]: ds.insert(P.get("ekpos", 0), kvq.pop(0))
            elif j == 10: ds = kvq[:P["kv10"]]
            elif j == 12: ds = kvq[P["kv10"]:P["kv10"] + P["kv12"]]
            poss = [b0 + 2 + (n * 30) // (4 * max(len(ds), 1)) for n in range(16)]
            if len(ds) == 4: poss = [b0 + 1 + 2 * n for n in range(16)]
            if len(ds) == 3 and P.get("xlast") and j + 4 <= 13: poss = [b0 + 2 + 4 * n for n in range(4)] + [b0 + 17 + 2 * n for n in range(8)]
            if j == 0:
                extra = [dma_wq(2), dma_wq(3)][P["pre2"]:]
                ds = extra + ds
                poss = {0: [1, 4, 7, 10], 1: [1, 2, 3, 4, 6, 8, 10, 11], 2: None}[len(extra)] + poss[4:12]
            place_dma(ds, poss)
        if j == 1:
            pr(pb).post += [I(f"s_cmp_lg_u32 s{S_WAVE}, 0"), I("s_cbranch_scc1 L_noclr"), I("s_mov_b32 exec_hi, 0"),
                            I(f"global_atomic_swap v{V_T1}, v{V_FLG}, v{V_POLL}, s[{S_FL}:{S_FL+1}] sc0", untracked=True),
                            I("s_mov_b64 exec, -1"), I("L_noclr:")]
        if j == 8:
            if P["ann"] == "s":
                pr(pb).post += [I(f"s_cmp_lg_u32 s{S_WAVE}, 0"), I("s_cbranch_scc1 L_noann"),
                                I(f"s_atomic_add s{S_ONE}, s[{S_DBG}:{S_DBG+1}], s{S_G4}"), I("L_noann:")]
            else:
                pr(pb).post += [I(f"s_cmp_lg_u32 s{S_WAVE}, 0"), I("s_cbranch_scc1 L_noann"), I("s_mov_b64 exec, 1"),
                                I(f"global_atomic_add v{V_DBG}, v{V_ONE}, s[{S_DBG}:{S_DBG+1}]", untracked=True), I("s_mov_b64 exec, -1"), I("L_noann:")]
    pq_end = npair[0]
    place(late.ins, 40, 100)
    q = 2
    for i in lsc.ins:
        while pr(q).sc0: q += 1
        pr(q).sc0.append(i)
    assert q < 186, q

    def softmax_ops(t):
        S = SB[t & 1]; Pp = PB[t & 1]; l = []
        T = lambda e: TT[e & 7]
        for e in range(17):
            if e < 16: l.append(I(f"v_exp_f32 v{T(e)}, v{S+e}"))
            d = e - 1
            if d >= 0:
                lt = V_LT[d >> 3]
                if d & 7 == 1: l.append(I(f"v_add_f32 v{lt}, v{T(d-1)}, v{T(d)}"))
                elif d & 7 > 1: l.append(I(f"v_add_f32 v{lt}, v{lt}, v{T(d)}"))
                if d & 1: l.append(I(f"v_cvt_pk_bf16_f32 v{Pp+(d>>1)}, v{T(d-1)}, v{T(d)}"))
        return l
    def allmax(x, t):
        return [I(f"v_mov_b32 v{t}, v{x}"), I(f"v_permlane32_swap_b32 v{x}, v{t}"), I(f"v_max_f32 v{x}, v{x}, v{t}"),
                I(f"v_mov_b32 v{t}, v{x}"), I(f"v_permlane16_swap_b32 v{x}, v{t}"), I(f"v_max_f32 v{x}, v{x}, v{t}")]
    def rowmax(S, x):
        return [I(f"v_max3_f32 v{x}, v{S}, v{S+1}, v{S+2}"), I(f"v_max3_f32 v{x}, v{x}, v{S+3}, v{S+4}"),
                I(f"v_max3_f32 v{x}, v{x}, v{S+5}, v{S+6}"), I(f"v_max_f32 v{x}, v{x}, v{S+7}")]
    def inter(a, b):
        o = []
        for x, y in zip(a, b): o += [x, y]
        return o
    def qk(t, bp, bulk=None, steps=range(8)):
        slot = t % 4; S = SB[t & 1]
        for q in steps:
            for kb in range(2):
                p = npair[0]
                rd_at(p, bp, [I(f"ds_read_b128 {ar(frag(p),4)}, v{KA[q&3]} offset:{slot*16384 + (q>>2)*256 + kb*2048}", tile=f"K{t}", slot=slot)], bulk)
                add_pair(*[mf(S + 8*qb + 4*kb, ar(frag(p), 4), ar(A_Q + 8*q + 4*qb, 4),
                              (("0" if t == 0 else vr(NM + 4*qb, 4)) if q == 0 else vr(S + 8*qb + 4*kb, 4))) for qb in range(2)])
    def pv(t, bp, bulk=None):
        slot = 4 + t % 4
        for jj in range(16):
            p = npair[0]
            rd_at(p, bp, tread(p, f"V{t}", slot, TA1[jj & 7], (t % 4) * 16384 + (jj >> 3) * 256), bulk)
            add_pair(*[mf(O0 + 8*jj + 4*qb, ar(frag(p), 4), vr(PB[t & 1] + 4*qb, 4), "0" if t == 0 else vr(O0 + 8*jj + 4*qb, 4)) for qb in range(2)])

    def qconv(q, pk=True):
        l = []
        for qb in range(2):
            X = O0 + 16*q + 4*qb; Y = X + 8
            if pk: l += [I(f"v_pk_mul_f32 {vr(r,2)}, {vr(r,2)}, s[{S_C}:{S_C+1}]") for r in (X, X + 2, Y, Y + 2)]
            else: l += [I(f"v_mul_f32 v{r}, s{S_C}, v{r}") for r in list(range(X, X + 4)) + list(range(Y, Y + 4))]
        for qb in range(2):
            X = O0 + 16*q + 4*qb; Y = X + 8
            l += [I(f"v_cvt_pk_bf16_f32 v{X}, v{X}, v{X+1}"), I(f"v_cvt_pk_bf16_f32 v{Y}, v{Y}, v{Y+1}"),
                  I(f"v_cvt_pk_bf16_f32 v{X+1}, v{X+2}, v{X+3}"), I(f"v_cvt_pk_bf16_f32 v{Y+1}, v{Y+2}, v{Y+3}")]
        for sw in ("16",):
            for qb in range(2):
                X = O0 + 16*q + 4*qb; Y = X + 8
                l += [I(f"v_permlane{sw}_swap_b32 v{X}, v{Y}"), I(f"v_permlane{sw}_swap_b32 v{X+1}, v{Y+1}")]
        for qb in range(2):
            X = O0 + 16*q + 4*qb; Y = X + 8
            l += [I(f"v_accvgpr_write_b32 a{A_Q+8*q+4*qb+n}, v{r}") for n, r in enumerate((X, X + 1, Y, Y + 1))]
        return l
    if P["merge"]:
        pb = npair[0]; bp = pb - LA
        barrier(bp, ["WQ12", "WQ13", "X6", "K0"])
        for q in range(4):
            pr(bp + q // 2).reads.append(I(f"ds_read_b128 {ar(A_X + 4*q, 4)}, v{XA[q>>1]} offset:{(q&1)*2048}", tile="X6", slot=8, private=True))
        def group(g):
            for n in range(4):
                p = npair[0]; j2 = 12 + (n & 1); blk = 2 * g + (n >> 1)
                slot = WQ_SLOT[j2 % 6]
                rd_at(p, bp, tread(p, f"WQ{j2}", slot, TA1[blk & 7], (slot & 3) * 16384 + (blk >> 3) * 256))
                add_pair(*[mf(O0 + 8*blk + 4*qb, ar(frag(p), 4), ar(A_X + 8*(j2 & 1) + 4*qb, 4), vr(O0 + 8*blk + 4*qb, 4)) for qb in range(2)])
        seg = []
        group(0)
        for g in range(8):
            st = npair[0]
            if g >= 1: qk(0, bp, steps=[g - 1])
            if g < 7: group(g + 1)
            seg.append((st, npair[0] - 1))
        qk(0, bp, steps=[7])
        tr = kvq[P["kv10"]:] + ([dma_wo(0), dma_wo(1)] if P["ewo"] else [])
        place_dma(tr, [pb + 1 + (n * 44) // (4 * len(tr)) for n in range(4 * len(tr))])
        for g, (a, b) in enumerate(seg):
            l = qconv(g)
            pr(a).post += l[:8]
            l = l[8:]; n = b - a; tot = sum(cost(i) for i in l); acc_ = 0
            for i in l:
                pr(a + 1 + min(n - 1, acc_ * n // tot)).ops.append(i); acc_ += cost(i)
        pr(pb - 1).post += stamp_ins()
    else:
        barrier(pq_end - LA, ["K0"])
        p0 = npair[0]
        qk(0, pq_end - LA)
        rest = kvq[P["kv10"] + P["kv12"]:]
        tr = rest + ([dma_wo(0), dma_wo(1)] if P["ewo"] else [])
        for d in tr[:-2] if len(tr) > 2 else []: pr(pq_end - 1).post += flat(d)
        place_dma(tr[-2:], [p0 + 1 + 2 * n for n in range(8)])
        place(qconv(0, False), pq_end - (26 if P["bm"] else 12), pq_end - 1, pace=False)
        pr(pq_end - 1).post += stamp_ins()
        for q in range(1, 8): pr(pq_end - 1).post += qconv(q)[:8]
        for q in range(1, 8):
            l = qconv(q)[8:]; h = len(l) // 2
            pr(p0 + 2*q - 2).ops += l[:h]; pr(p0 + 2*q - 1).ops += l[h:]
    pz = npair[0] - 1
    init = inter(rowmax(SB[0], V_T0) + allmax(V_T0, TT[0]), rowmax(SB[0] + 8, V_T1) + allmax(V_T1, TT[1]))
    for qb, x in enumerate((V_T0, V_T1)):
        init += [I(f"v_sub_f32 v{NM+4*qb+n}, 0, v{x}") for n in range(4)]
    for qb, x in enumerate((V_T0, V_T1)):
        init += [I(f"v_sub_f32 v{SB[0]+8*qb+n}, v{SB[0]+8*qb+n}, v{x}") for n in range(8)]
    init += [I(f"v_mov_b32 v{V_L[0]}, 0"), I(f"v_mov_b32 v{V_L[1]}, 0")]
    bulk0 = []
    pr(pz).post += [I("@waitvm K1 V0"), I("s_barrier"), I("@bulk0")] + init + stamp_ins()
    wa_late = [I(f"v_add_u32 v{WA[w][k]}, {0x10000*w}, v{WA[0][k]}") for w in (1, 2) for k in range(4)]

    stubs = []; step_start = []
    bp = pz
    for t in range(32):
        ps = npair[0]; step_start.append(ps)
        inloop = 1 <= t <= 28
        lab = f"{t%4}" if inloop else f"p{t}"
        if t <= 4 or t > 28: stubs.append((lab, t & 1))
        chk = [I(f"v_max_f32 v{V_T0}, v{V_LT[0]}, v{V_LT[1]}"), I(f"v_cmp_nge_f32 vcc, s{S_THR}, v{V_T0}")]
        br = [I(f"s_cbranch_vccnz L_fix{lab}"), I(f"L_ret{lab}:")]
        acc = [I(f"v_add_f32 v{V_L[qb]}, v{V_L[qb]}, v{V_LT[qb]}") for qb in range(2)]
        bulk31 = []
        if t < 31:
            qk(t + 1, bp, bulk0 if t == 0 else None)
            pp = npair[0]
            pv(t, bp)
        else:
            pp = npair[0]
            pv(t, bp, bulk31)
            pr(ps - 1).post += chk + br + [I("@waitvm V31"), I("s_barrier")] + bulk31
        pe = npair[0]
        nb = pe - LA
        if t < 30: barrier(nb, [f"K{t+2}", f"V{t+1}"])
        if P.get("tap") is not None and inloop:
            pr(nb - 1).sc0.append(I(f"s_cmp_{'ge' if len(P['tap']) > 2 else 'lt'}_i32 s{S_CNT}, {P['tap'][0] - 7}"))
            pr(nb - 1).sc1.extend([I(f"s_cbranch_scc1 L_nt{lab}"), I(f"s_waitcnt vmcnt({P['tap'][1]})", blind=True), I(f"L_nt{lab}:")])
        ds = []
        tv = t + P["PDV"]; tk = t + 1 + P["PDK"]
        if tv <= 31: ds.append(dma_v(tv))
        if tk <= 31 or inloop: ds.append(dma_k(tk))
        if P["PDK"] <= P["PDV"] and len(ds) == 2 and not (0, 1, t & 1, 1 - (t & 1))[P.get("vfirst", 0)]: ds = ds[::-1]
        plan = {29: [2], 30: [3, 4, 5], 31: [6]} if P["ewo"] else {29: [0], 30: [1, 2], 31: [3]}
        ds += [dma_wo(x) for x in plan.get(t, [])]
        dsp = P["dsp"] if len(ds) <= 2 else 2
        dl = P.get("dl", 0)
        late = P.get("late", 0)
        if late and t <= 29:
            early = [ps + 2 * late - LA + 3 + dl + dsp * n for n in range(8 - late)]
            assert early[-1] < nb - 1
            poss = early + [nb + 1 + dl + 2 * n for n in range(late)]
        elif late:
            poss = [ps + 2 * late - LA + 3 + dl + (2 * n if late * 2 + dl <= 8 else n + n // 4) for n in range(12)] if t == 30 else [ps + 1 + 2 * n for n in range(12)]
        else: poss = [ps + 1 + dsp * n for n in range(12)]
        place_dma(ds, poss)
        if inloop and t % 4 == 0:
            pr(pe - 1).sc0.append(I(f"s_add_u32 s{S_CNT}, s{S_CNT}, 1"))
            pr(pe - 1).post.append(I("s_cbranch_scc0 L_loop"))
        if P.get("lstamps"):
            pr(ps + 2).post += [I("s_waitcnt lgkmcnt(0)", blind=True), I(f"s_memrealtime s[{S_ST}:{S_ST+1}]"), I(f"s_memtime s[{S_ST+2}:{S_ST+3}]"),
                I("v_mov_b32_dpp v70, v70 wave_shr:1 row_mask:0xf bank_mask:0xf"), I("v_mov_b32_dpp v71, v71 wave_shr:1 row_mask:0xf bank_mask:0xf"),
                I("s_waitcnt lgkmcnt(0)", blind=True), I(f"v_writelane_b32 v70, s{S_ST}, 0"), I(f"v_writelane_b32 v71, s{S_ST+2}, 0")]
        if t == 0: pr(pe - 2).sc0.append(I(f"s_mov_b32 s{S_CNT}, -7"))
        if P["cpf"] >= 2 and inloop and t % 4 == 1:
            pr(pp + 5).mem.append(I(f"global_load_dword v{V_CP+1}, v{V_CP}, s[{S_PC}:{S_PC+1}]", nodep=True))
        yield_info = (t, ps, pp, pe, chk, br, acc)
        step_start[-1] = yield_info
        bp = nb if t < 30 else pe - 1
    pm_end = npair[0]

    ACC = [SB[0], O0 + 64]
    otile = []
    for j in range(14):
        u = j >> 1; kh = j & 1; slot = WO_SLOT[j]; wa = WA[slot >> 2]; base = (slot & 3) * 16384
        pb = npair[0]; bp = pb - LA; otile.append(pb)
        if P["fewb"]:
            cover = {0: range(0, 6), 3: [], 6: range(6, 9), 9: range(9, 14)}
            if j in cover: barrier(bp, [f"WO{x}" for x in cover[j]])
        else: barrier(bp, [f"WO{j}"])
        for q in range(4):
            for jn in range(4):
                p = npair[0]
                rd_at(p, bp, tread(p, f"WO{j}", slot, wa[jn], base + q * 4096))
                a = ACC[u & 1] + 4 * jn
                add_pair(*[mf(a + 16*qb, ar(frag(p), 4), vr(O0 + 8*(4*kh + q) + 4*qb, 4), "0" if (kh == 0 and q == 0) else vr(a + 16*qb, 4)) for qb in range(2)])
        if P["ewo"]:
            ds = [j + 7] if j <= 6 else []
            if P["fewb"]: ds = {0: [7], 1: [8], 3: [9], 4: [10], 5: [11], 6: [12], 7: [13]}.get(j, [])
            place_dma([dma_wo(x) for x in ds], [bp + 1 + 4 * n for n in range(4)])
        else:
            ds = {0: [4, 5], 1: [6, 7], 2: [8, 9], 3: [10, 11], 4: [12], 5: [13]}.get(j, [])
            place_dma([dma_wo(x) for x in ds], [bp + 1 + 2 * n for n in range(8)])

    for (t, ps, pp, pe, chk, br, acc) in step_start:
        if t < 31: pr(pp - 1).sc0.extend(br)
        place(acc, pp, pp + 1, pace=False)
    w0 = step_start[9][2] + P["sm_start"]
    rec = place(softmax_ops(10) + step_start[10][4], w0, step_start[10][2] - 2)
    for t in range(1, 31):
        if t == 10: continue
        l = softmax_ops(t) + step_start[t][4]
        for n, k in rec: pr(step_start[t-1][2] + P["sm_start"] + n).ops.append(l[k])
    l = softmax_ops(0) + step_start[0][4]
    nrel = step_start[1][1] - (step_start[0][2] + P["sm_start"])
    for n, k in rec:
        if n < nrel: pr(pz).post.append(l[k])
        else: pr(step_start[0][1] + n - nrel).ops.append(l[k])
    place(softmax_ops(31), step_start[30][2] + P["sm_start"], step_start[30][3] - 1, pace=False)
    place(wa_late, step_start[0][1], step_start[0][3] - 1, pace=False)
    pr(step_start[29][2]).mem.append(I(f"global_load_dword v{V_POLL}, v{V_DBG}, s[{S_DBG}:{S_DBG+1}] sc1", tag="HS"))
    def allsum(x, t):
        return [I(f"v_mov_b32 v{t}, v{x}"), I(f"v_permlane32_swap_b32 v{x}, v{t}"), I(f"v_add_f32 v{x}, v{x}, v{t}"),
                I(f"v_mov_b32 v{t}, v{x}"), I(f"v_permlane16_swap_b32 v{x}, v{t}"), I(f"v_add_f32 v{x}, v{x}, v{t}")]
    lsum = inter(allsum(V_L[0], V_T0), allsum(V_L[1], V_T1)) + [I(f"v_rcp_f32 v{V_RI[qb]}, v{V_L[qb]}") for qb in range(2)]
    def oconv(q):
        l = []
        for qb in range(2):
            X = O0 + 16*q + 4*qb; Y = X + 8; D = O0 + 8*q + 4*qb
            l.append([(D, X), (D + 1, X + 2), (D + 2, Y), (D + 3, Y + 2)])
        o = l[0] + l[1]
        if q == 0:
            pass
        return [I(f"v_cvt_pk_bf16_f32 v{d}, v{x}, v{x+1}") for d, x in o]
    place(oconv(0) + oconv(1), pm_end - 10, pm_end - 1)
    pr(pm_end - 1).post += stamp_ins()
    for q in range(2, 8):
        place(oconv(q), pm_end + 4 * (q - 2), pm_end + 4 * (q - 2) + 3)
    place(lsum, pm_end + 24, pm_end + 33)
    STG = [PB[0], PB[1]]
    def finish(u, pk=False):
        l = []
        for qb in range(2):
            a = ACC[u & 1] + 16 * qb; st = STG[qb]
            for q in range(8):
                if pk: l.append(I(f"v_pk_mul_f32 {vr(a+2*q,2)}, {vr(a+2*q,2)}, {vr(V_RI[0],2)} op_sel:[0,{qb}] op_sel_hi:[1,{qb}]"))
                else:
                    l.append(I(f"v_mul_f32 v{a+2*q}, v{V_RI[qb]}, v{a+2*q}"))
                    l.append(I(f"v_mul_f32 v{a+2*q+1}, v{V_RI[qb]}, v{a+2*q+1}"))
                l.append(I(f"v_cvt_pk_bf16_f32 v{st+q}, v{a+2*q}, v{a+2*q+1}"))
                if q & 3 == 3 and not P.get("nostore"):
                    l.append(I(f"buffer_store_dwordx4 {vr(st+q-3,4)}, v{V_L16}, s[{S_P}:{S_P+3}], s{SOFF[u]} offen offset:{qb*2048+(q>>2)*1024} {P['st_aux']}", tag=f"PST{u}"))
        return l
    bp = otile[0] + 16 * P["sig"] - LA
    barrier(bp, [f"PST{P['n1']-1}"])
    sig = Stream()
    sig(f"""
    s_cmp_lg_u32 s{S_WAVE}, 0
    s_cbranch_scc1 L_nosig1
    v_readfirstlane_b32 s{S_T0}, v{V_POLL}
    s_cmp_lt_u32 s{S_T0}, 16
    s_cbranch_scc1 L_hs
    L_hsok:
    s_mov_b64 exec, 0xffff
    """)
    sig(f"global_store_dword v{V_FLG2}, v{V_ONE}, s[{S_FL}:{S_FL+1}] sc1", untracked=True)
    sig("s_mov_b64 exec, -1\nL_nosig1:")
    pr(bp).post += sig.ins
    if P["early"]:
        pr(npair[0] - P["early"]).mem.append(I(f"global_load_dword v{V_EP}, v{V_FLG}, s[{S_FL}:{S_FL+1}] sc1", tag="EP"))
    if P.get("ostamps"):
        for u in range(1, 7): pr(otile[2 * u] - 1).post += stamp_ins()
    for u in range(1, 7):
        pb = otile[2 * u]
        place(finish(u - 1), pb + (2 if u == 1 else 1), pb + 31, pace=False)
    pr(npair[0] - 1).post += [I("@stop")] + finish(6, True)

    def gap_order(mem, ops):
        first = list(mem); rest = []
        for i in ops:
            if i.kind == "vmem" and not any(x.wr & i.rd for x in rest): first.append(i)
            else: rest.append(i)
        return first + rest
    def emit_list(l):
        for i in l:
            if i.kind == "pseudo" and i.op == "@bulk0":
                for x in bulk0: s.add(x)
            else: s.add(i)
    emit_list(head.sc0 + head.post)
    starts = {x[1]: x[0] for x in step_start}
    worst = 0
    for p, q in enumerate(PR):
        if p in starts and starts[p] % 4 == 1: s.add(I(f"@block {starts[p]//4}"))
        mem = q.reads + q.mem
        best = None
        e0 = max(0, sum(cost(x) for x in q.sc0) - 1); e1 = sum(cost(x) for x in q.sc1)
        for r0 in range(len(mem), -1, -1):
            for k in range(len(q.ops) + 1):
                c0 = e0 + r0 + sum(cost(x) for x in q.ops[:k]); c1 = e1 + len(mem) - r0 + sum(cost(x) for x in q.ops[k:])
                nr = len(q.reads); ra = min(r0, nr)
                sc_ = (max(c0, 2) + max(c1, 2), max(c0, c1), abs(2 * ra - nr) if P["bal"] else 0, -r0)
                if best is None or sc_ < best[0]: best = (sc_, r0, k)
        _, r0, k = best
        worst += best[0][0] - 4
        emit_list(q.pre)
        s.add(q.m[0]); emit_list(q.sc0); emit_list(gap_order(mem[:r0], q.ops[:k]))
        s.add(q.m[1]); s.add(I("@waitnext " + " ".join(q.vmtags))); emit_list(q.sc1); emit_list(gap_order(mem[r0:], q.ops[k:]))
        pad = (P.get("qpad", 0) if p < P.get("qpadn", 999) else 0) if p < pq_end else (P.get("mpad", 0) if p < pm_end else P.get("opad", 0))
        if pad: s.add(I(f"s_nop {pad-1}"))
        emit_list(q.post)
    if P.get("verbose"): print("overfull slots:", worst)

    poll = f"global_load_dword v{V_EP}, v{V_FLG}, s[{S_FL}:{S_FL+1}] sc1"
    tailsubs = Stream()
    def signal2(st, lab):
        st(f"s_cmp_lg_u32 s{S_WAVE}, 0\ns_cbranch_scc1 {lab}\ns_mov_b64 exec, 0xffff")
        st(f"global_store_dword v{V_FLG2}, v{V_ONE}, s[{S_FL}:{S_FL+1}] offset:64 sc1", untracked=True)
        st(f"s_mov_b64 exec, -1\n{lab}:\ns_mov_b32 s{S_CNT}, 0")
    def loads(st, o=None):
        o = o or s
        for h in range(16):
            o(f"buffer_load_dwordx4 {vr(O0+64*st+4*h,4)}, v{V_L16}, s[{S_P}:{S_P+3}], s{S_RR[st]} offen {P['ld_aux']}", tag=f"R{st}_{h}")
            if h < 15: o(f"s_add_u32 s{S_RR[st]}, s{S_RR[st]}, {PART_H}")
    if P["early"]:
        s(f"""
        v_cmp_ne_u32 vcc, 1, v{V_EP}
        s_cmp_eq_u32 s{S_RA[0]}, 0
        s_cselect_b32 s{S_T0}, 0xffff, vcc_lo
        s_and_b32 s{S_T0}, s{S_T0}, 0xffff
        s_cbranch_scc0 L_early
        """)
        tailsubs("L_early:")
        loads(0, tailsubs)
        tailsubs("s_waitcnt vmcnt(16)\ns_barrier")
        signal2(tailsubs, "L_nosig2e")
        tailsubs("s_branch L_join")
        tailsubs("s_waitcnt vmcnt(0)")
    s(poll)
    for i in stamp_ins(): s.add(i)
    s("s_waitcnt vmcnt(0)\ns_barrier")
    for i in stamp_ins(): s.add(i)
    signal2(s, "L_nosig2")
    tailsubs(f"""
    L_hs:
    s_mov_b32 s{S_CNT}, 0
    L_hs2:
    s_sleep 8
    global_load_dword v{V_POLL}, v{V_DBG}, s[{S_DBG}:{S_DBG+1}] sc1
    s_waitcnt vmcnt(0)
    v_readfirstlane_b32 s{S_T0}, v{V_POLL}
    s_add_u32 s{S_CNT}, s{S_CNT}, 1
    s_cmp_ge_u32 s{S_CNT}, 0x40000
    s_cbranch_scc1 L_hsok
    s_cmp_lt_u32 s{S_T0}, 16
    s_cbranch_scc1 L_hs2
    s_branch L_hsok
    """)
    def waitflags(st):
        mask = 0xffff << (16 * st)
        s(f"""
        L_w{st}:
        v_cmp_ne_u32 vcc, 1, v{V_EP}
        s_and_b32 s{S_T0}, vcc_lo, {mask:#x}
        s_cbranch_scc0 L_ok{st}
        s_add_u32 s{S_CNT}, s{S_CNT}, 1
        s_cmp_ge_u32 s{S_CNT}, 0x40000
        s_cbranch_scc1 L_ok{st}
        s_sleep {P['sleep']}
        """)
        s(poll, untracked=True)
        s(f"s_waitcnt vmcnt(0)", blind=True)
        s(f"s_branch L_w{st}\nL_ok{st}:")
    def accum(st, h0, h1):
        A0 = SB[st]
        for h in range(h0, h1):
            for q in range(4):
                r = O0 + 64 * st + 4 * h + q
                for z, k in enumerate((S_LO, S_HI)):
                    s(f"v_dot2_f32_bf16 v{A0+2*q+z}, v{r}, s{k}, " + ("0" if h == 0 else f"v{A0+2*q+z}"))
    def final(st):
        A0 = SB[st]; D = PB[st]
        for q in range(4): s(f"v_cvt_pk_bf16_f32 v{D+q}, v{A0+2*q}, v{A0+2*q+1}")
        for sw in ("16",):
            s(f"v_permlane{sw}_swap_b32 v{D}, v{D+2}\nv_permlane{sw}_swap_b32 v{D+1}, v{D+3}")
        s(f"buffer_store_dwordx4 {vr(D,4)}, v{V_OUT}, s[{S_OUT}:{S_OUT+3}], s{S_RO[st]} offen {P['out_aux']}")
    s(f"s_cmp_eq_u32 s{S_RA[0]}, 0\ns_cbranch_scc1 L_st2")
    waitflags(0)
    loads(0)
    s("L_join:")
    accum(0, 0, 16 - P["pw"])
    s(poll)
    accum(0, 16 - P["pw"], 16)
    s("s_waitcnt vmcnt(0)")
    s("L_st2:")
    for i in stamp_ins(): s.add(i)
    s(f"s_cmp_eq_u32 s{S_RA[1]}, 0\ns_cbranch_scc1 L_fin0")
    waitflags(1)
    loads(1)
    accum(1, 0, 16)
    final(1)
    s(f"s_cmp_eq_u32 s{S_RA[0]}, 0\ns_cbranch_scc1 L_done\nL_fin0:\ns_nop 2")
    final(0)
    s("L_done:")
    if P.get("probe") is not None:
        s("s_waitcnt vmcnt(0)\ns_barrier")
        for i in stamp_ins(): s.add(i)
        s(f"""
        L_spin:
        s_sleep 4
        s_memrealtime s[{S_ST+2}:{S_ST+3}]
        s_waitcnt lgkmcnt(0)
        s_sub_u32 s{S_T0}, s{S_ST+2}, s{S_ST}
        s_cmp_lt_u32 s{S_T0}, 10000
        s_cbranch_scc1 L_spin
        """)
    if P["stamps"]:
        s("s_waitcnt vmcnt(0)\ns_barrier")
        for i in stamp_ins(): s.add(i)
        s(f"""
        s_lshl_b32 s3, s2, 7
        v_lshrrev_b32 v59, 2, v{V_L16}
        v_add_u32 v59, s3, v59
        s_cmp_lg_u32 s{S_WAVE}, 0
        s_cbranch_scc1 L_end
        s_mov_b32 exec_hi, 0
        global_store_dword v59, v{V_ST}, s[{S_WS}:{S_WS+1}]
        v_add_u32 v59, 0x10000, v59
        global_store_dword v59, v70, s[{S_WS}:{S_WS+1}]
        v_add_u32 v59, 0x10000, v59
        global_store_dword v59, v71, s[{S_WS}:{S_WS+1}]
        """)
    s("L_end:\ns_endpgm")

    ins = resolve(s.ins, pair_waits=False, verbose=P.get("verbose"))
    marks = [k for k, i in enumerate(ins) if i.kind == "pseudo" and i.op == "@block"]
    assert len(marks) == 8
    blocks = [text_of(ins[marks[b]:marks[b+1]]) for b in range(7)]
    for b in range(1, 7):
        if blocks[b] != blocks[0]:
            import difflib
            print("".join(list(difflib.unified_diff(blocks[0].splitlines(1), blocks[b].splitlines(1), n=1))[:60]))
            raise SystemExit(f"block {b} differs from block 0")
    body = text_of(ins[:marks[0]]) + ".p2align 3\nL_loop:\n" + blocks[0] + text_of(ins[marks[7]:])

    r = Stream()
    for lab, par in stubs:
        r(f"L_fix{lab}:\ns_call_b64 s[{S_RET}:{S_RET+1}], L_rescale{par}\ns_branch L_ret{lab}")
    for par in range(2):
        r(f"L_rescale{par}:\ns_nop 15\n@fence")
        S = SB[par]; S2 = SB[1 - par]
        for qb, x in enumerate((V_T0, V_T1)):
            for i in rowmax(S + 8*qb, x) + allmax(x, TT[0]): r.add(i)
            r(f"v_max_f32 v{x}, 0, v{x}\nv_exp_f32 v{TT[1]}, -v{x}")
            for n in range(4): r(f"v_sub_f32 v{NM+4*qb+n}, v{NM+4*qb+n}, v{x}")
            for n in range(8): r(f"v_sub_f32 v{S+8*qb+n}, v{S+8*qb+n}, v{x}\nv_sub_f32 v{S2+8*qb+n}, v{S2+8*qb+n}, v{x}")
            r(f"v_mul_f32 v{V_L[qb]}, v{V_L[qb]}, v{TT[1]}")
            for jj in range(16):
                for n in range(4): r(f"v_mul_f32 v{O0+8*jj+4*qb+n}, v{TT[1]}, v{O0+8*jj+4*qb+n}")
        for i in softmax_ops(par): r.add(i)
        r(f"s_nop 3\ns_setpc_b64 s[{S_RET}:{S_RET+1}]")
    body += text_of(resolve(tailsubs.ins)) + text_of(resolve(r.ins)) + "L_codeend:\n"
    return whole_file(["; @launch grid=(256,1,1) block=(256,1,1) lds=163840"], [kernel_block(KN, body, 512, 102, 256)])

if __name__ == "__main__":
    out = sys.argv[1]
    kw = {}
    for a in sys.argv[2:]:
        k, v = a.split("=", 1)
        try: v = eval(v)
        except Exception: pass
        kw[k] = v
    open(out, "w").write(build(**kw))
```

```python
import re

def expand(tok):
    tok = tok.strip()
    neg = tok.startswith("-")
    if neg: tok = tok[1:]
    m = re.fullmatch(r"([vas])\[(\d+):(\d+)\]", tok)
    if m: return [f"{m.group(1)}{i}" for i in range(int(m.group(2)), int(m.group(3)) + 1)]
    m = re.fullmatch(r"([vas])(\d+)", tok)
    if m: return [tok]
    if tok in ("vcc_lo", "vcc_hi"): return ["vcc"]
    if tok in ("vcc", "m0", "exec", "scc"): return [tok]
    return []

TRANS = ("v_exp_f32", "v_rcp_f32", "v_log_f32", "v_rsq_f32", "v_sqrt_f32")

class I:
    __slots__ = ("text", "kind", "rd", "wr", "tag", "meta", "op", "srcC", "srcAB", "size")
    def __init__(self, text, tag=None, **meta):
        self.text = text.strip(); self.tag = tag; self.meta = meta
        self.rd = set(); self.wr = set(); self.srcC = set(); self.srcAB = set()
        t = self.text.split(";")[0].strip()
        if t.endswith(":"):
            self.kind = "label"; self.op = ""; return
        if t.startswith("@"):
            self.kind = "pseudo"; self.op = t.split()[0]; return
        if t.startswith("."):
            self.kind = "dir"; self.op = t.split()[0]; return
        parts = t.split(None, 1)
        op = parts[0]; self.op = op
        base = re.sub(r"_e(32|64)$", "", op)
        ops = []
        if len(parts) > 1:
            ops = [x.strip() for x in parts[1].split(",")]
            last = ops[-1].split()
            mods = last[1:]; ops[-1] = last[0] if last else ""
        else:
            mods = []
        E = lambda k: expand(ops[k]) if k < len(ops) else []
        allr = lambda a: [r for k in range(a, len(ops)) for r in E(k)]
        if op.startswith("v_mfma"):
            self.kind = "mfma"
            self.wr = set(E(0)); self.srcAB = set(E(1) + E(2)); self.srcC = set(E(3)); self.rd = self.srcAB | self.srcC
        elif op.startswith("ds_read") or op.startswith("ds_bpermute"):
            self.kind = "ds"; self.wr = set(E(0)); self.rd = set(allr(1))
        elif op.startswith("ds_write"):
            self.kind = "ds"; self.rd = set(allr(0))
        elif op.startswith("buffer_load") or op.startswith("global_load"):
            self.kind = "vmem"
            if "lds" in mods:
                self.rd = set(allr(0)) | {"m0"}
            else:
                self.wr = set(E(0)); self.rd = set(allr(1))
        elif op.startswith("buffer_store") or op.startswith("global_store") or op.startswith("global_atomic") or op.startswith("buffer_atomic"):
            self.kind = "vmem"; self.rd = set(allr(0))
        elif op.startswith("buffer_wbl2") or op.startswith("buffer_inv"):
            self.kind = "vmem"
        elif op.startswith("v_cmp"):
            self.kind = "valu"; self.wr = set(E(0)); self.rd = set(allr(1))
        elif op.startswith("v_permlane32_swap") or op.startswith("v_permlane16_swap"):
            self.kind = "valu"; self.wr = set(allr(0)); self.rd = set(allr(0))
        elif op.startswith("v_readfirstlane") or op.startswith("v_readlane"):
            self.kind = "valu"; self.wr = set(E(0)); self.rd = set(allr(1))
        elif op.startswith("v_"):
            self.kind = "trans" if base in TRANS else "valu"
            self.wr = set(E(0)); self.rd = set(allr(1))
            if base in ("v_fmac_f32", "v_dot2c_f32_bf16"): self.rd |= self.wr
        elif op == "s_waitcnt": self.kind = "wait"
        elif op == "s_barrier": self.kind = "barrier"
        elif op == "s_nop": self.kind = "nop"
        elif op.startswith("s_atomic"):
            self.kind = "smem"; self.rd = set(allr(0))
        elif op.startswith("s_load") or op in ("s_memrealtime", "s_memtime"):
            self.kind = "smem"; self.wr = set(E(0)); self.rd = set(allr(1))
        elif op.startswith("s_cbranch") or op in ("s_branch", "s_call_b64", "s_setpc_b64", "s_endpgm"):
            self.kind = "branch"
            if "vcc" in op: self.rd = {"vcc"}
        elif op.startswith("s_cmp") or op.startswith("s_bitcmp"):
            self.kind = "salu"; self.rd = set(allr(0)); self.wr = {"scc"}
        elif op.startswith("s_"):
            self.kind = "salu"; self.wr = set(E(0)); self.rd = set(allr(1))
        else:
            raise ValueError("unknown instr " + text)
    def states(self):
        if self.kind == "nop": return int(self.text.split()[1]) + 1
        if self.kind in ("label", "pseudo", "dir"): return 0
        return 1

def need_states(p, c):
    n = 0
    pv = p.kind in ("valu", "trans"); cv = c.kind in ("valu", "trans")
    vr = lambda s: {r for r in s if r[0] in "va" and r != "vcc"}
    sr = lambda s: {r for r in s if (r[0] == "s" and r != "scc") or r == "vcc"}
    if p.kind == "mfma":
        passes8 = "32x32" in p.op
        big = 12 if passes8 else 8
        if c.kind == "mfma":
            if c.srcAB & p.wr: n = max(n, big)
            if (c.srcC & p.wr) and c.srcC != p.wr: n = max(n, big - 2)
            if (c.wr & p.wr) and not (c.srcC & p.wr): n = max(n, big)
        elif cv or c.kind in ("ds", "vmem"):
            if (c.rd | c.wr) & p.wr: n = max(n, big)
            if cv and (c.wr & p.srcC): n = max(n, 7 if passes8 else 3)
    if pv:
        if c.kind == "mfma" and (c.rd & vr(p.wr)): n = max(n, 2)
        if p.kind == "trans" and cv and (c.rd & p.wr): n = max(n, 1)
        if c.op.startswith("v_permlane") and (c.rd & vr(p.wr)): n = max(n, 2)
        if (c.op.startswith("v_readfirstlane") or c.op.startswith("v_readlane")) and (c.rd & vr(p.wr)): n = max(n, 1)
        if sr(p.wr):
            if c.kind == "vmem" and (c.rd & sr(p.wr)): n = max(n, 5)
            if cv and (c.rd & sr(p.wr)): n = max(n, 2)
            if c.kind in ("salu", "branch") and (c.rd & sr(p.wr)): n = max(n, 1)
        if p.op.startswith("v_dot2") and (cv or c.kind in ("vmem", "ds")) and ((c.rd | c.wr) & p.wr):
            if not (c.op == p.op and not ((c.rd - c.wr) & p.wr)): n = max(n, 3)
    if p.kind == "vmem" and ("store" in p.op) and ("x4" in p.op or "x3" in p.op):
        if (cv or c.kind in ("ds", "vmem", "mfma")) and (c.wr & vr(p.rd)): n = max(n, 2)
    if p.kind == "salu" and "m0" in p.wr and c.kind == "vmem" and "m0" in c.rd: n = max(n, 1)
    return n

class Stream:
    def __init__(self):
        self.ins = []
    def __call__(self, s, tag=None, **meta):
        for l in s.strip("\n").split("\n"):
            l = l.strip()
            if l and not l.startswith(";"):
                self.ins.append(I(l, tag, **meta))
    def add(self, i): self.ins.append(i)

def resolve(ins, pair_waits=True, verbose=False):
    for k, i in enumerate(ins):
        if i.kind == "branch" and i.op.startswith("s_cbranch"):
            lab = i.text.split()[-1] + ":"
            for j in range(k + 1, min(k + 40, len(ins))):
                if ins[j].kind == "label" and ins[j].text == lab:
                    for x in ins[k + 1:j]: x.meta["skip"] = True
                    break
    out = []
    dsq = []
    vmq = []
    landed = set()
    visible = set()
    slot_tile = {}
    reads_open = {}
    done_ds = set()
    safe_tiles = set()
    nnop = 0
    cur_m0 = [None]
    def emit(i):
        nonlocal nnop
        need = 0; dist = 0
        for p in reversed(out):
            if dist >= 20: break
            if p.kind == "pseudo" and p.op == "@fence": break
            k = need_states(p, i)
            if k > dist: need = max(need, k - dist)
            if not p.meta.get("skip") or i.meta.get("skip"): dist += p.states()
        if need:
            nnop += 1
            out.append(I(f"s_nop {need-1}", auto=True, skip=i.meta.get("skip")))
        out.append(i)
    def wait_ds(n):
        while len(dsq) > n:
            d = dsq.pop(0); done_ds.add(id(d))
    def wait_vm(n):
        while len(vmq) > n:
            d = vmq.pop(0)
            t = d.meta.get("tile")
            if t is not None and not any(x.meta.get("tile") == t for x in vmq): landed.add(t)
    for idx, i in enumerate(ins):
        if i.kind == "pseudo" and i.op == "@waitvm":
            tags = i.text.split()[1:]
            last = -1
            for k, d in enumerate(vmq):
                if d.tag in tags or d.meta.get("tile") in tags: last = k
            if last >= 0 or i.meta.get("force"):
                n = len(vmq) - 1 - last
                assert n <= 63
                emit(I(f"s_waitcnt vmcnt({n})")); wait_vm(n)
            continue
        if i.kind == "pseudo" and i.op == "@waitnext":
            tags = i.text.split()[1:]
            nxt = []
            for j in range(idx + 1, len(ins)):
                if ins[j].kind == "mfma":
                    nxt.append(ins[j])
                    if len(nxt) == 2: break
                if ins[j].kind == "pseudo" and ins[j].op == "@stop": break
            need = set()
            for m_ in nxt: need |= m_.rd
            last = -1
            for k, d in enumerate(dsq):
                if d.wr & need or d.meta.get("tile") in i.meta.get("drain", ()): last = k
            w = []
            lv = -1
            for k, d in enumerate(vmq):
                if d.tag in tags or d.meta.get("tile") in tags: lv = k
            if lv >= 0:
                n = len(vmq) - 1 - lv; assert n <= 63
                w.append(f"vmcnt({n})"); wait_vm(n)
            if last >= 0:
                n = len(dsq) - 1 - last; assert n <= 15
                w.append(f"lgkmcnt({n})"); wait_ds(n)
            if w: emit(I("s_waitcnt " + " ".join(w), auto=True))
            continue
        if i.kind == "pseudo":
            out.append(i); continue
        if i.kind == "wait" and i.meta.get("blind"):
            emit(i); continue
        if i.kind == "wait":
            m = re.search(r"lgkmcnt\((\d+)\)", i.text)
            if m: wait_ds(int(m.group(1)))
            m = re.search(r"vmcnt\((\d+)\)", i.text)
            if m: wait_vm(int(m.group(1)))
            emit(i); continue
        touched = i.rd | i.wr
        if i.meta.get("nodep"): touched = set(i.rd)
        last = -1
        for k, d in enumerate(dsq):
            if d.wr & touched: last = k
        if last >= 0:
            if pair_waits and i.kind == "mfma":
                for j in range(idx + 1, min(idx + 16, len(ins))):
                    if ins[j].kind == "mfma":
                        l2 = -1
                        for k, d in enumerate(dsq):
                            if d.wr & ins[j].rd: l2 = k
                        if l2 > last and len(dsq) - 1 - l2 >= 2: last = l2
                        break
            n = len(dsq) - 1 - last
            assert n <= 15, "lgkmcnt overflow"
            emit(I(f"s_waitcnt lgkmcnt({n})", auto=True)); wait_ds(n)
        last = -1
        for k, d in enumerate(vmq):
            if d.wr & touched: last = k
        if last >= 0:
            n = len(vmq) - 1 - last
            assert n <= 63
            emit(I(f"s_waitcnt vmcnt({n})", auto=True)); wait_vm(n)
        if i.kind == "barrier":
            visible |= landed
            for t, l in list(reads_open.items()):
                l[:] = [d for d in l if id(d) not in done_ds]
        if i.kind == "ds":
            t = i.meta.get("tile")
            if t is not None:
                if i.meta.get("private"): assert t in landed, f"read of {t} before own wait: {i.text}"
                else: assert t in visible, f"read of {t} before it is visible: {i.text}"
                assert slot_tile.get(i.meta["slot"]) == t, f"slot {i.meta['slot']} holds {slot_tile.get(i.meta['slot'])}, wanted {t}"
                reads_open.setdefault(t, []).append(i)
            dsq.append(i)
            assert len(dsq) <= 16, "too many ds ops in flight"
        if i.kind == "salu" and "m0" in i.wr:
            cur_m0[0] = i.text.split(",")[-1].strip()
        if i.kind == "vmem":
            t = i.meta.get("tile")
            if t is not None:
                assert cur_m0[0] == str(i.meta["slot"] * 16384), f"m0 mismatch for {t}"
                s = i.meta["slot"]; old = slot_tile.get(s)
                if old is not None and old != t:
                    l = reads_open.get(old, [])
                    l2 = [d for d in l if not (d.meta.get("private") and id(d) in done_ds)]
                    assert not l2, f"DMA {t} into slot {s} while reads of {old} may be pending"
                    assert old in reads_open or i.meta.get("unread_ok"), f"tile {old} overwritten before being read"
                slot_tile[s] = t
            if not i.meta.get("untracked"): vmq.append(i)
            assert len(vmq) <= 61, "too many vmem ops in flight"
        emit(i)
    if verbose: print("auto nops:", nnop)
    return out

def text_of(ins):
    o = []
    for i in ins:
        if i.kind == "pseudo": continue
        o.append(i.text if i.kind == "label" else "    " + i.text)
    return "\n".join(o) + "\n"
```

```python
import sys, math, struct
from asmlib import *
from stream import *

def f2u(x): return struct.unpack("<I", struct.pack("<f", x))[0]

DEF = dict(LA=4, PDK=2, PDV=2, late=2, kv_aux="nt", wq_aux="", wpf=0, prog=0, krot=1, early=0, vfirst=3, dl=5, b31=1, half=1, order=(0,1,3,2), obit=4, f2=(0,0,0), pre2=1, merge=1, kperm=0, ek=(2,6), eki=0, xlast=1, fa=(3,1,18), fb=(3,1,18), kv10=2, kv12=1, bal=1, x1e=0, out_aux="sc1", fast=0, fewb=1, ewo=1, bm=1, wo_aux="", x_aux="", stamps=False,
           st_aux="sc1", ld_aux="sc1", rot=4, orot=2, n1=4, sig=11.5, pw=4, wsoff=0x1000000, thr=4096.0, early_k=10, sleep=2, dsp=2,
           sm_start=2, ann="s", cpf=1)

O0 = 128
SB = [96, 112]
PB = [80, 88]
NM = 72
TT = list(range(0, 8))
V_L = [64, 65]; V_LT = [66, 67]; V_T0, V_T1 = 62, 63; V_RI = [60, 61]
KA = list(range(8, 12))
TA1 = list(range(12, 20))
TA0 = list(range(20, 28))
XA = [28, 29]
KD = [30, 31]; VD = [32, 33]; QD = list(range(34, 38)); XD = list(range(38, 42)); WD = list(range(42, 46))
WA = [list(range(46, 50)), list(range(20, 24)), list(range(24, 28))]
V_L16 = 50; V_OUT = 51
V_FLG = 52; V_FLG2 = 53; V_ONE = 54; V_POLL = 55; V_DBG = 56; V_ST = 57; V_CP = 68; V_EP = 59
A_Q = 0; A_F = 64; NF = 16; A_X = 128

S_X, S_K, S_V, S_WQ, S_WO, S_P, S_OUT = 32, 36, 40, 44, 48, 52, 56
S_DBG = 26; S_WS = 28
S_W4K, S_WAVE, S_BR, S_B, S_H, S_G = 60, 61, 62, 63, 64, 65
S_KOFF, S_VOFF, S_QU, S_T0, S_T1, S_THR, S_CNT, S_OU, S_OS, S_PB = 66, 67, 68, 69, 70, 72, 73, 74, 75, 76
S_RET = 78; S_FL = 80; S_C = 82
S_ST = 84; S_G4 = 88; S_ONE = 89; S_PC = 90; S_BT = 93; S_RR = [94, 95]; S_RO = [96, 97]; S_RA = [98, 99]; S_LO = 100; S_HI = 101; S_ADV = [75, 77, 93, 24]

PART_W = 28672; PART_H = 4 * PART_W; PART_G = 16 * PART_H
FLAG_OFF = 0x100000

def vr(a, n): return f"v[{a}:{a+n-1}]"
def ar(a, n): return f"a[{a}:{a+n-1}]"
def cost(i):
    if i.kind == "trans" or i.op.startswith("v_permlane"): return 2
    if i.kind in ("label", "pseudo"): return 0
    return 1

class Pair:
    def __init__(self):
        self.m = []; self.reads = []; self.mem = []; self.ops = []; self.sc0 = []; self.sc1 = []
        self.pre = []; self.post = []; self.vmtags = []; self.drain = []
    def free(self):
        return 4 - len(self.reads) - len(self.mem) - sum(cost(i) for i in self.ops) - max(0, len(self.sc0) - 1) - sum(cost(i) for i in self.sc1)

def build(**kw):
    P = dict(DEF); P.update(kw)
    LA = P["LA"]
    ADV = "0" if P.get("noadv") else "0x4000"
    s = Stream()
    nstamp = [0]
    def stamp_ins():
        if P.get("probe") is not None:
            k = nstamp[0]; nstamp[0] += 1
            if k != P["probe"]: return []
            return [I("s_waitcnt lgkmcnt(0)", blind=True), I(f"s_memrealtime s[{S_ST}:{S_ST+1}]"), I("s_waitcnt lgkmcnt(0)", blind=True)]
        if not P["stamps"]: return []
        k = nstamp[0]; nstamp[0] += 1
        assert k < 16
        return [I("s_waitcnt lgkmcnt(0)", blind=True), I(f"s_memrealtime s[{S_ST}:{S_ST+1}]"), I(f"s_memtime s[{S_ST+2}:{S_ST+3}]"),
                I("s_waitcnt lgkmcnt(0)", blind=True), I(f"v_writelane_b32 v{V_ST}, s{S_ST}, {k}"), I(f"v_writelane_b32 v{V_ST}, s{S_ST+2}, {16+k}")]

    s("s_cmp_ge_u32 s2, 256\ns_cbranch_scc1 L_end")
    for i in stamp_ins(): s.add(i)
    s(f"""
    s_load_dwordx16 s[4:19], s[0:1], 0
    s_load_dwordx8 s[20:27], s[0:1], 64
    s_load_dwordx2 s[28:29], s[0:1], 96
    s_getpc_b64 s[{S_PC}:{S_PC+1}]
    L_pc:
    s_bfe_u32 s{S_B}, s2, 0x30003
    v_lshrrev_b32 v1, 6, v0
    v_and_b32 v58, 15, v0
    s_lshl_b32 s{S_T0}, s{S_B}, 13
    v_lshl_add_u32 v59, v1, 4, v58
    v_lshl_add_u32 v59, v59, 7, s{S_T0}
    v_min_u32 v59, (L_codeend-L_pc-4), v59
    v_readfirstlane_b32 s{S_WAVE}, v1
    """)
    if P["cpf"]: s(f"global_load_dword a255, v59, s[{S_PC}:{S_PC+1}]")
    s(f"""
    s_and_b32 s30, s2, 7
    s_lshr_b32 s{S_BR}, s2, 7
    s_bfe_u32 s3, s2, 0x10006
    s_lshl_b32 s{S_H}, s30, 1
    s_add_u32 s{S_H}, s{S_H}, s3
    s_lshl_b32 s{S_W4K}, s{S_WAVE}, 12
    """)
    def rotation(dst, mode):
        if mode == 0: s(f"s_mov_b32 s{dst}, 0")
        if mode == 2: s(f"s_sub_u32 s{dst}, s{S_B}, 7\ns_min_u32 s{dst}, s{dst}, s{S_B}")
        if mode == 3: s(f"s_and_b32 s{dst}, s{S_B}, 1\ns_mul_i32 s{dst}, s{dst}, 3")
        if mode == 4: s(f"s_and_b32 s{dst}, s{S_B}, 3\ns_lshl_b32 s{dst}, s{dst}, 1")
    rotation(S_QU, P["rot"])
    s(f"""
    v_and_b32 v2, 63, v0
    v_lshrrev_b32 v5, 3, v2
    v_and_b32 v6, 7, v2
    v_lshrrev_b32 v7, 4, v2
    v_lshl_add_u32 v60, v1, 5, v5
    v_mul_u32_u24 v60, 896, v60
    v_xor_b32 v59, v6, v7
    v_lshl_add_u32 v{XD[0]}, v59, 4, v60
    v_xor_b32 v59, 4, v59
    v_lshl_add_u32 v{XD[1]}, v59, 4, v60
    v_add_u32 v{XD[2]}, {2*6144}, v{XD[0]}
    v_add_u32 v{XD[3]}, {3*6144}, v{XD[1]}
    v_add_u32 v{XD[1]}, 6144, v{XD[1]}
    s_mul_i32 s{S_T1}, s{S_B}, 114688
    s_mov_b32 s{S_X+2}, 114688
    s_mov_b32 s{S_X+3}, 0x20000
    s_lshl_b32 s31, s{S_H}, 9
    s_sub_u32 s{S_WQ+2}, {448*8192}, s31
    s_mov_b32 s{S_WQ+3}, 0x20000
    """)
    s(f"""
    v_lshrrev_b32 v3, 5, v2
    v_and_b32 v4, 31, v2
    v_lshl_add_u32 v5, v1, 3, v3
    v_and_b32 v61, 1, v1
    v_lshl_add_u32 v61, v61, 2, v3
    v_lshlrev_b32 v61, 1, v61
    v_xor_b32 v61, v61, v4
    v_lshlrev_b32 v61, 4, v61
    v_xor_b32 v59, 64, v61
    v_lshl_add_u32 v{QD[0]}, v5, 13, v61
    v_lshl_add_u32 v{QD[1]}, v5, 13, v59
    v_add_u32 v{QD[2]}, {2*15360}, v{QD[0]}
    v_add_u32 v{QD[3]}, {3*15360}, v{QD[1]}
    v_add_u32 v{QD[1]}, 15360, v{QD[1]}
    """)
    s(f"s_cmp_eq_u32 s{S_BR}, 0\ns_waitcnt lgkmcnt(0)")
    s(f"""
    s_cselect_b32 s{S_X}, s4, s14
    s_cselect_b32 s{S_X+1}, s5, s15
    s_cselect_b32 s{S_WQ}, s10, s20
    s_cselect_b32 s{S_WQ+1}, s11, s21
    s_add_u32 s{S_X}, s{S_X}, s{S_T1}
    s_addc_u32 s{S_X+1}, s{S_X+1}, 0
    s_add_u32 s{S_WQ}, s{S_WQ}, s31
    s_addc_u32 s{S_WQ+1}, s{S_WQ+1}, 0
    """)
    if P.get("sstamps"):
        for i in stamp_ins(): s.add(i)

    def dma(tile, slot, regs, srd, soff, aux, pre=[], post=[], **meta):
        l = [I(f"buffer_load_dwordx4 v{regs[i]}, s[{srd}:{srd+3}], {soff} offen offset:{1024*i} {aux} lds".replace("  ", " "),
               tile=tile, slot=slot, **meta) for i in range(4)]
        return ([I(x) for x in pre] + [I(f"s_add_u32 m0, s{S_W4K}, {slot*16384}")], l, [I(x) for x in post])
    WQ_SLOT = [6, 7, 4, 2, 5, 3]
    nxt = lambda r: [f"s_add_u32 s{r}, s{r}, 1", f"s_cmp_eq_u32 s{r}, 7", f"s_cselect_b32 s{r}, 0, s{r}"]
    def dma_x(u): return dma(f"X{u}", 8 + (u & 1), XD, S_X, f"s{S_T0}", P["x_aux"], pre=[f"s_lshl_b32 s{S_T0}, s{S_QU}, 7"])
    def dma_wq(j):
        if j & 1 == 0: return dma(f"WQ{j}", WQ_SLOT[j % 6], QD, S_WQ, f"s{S_T1}", P["wq_aux"], pre=[f"s_lshl_b32 s{S_T1}, s{S_QU}, 19"])
        return dma(f"WQ{j}", WQ_SLOT[j % 6], QD, S_WQ, f"s{S_T1}", P["wq_aux"], pre=[f"s_add_u32 s{S_T1}, s{S_T1}, 0x40000"], post=nxt(S_QU))
    SPAN = P.get("span", 0)
    def inc(order, t):
        o = list(order) + [4 + order[0]]
        return ((o[t % 4 + 1] - o[t % 4]) * 0x4000) & 0x7ffff
    def adv(t):
        if P.get("noadv"): return 0
        if SPAN == 1:
            o = [(x >> 1) * 32768 + (x & 1) * 2048 for x in list(P["order"]) + [4]]
            return (o[t % 4 + 1] - o[t % 4]) & 0x7ffff
        if SPAN == 4:
            o = [x * 1024 for x in P["order"]] + [65536]
            return (o[t % 4 + 1] - o[t % 4]) & 0x7ffff
        if SPAN == 2: return 4096 if t % 2 == 0 else 28672
        if P.get("order2"): return f"s{S_ADV[t % 4]}"
        return inc(P["order"], t)
    KR = KD + [68, 69] if SPAN in (1, 3, 4) else KD * 2; VR = VD + [70, 71] if SPAN in (1, 3, 4) else VD * 2
    def dma_k(t): return dma(f"K{t}", t % 4, KR, S_K, f"s{S_KOFF}", P["kv_aux"], post=[f"s_add_u32 s{S_KOFF}, s{S_KOFF}, {adv(t)}", f"s_and_b32 s{S_KOFF}, s{S_KOFF}, 0x7ffff"])
    def dma_v(t): return dma(f"V{t}", 4 + t % 4, VR, S_V, f"s{S_VOFF}", P["kv_aux"], post=[f"s_add_u32 s{S_VOFF}, s{S_VOFF}, {adv(t)}", f"s_and_b32 s{S_VOFF}, s{S_VOFF}, 0x7ffff"])
    WO_SLOT = [8, 9, 0, 1, 2, 4, 3, 5, 6, 7, 8, 9, 0, 1]
    WOFF = list(range(4, 18)); SOFF = list(range(18, 24)) + [92]
    def dma_wo(j): return dma(f"WO{j}", WO_SLOT[j], WD, S_WO, f"s{WOFF[j]}", P["wo_aux"], unread_ok=True)
    def flat(d): return d[0] + d[1] + d[2]

    for d in (dma_x(0), dma_wq(0), dma_wq(1), dma_x(1)):
        for i in flat(d): s.add(i)
    if P.get("sstamps"):
        for i in stamp_ins(): s.add(i)
    rotation(S_OU, P["orot"])
    s(f"""
    v_lshl_add_u32 v{VD[0]}, v5, 9, v61
    v_lshl_add_u32 v{VD[1]}, v5, 9, v59
    v_lshl_add_u32 v61, v1, 2, v3
    v_xor_b32 v61, v61, v4
    v_lshlrev_b32 v61, 4, v61
    v_xor_b32 v59, 32, v61
    v_lshl_add_u32 v{KD[0]}, v5, 9, v61
    v_lshl_add_u32 v{KD[1]}, v5, 9, v59
    v_lshlrev_b32 v59, 1, v7
    v_xor_b32 v59, v59, v6
    v_lshl_add_u32 v{WD[0]}, v59, 4, v60
    v_add_u32 v{WD[1]}, 6144, v{WD[0]}
    v_add_u32 v{WD[2]}, {2*6144}, v{WD[0]}
    v_add_u32 v{WD[3]}, {3*6144}, v{WD[0]}
    v_lshlrev_b32 v{V_L16}, 4, v2
    s_lshl_b32 s{S_G}, s{S_BR}, 3
    s_add_u32 s{S_G}, s{S_G}, s{S_B}
    s_lshl_b32 s{S_T0}, s{S_B}, 3
    s_add_u32 s{S_T0}, s{S_T0}, s30
    s_lshl_b32 s31, s{S_B}, 4
    s_add_u32 s31, s31, s{S_H}
    s_cmp_eq_u32 s{S_BR}, 0
    s_cselect_b32 s31, s{S_T0}, s31
    s_cselect_b32 s{S_K}, s6, s16
    s_cselect_b32 s{S_K+1}, s7, s17
    s_cselect_b32 s{S_V}, s8, s18
    s_cselect_b32 s{S_V+1}, s9, s19
    s_cselect_b32 s{S_WO}, s12, s22
    s_cselect_b32 s{S_WO+1}, s13, s23
    s_lshl_b32 s31, s31, 19
    """)
    s(f"""
    s_add_u32 s{S_K}, s{S_K}, s31
    s_addc_u32 s{S_K+1}, s{S_K+1}, 0
    s_mov_b32 s{S_K+2}, 0x80000
    s_mov_b32 s{S_K+3}, 0x20000
    s_add_u32 s{S_V}, s{S_V}, s31
    s_addc_u32 s{S_V+1}, s{S_V+1}, 0
    s_mov_b32 s{S_V+2}, 0x80000
    s_mov_b32 s{S_V+3}, 0x20000
    s_mul_i32 s{S_T0}, s{S_H}, 229376
    s_add_u32 s{S_WO}, s{S_WO}, s{S_T0}
    s_addc_u32 s{S_WO+1}, s{S_WO+1}, 0
    s_mov_b32 s{S_WO+2}, 229376
    s_mov_b32 s{S_WO+3}, 0x20000
    s_mul_i32 s{S_T0}, s{S_G}, {PART_G}
    s_add_u32 s{S_T0}, s{S_T0}, {P['wsoff']}
    s_add_u32 s{S_P}, s{S_WS}, s{S_T0}
    s_addc_u32 s{S_P+1}, s{S_WS+1}, 0
    s_mov_b32 s{S_P+2}, {PART_G}
    s_mov_b32 s{S_P+3}, 0x20000
    s_mov_b32 s{S_OUT}, s24
    s_mov_b32 s{S_OUT+1}, s25
    s_mov_b32 s{S_OUT+2}, {8*128*896*2}
    s_mov_b32 s{S_OUT+3}, 0x20000
    s_mul_i32 s{S_PB}, s{S_H}, {PART_H}
    s_mul_i32 s{S_T0}, s{S_WAVE}, {PART_W}
    s_add_u32 s{S_PB}, s{S_PB}, s{S_T0}
    s_lshl_b32 s{S_T0}, s{S_G}, 12
    s_add_u32 s{S_T0}, s{S_T0}, {FLAG_OFF}
    s_add_u32 s{S_FL}, s{S_WS}, s{S_T0}
    s_addc_u32 s{S_FL+1}, s{S_WS+1}, 0
    s_bfe_u32 s{S_KOFF}, s31, {(P['fa'][1] << 16) | (19 + P['fa'][0]):#x}
    s_lshl_b32 s{S_KOFF}, s{S_KOFF}, {P['fa'][2]}
    s_bfe_u32 s{S_VOFF}, s31, {(P['fb'][1] << 16) | (19 + P['fb'][0]):#x}
    s_lshl_b32 s{S_VOFF}, s{S_VOFF}, {P['fb'][2]}
    s_cmp_eq_u32 s{S_BR}, 0
    s_cselect_b32 s{S_KOFF}, s{S_KOFF}, s{S_VOFF}
    s_bfe_u32 s{S_VOFF}, s31, {(P['f2'][1] << 16) | (19 + P['f2'][0]):#x}
    s_lshl_b32 s{S_VOFF}, s{S_VOFF}, {P['f2'][2]}
    s_add_u32 s{S_KOFF}, s{S_KOFF}, s{S_VOFF}
    s_mov_b32 s{S_VOFF}, s{S_KOFF}
    s_mov_b32 s{S_C}, {f2u(math.log2(math.e)/16.0):#x}
    s_mov_b32 s{S_C+1}, s{S_C}
    s_mov_b32 s{S_THR}, {f2u(P['thr']):#x}
    s_lshl_b32 s{S_G4}, s{S_G}, 4
    s_mov_b32 s{S_ONE}, 1
    s_mov_b32 s{S_LO}, 0x3f80
    s_mov_b32 s{S_HI}, 0x3f800000
    """)
    if P.get("order2"):
        s(f"s_bitcmp1_b32 s31, {19 + P['obit']}")
        for t in range(4): s(f"s_mov_b32 s{S_ADV[t]}, {inc(P['order'], t)}\ns_cselect_b32 s{S_ADV[t]}, {inc(P['order2'], t)}, s{S_ADV[t]}")
    if SPAN in (1, 2):
        for r in KD + VD: s(f"v_lshl_add_u32 v{r}, v1, 12, v{r}")
    if SPAN == 1:
        for a, b in zip(KD + VD, (68, 69, 70, 71)): s(f"v_add_u32 v{b}, 2048, v{a}")
    if SPAN == 4:
        s("v_mul_u32_u24 v59, 12288, v1")
        for r in KD + VD: s(f"v_add_u32 v{r}, v{r}, v59")
    if SPAN == 3:
        s("v_mul_u32_u24 v59, 3072, v1")
        for r in KD + VD: s(f"v_sub_u32 v{r}, v{r}, v59")
    if SPAN in (3, 4):
        for a0, a1, b0, b1 in (KD + [68, 69], VD + [70, 71]):
            s(f"v_add_u32 v{b0}, {2*3072}, v{a0}\nv_add_u32 v{b1}, {3*3072}, v{a1}\nv_add_u32 v{a1}, 3072, v{a1}")
    s(f"""
    s_lshl_b32 s{S_T0}, s{S_H}, 8
    v_lshl_add_u32 v{V_FLG}, v4, 2, s{S_T0}
    s_lshl_b32 s{S_T0}, s{S_H}, 2
    v_lshl_add_u32 v{V_FLG2}, v58, 8, s{S_T0}
    v_mov_b32 v{V_POLL}, 0
    v_mov_b32 v{V_DBG}, s{S_G4}
    v_mov_b32 v{V_ONE}, 1
    """)
    s(f"""
    v_bfe_u32 v5, v2, 2, 2
    v_and_b32 v6, 3, v2
    v_lshl_add_u32 v59, v7, 3, v5
    v_lshlrev_b32 v59, 9, v59
    v_lshl_add_u32 v59, v6, 3, v59
    v_and_b32 v60, 1, v7
    v_lshl_add_u32 v60, v60, 2, v5
    """)
    for j in range(8):
        s(f"""
        v_xor_b32 v61, {j}, v60
        v_lshl_add_u32 v{TA0[j]}, v61, 5, v59
        v_add_u32 v{TA1[j]}, 0x10000, v{TA0[j]}
        """)
    s(f"""
    v_lshrrev_b32 v59, 1, v58
    v_xor_b32 v59, v59, v7
    v_lshlrev_b32 v60, 7, v58
    v_lshl_add_u32 v60, v1, 12, v60
    v_add_u32 v60, 0x20000, v60
    v_lshl_add_u32 v{XA[0]}, v59, 4, v60
    v_xor_b32 v{XA[1]}, 64, v{XA[0]}
    """)
    if P.get("sstamps"):
        for i in stamp_ins(): s.add(i)
    for d in [dma_wq(2), dma_wq(3)][:P["pre2"]]:
        for i in flat(d): s.add(i)
    if P.get("sstamps"):
        for i in stamp_ins(): s.add(i)
    lsc = Stream()
    for u in range(7):
        lsc(f"""
        s_add_u32 s30, s{S_OU}, {u}
        s_sub_u32 s31, s30, 7
        s_min_u32 s30, s30, s31
        s_lshl_b32 s{WOFF[2*u]}, s30, 7
        s_add_u32 s{WOFF[2*u+1]}, s{WOFF[2*u]}, 114688
        s_lshl_b32 s30, s30, 12
        s_add_u32 s{SOFF[u]}, s30, s{S_PB}
        """)
    for st, (u0, n) in enumerate(((0, P["n1"]), (P["n1"], 7 - P["n1"]))):
        if n == 4: lsc(f"s_mov_b32 s3, s{S_H}")
        else: lsc(f"s_lshl_b32 s3, s{S_WAVE}, 2\ns_add_u32 s3, s3, s{S_H}\ns_and_b32 s3, s3, 15")
        lsc(f"""
        s_lshr_b32 s30, s3, 2
        s_add_u32 s30, s30, s{S_OU}
        s_add_u32 s30, s30, {u0}
        s_sub_u32 s31, s30, 7
        s_min_u32 s30, s30, s31
        s_lshl_b32 s31, s30, 2
        s_and_b32 s71, s3, 3
        s_add_u32 s31, s31, s71
        s_lshl_b32 s31, s31, 10
        s_mul_i32 s{S_RR[st]}, s{S_WAVE}, {PART_W}
        s_add_u32 s{S_RR[st]}, s{S_RR[st]}, s31
        s_lshl_b32 s31, s{S_B}, 2
        s_add_u32 s31, s31, s{S_WAVE}
        s_lshl_b32 s31, s31, 1
        s_bfe_u32 s71, s3, 0x10001
        s_add_u32 s31, s31, s71
        s_mul_i32 s31, s31, {16*1792}
        s_lshl_b32 s30, s30, 1
        s_and_b32 s71, s3, 1
        s_add_u32 s30, s30, s71
        s_lshl_b32 s30, s30, 6
        s_add_u32 s31, s31, s30
        s_mul_i32 s30, s{S_BR}, 896
        s_add_u32 s{S_RO[st]}, s31, s30
        s_lshr_b32 s{S_RA[st]}, s3, 2
        s_xor_b32 s{S_RA[st]}, s{S_RA[st]}, {n}
        """)
    late = Stream()
    late(f"""
    v_lshrrev_b32 v59, 2, v58
    v_and_b32 v60, 3, v58
    v_lshl_add_u32 v59, v59, 3, v60
    v_lshlrev_b32 v59, 9, v59
    v_bfrev_b32 v61, v7
    v_lshrrev_b32 v{V_OUT}, 30, v61
    v_xor_b32 v60, v58, v{V_OUT}
    """)
    for k in range(4):
        late(f"v_xor_b32 v61, {4*k}, v60\nv_lshl_add_u32 v{KA[k]}, v61, 4, v59")
    late(f"""
    v_lshl_add_u32 v59, v7, 2, v5
    v_bfe_u32 v60, v59, 1, 2
    v_lshlrev_b32 v59, 7, v59
    v_lshl_add_u32 v59, v6, 3, v59
    """)
    for k in range(4):
        late(f"v_xor_b32 v61, {k}, v60\nv_lshl_add_u32 v{WA[0][k]}, v61, 5, v59")
    late(f"""
    v_mul_u32_u24 v59, 1792, v58
    v_lshl_add_u32 v{V_OUT}, v{V_OUT}, 4, v59
    """)

    PR = []; head = Pair()
    def pr(p):
        if p < 0: return head
        while len(PR) <= p: PR.append(Pair())
        return PR[p]
    npair = [0]
    def frag(p): return A_F + 4 * (p % NF)
    def add_pair(m0, m1):
        p = npair[0]; npair[0] += 1
        pr(p).m = [I(m0), I(m1)]
        return p
    def mf(d, a, b, c): return f"v_mfma_f32_16x16x32_bf16 {vr(d,4)}, {a}, {b}, {c}"
    def rd_at(p, bp, l, bulk=None, LA=LA):
        q = p - LA
        if bulk is not None and q <= bp: bulk.extend(l)
        else: pr(max(q, bp)).reads.extend(l)
    def tread(p, tile, slot, areg, off):
        f = frag(p)
        return [I(f"ds_read_b64_tr_b16 {ar(f,2)}, v{areg} offset:{off}", tile=tile, slot=slot),
                I(f"ds_read_b64_tr_b16 {ar(f+2,2)}, v{areg} offset:{off+2048}", tile=tile, slot=slot)]
    def barrier(bp, tiles):
        pr(bp - 1).vmtags.extend(tiles); pr(bp).sc0.insert(0, I("s_barrier"))
    def place_dma(ds, poss):
        q = 0
        for pre, loads, post in ds:
            for n, ld in enumerate(loads):
                p = poss[q]; q += 1
                if n == 0:
                    pr(p - 1).sc0.extend(pre)
                pr(p).mem.append(ld)
                if n == 3 and post:
                    if len(post) == 2: pr(p + 1).sc0.append(post[0]); pr(p + 2).sc0.append(post[1])
                    else: pr(p + 1).sc0.extend(post)
    def place(l, p0, p1, pace=True, win=8):
        fr = [max(0, pr(p).free()) for p in range(p0, p1 + 1)]
        F = sum(fr); C = sum(cost(i) for i in l); cum = 0; done = 0
        todo = list(range(len(l))); rec = []
        dep = lambda a, b: (a.wr & (b.rd | b.wr)) or (a.rd & b.wr)
        for n, p in enumerate(range(p0, p1 + 1)):
            cum += fr[n]
            while todo:
                if pace and F > C and done > C * cum / F: break
                pick = None
                for x, k in enumerate(todo[:win]):
                    if cost(l[k]) > pr(p).free(): continue
                    if any(dep(l[y], l[k]) for y in todo[:x]): continue
                    if any((o.wr & l[k].rd) for o in pr(p).ops): continue
                    if cost(l[k]) == 2 and len(pr(p).ops) >= 2: continue
                    pick = k; break
                if pick is None: break
                todo.remove(pick); pr(p).ops.append(l[pick]); done += cost(l[pick]); rec.append((n, pick))
        if todo:
            if P.get("verbose"): print("overflow", p0, p1, len(todo))
            for k in todo: pr(p1).ops.append(l[k]); rec.append((p1 - p0, k))
        return rec

    kvq = [dma_k(0), dma_k(1), dma_v(0)] + ([dma_k(2)] if P["PDK"] >= 2 else []) + ([dma_v(1)] if P["PDV"] >= 2 else []) + ([dma_k(3)] if P["PDK"] >= 3 else [])
    for j in range(12 if P["merge"] else 14):
        u = j >> 1; slot = WQ_SLOT[j % 6]; ta = TA1 if slot >= 4 else TA0; base = (slot & 3) * 16384
        pb = npair[0]; bp = pb - LA
        bulk = None
        if j == 0:
            head.post += [I("@waitvm WQ0 X0"), I("s_barrier")]; bulk = head.post; bp = -1
        else: barrier(bp, [f"WQ{j}", f"X{u}"] + (["WQ13"] if P["bm"] and j == 12 else []))
        if P.get("qstamps") and j in P["qstamps"]: (head.post if j == 0 else pr(bp).post).extend(stamp_ins())
        if j & 1 == 0:
            for q in range(4):
                xr = I(f"ds_read_b128 {ar(A_X + 16*(u&1) + 4*q, 4)}, v{XA[q>>1]} offset:{(u&1)*16384 + (q&1)*2048}", tile=f"X{u}", slot=8 + (u & 1), private=True)
                if j == 0: head.post.append(xr)
                else: pr(bp + (q // 2 if P["bm"] and j == 12 else q)).reads.append(xr)
        for jj in range(16):
            p = npair[0]
            j2, blk = j, jj
            if P["bm"] and j >= 12:
                n = (j - 12) * 16 + jj; j2 = 12 + (n & 1); blk = n >> 1
            slot = WQ_SLOT[j2 % 6]; ta = TA1 if slot >= 4 else TA0; base = (slot & 3) * 16384
            rd_at(p, bp, tread(p, f"WQ{j2}", slot, ta[blk & 7], base + (blk >> 3) * 256), bulk, P["qla"][u] if isinstance(P.get("qla"), tuple) else P.get("qla", LA))
            xb = A_X + 16 * (u & 1) + 8 * (j2 & 1)
            add_pair(*[mf(O0 + 8*blk + 4*qb, ar(frag(p), 4), ar(xb + 4*qb, 4), "0" if j == 0 else vr(O0 + 8*blk + 4*qb, 4)) for qb in range(2)])
        b0 = pb - LA
        if j & 1 == 0:
            ds = []
            if j + 4 <= 13:
                ds = [dma_wq(j + 4), dma_x(u + 2), dma_wq(j + 5)]
                if P.get("xlast"):
                    dx = ds[1]; ds = [ds[0], (dx[0][:1] + ds[2][0], ds[2][1], ds[2][2]), (dx[0][1:], dx[1], dx[2])]
                if j in P["ek"]: ds.insert(P.get("ekpos", 0), kvq.pop(0))
            elif j == 10: ds = kvq[:P["kv10"]]
            elif j == 12: ds = kvq[P["kv10"]:P["kv10"] + P["kv12"]]
            poss = [b0 + 2 + (n * 30) // (4 * max(len(ds), 1)) for n in range(16)]
            if len(ds) == 4: poss = [b0 + 1 + 2 * n for n in range(16)]
            if len(ds) == 3 and P.get("xlast") and j + 4 <= 13: poss = [b0 + 2 + 4 * n for n in range(4)] + [b0 + 17 + 2 * n for n in range(8)]
            if j == 0:
                extra = [dma_wq(2), dma_wq(3)][P["pre2"]:]
                ds = extra + ds
                poss = {0: [1, 4, 7, 10], 1: [1, 2, 3, 4, 6, 8, 10, 11], 2: None}[len(extra)] + poss[4:12]
            place_dma(ds, poss)
        if j == 1:
            pr(pb).post += [I(f"s_cmp_lg_u32 s{S_WAVE}, 0"), I("s_cbranch_scc1 L_noclr"), I("s_mov_b32 exec_hi, 0"),
                            I(f"global_atomic_swap v{V_T1}, v{V_FLG}, v{V_POLL}, s[{S_FL}:{S_FL+1}] sc0", untracked=True),
                            I("s_mov_b64 exec, -1"), I("L_noclr:")]
        if j == 8:
            if P["ann"] == "s":
                pr(pb).post += [I(f"s_cmp_lg_u32 s{S_WAVE}, 0"), I("s_cbranch_scc1 L_noann"),
                                I(f"s_atomic_add s{S_ONE}, s[{S_DBG}:{S_DBG+1}], s{S_G4}"), I("L_noann:")]
            else:
                pr(pb).post += [I(f"s_cmp_lg_u32 s{S_WAVE}, 0"), I("s_cbranch_scc1 L_noann"), I("s_mov_b64 exec, 1"),
                                I(f"global_atomic_add v{V_DBG}, v{V_ONE}, s[{S_DBG}:{S_DBG+1}]", untracked=True), I("s_mov_b64 exec, -1"), I("L_noann:")]
    pq_end = npair[0]
    place(late.ins, 40, 100)
    q = 2
    for i in lsc.ins:
        while pr(q).sc0: q += 1
        pr(q).sc0.append(i)
    assert q < 186, q

    def softmax_ops(t):
        S = SB[t & 1]; Pp = PB[t & 1]; l = []
        T = lambda e: TT[e & 7]
        for e in range(17):
            if e < 16: l.append(I(f"v_exp_f32 v{T(e)}, v{S+e}"))
            d = e - 1
            if d >= 0:
                lt = V_LT[d >> 3]
                if d & 7 == 1: l.append(I(f"v_add_f32 v{lt}, v{T(d-1)}, v{T(d)}"))
                elif d & 7 > 1: l.append(I(f"v_add_f32 v{lt}, v{lt}, v{T(d)}"))
                if d & 1: l.append(I(f"v_cvt_pk_bf16_f32 v{Pp+(d>>1)}, v{T(d-1)}, v{T(d)}"))
        return l
    def allmax(x, t):
        return [I(f"v_mov_b32 v{t}, v{x}"), I(f"v_permlane32_swap_b32 v{x}, v{t}"), I(f"v_max_f32 v{x}, v{x}, v{t}"),
                I(f"v_mov_b32 v{t}, v{x}"), I(f"v_permlane16_swap_b32 v{x}, v{t}"), I(f"v_max_f32 v{x}, v{x}, v{t}")]
    def rowmax(S, x):
        return [I(f"v_max3_f32 v{x}, v{S}, v{S+1}, v{S+2}"), I(f"v_max3_f32 v{x}, v{x}, v{S+3}, v{S+4}"),
                I(f"v_max3_f32 v{x}, v{x}, v{S+5}, v{S+6}"), I(f"v_max_f32 v{x}, v{x}, v{S+7}")]
    def inter(a, b):
        o = []
        for x, y in zip(a, b): o += [x, y]
        return o
    def qk(t, bp, bulk=None, steps=range(8)):
        slot = t % 4; S = SB[t & 1]
        for q in steps:
            for kb in range(2):
                p = npair[0]
                rd_at(p, bp, [I(f"ds_read_b128 {ar(frag(p),4)}, v{KA[q&3]} offset:{slot*16384 + (q>>2)*256 + kb*2048}", tile=f"K{t}", slot=slot)], bulk)
                add_pair(*[mf(S + 8*qb + 4*kb, ar(frag(p), 4), ar(A_Q + 8*q + 4*qb, 4),
                              (("0" if t == 0 else vr(NM + 4*qb, 4)) if q == 0 else vr(S + 8*qb + 4*kb, 4))) for qb in range(2)])
    def pv(t, bp, bulk=None):
        slot = 4 + t % 4
        for jj in range(16):
            p = npair[0]
            rd_at(p, bp, tread(p, f"V{t}", slot, TA1[jj & 7], (t % 4) * 16384 + (jj >> 3) * 256), bulk)
            add_pair(*[mf(O0 + 8*jj + 4*qb, ar(frag(p), 4), vr(PB[t & 1] + 4*qb, 4), "0" if t == 0 else vr(O0 + 8*jj + 4*qb, 4)) for qb in range(2)])

    def qconv(q, pk=True):
        l = []
        for qb in range(2):
            X = O0 + 16*q + 4*qb; Y = X + 8
            if pk: l += [I(f"v_pk_mul_f32 {vr(r,2)}, {vr(r,2)}, s[{S_C}:{S_C+1}]") for r in (X, X + 2, Y, Y + 2)]
            else: l += [I(f"v_mul_f32 v{r}, s{S_C}, v{r}") for r in list(range(X, X + 4)) + list(range(Y, Y + 4))]
        for qb in range(2):
            X = O0 + 16*q + 4*qb; Y = X + 8
            l += [I(f"v_cvt_pk_bf16_f32 v{X}, v{X}, v{X+1}"), I(f"v_cvt_pk_bf16_f32 v{Y}, v{Y}, v{Y+1}"),
                  I(f"v_cvt_pk_bf16_f32 v{X+1}, v{X+2}, v{X+3}"), I(f"v_cvt_pk_bf16_f32 v{Y+1}, v{Y+2}, v{Y+3}")]
        for sw in ("16",):
            for qb in range(2):
                X = O0 + 16*q + 4*qb; Y = X + 8
                l += [I(f"v_permlane{sw}_swap_b32 v{X}, v{Y}"), I(f"v_permlane{sw}_swap_b32 v{X+1}, v{Y+1}")]
        for qb in range(2):
            X = O0 + 16*q + 4*qb; Y = X + 8
            l += [I(f"v_accvgpr_write_b32 a{A_Q+8*q+4*qb+n}, v{r}") for n, r in enumerate((X, X + 1, Y, Y + 1))]
        return l
    if P["merge"]:
        pb = npair[0]; bp = pb - LA
        barrier(bp, ["WQ12", "WQ13", "X6", "K0"])
        for q in range(4):
            pr(bp + q // 2).reads.append(I(f"ds_read_b128 {ar(A_X + 4*q, 4)}, v{XA[q>>1]} offset:{(q&1)*2048}", tile="X6", slot=8, private=True))
        def group(g):
            for n in range(4):
                p = npair[0]; j2 = 12 + (n & 1); blk = 2 * g + (n >> 1)
                slot = WQ_SLOT[j2 % 6]
                rd_at(p, bp, tread(p, f"WQ{j2}", slot, TA1[blk & 7], (slot & 3) * 16384 + (blk >> 3) * 256))
                add_pair(*[mf(O0 + 8*blk + 4*qb, ar(frag(p), 4), ar(A_X + 8*(j2 & 1) + 4*qb, 4), vr(O0 + 8*blk + 4*qb, 4)) for qb in range(2)])
        seg = []
        group(0)
        for g in range(8):
            st = npair[0]
            if g >= 1: qk(0, bp, steps=[g - 1])
            if g < 7: group(g + 1)
            seg.append((st, npair[0] - 1))
        qk(0, bp, steps=[7])
        tr = kvq[P["kv10"]:] + ([dma_wo(0), dma_wo(1)] if P["ewo"] else [])
        place_dma(tr, [pb + 1 + (n * 44) // (4 * len(tr)) for n in range(4 * len(tr))])
        for g, (a, b) in enumerate(seg):
            l = qconv(g)
            pr(a).post += l[:8]
            l = l[8:]; n = b - a; tot = sum(cost(i) for i in l); acc_ = 0
            for i in l:
                pr(a + 1 + min(n - 1, acc_ * n // tot)).ops.append(i); acc_ += cost(i)
        pr(pb - 1).post += stamp_ins()
    else:
        barrier(pq_end - LA, ["K0"])
        p0 = npair[0]
        qk(0, pq_end - LA)
        rest = kvq[P["kv10"] + P["kv12"]:]
        tr = rest + ([dma_wo(0), dma_wo(1)] if P["ewo"] else [])
        for d in tr[:-2] if len(tr) > 2 else []: pr(pq_end - 1).post += flat(d)
        place_dma(tr[-2:], [p0 + 1 + 2 * n for n in range(8)])
        place(qconv(0, False), pq_end - (26 if P["bm"] else 12), pq_end - 1, pace=False)
        pr(pq_end - 1).post += stamp_ins()
        for q in range(1, 8): pr(pq_end - 1).post += qconv(q)[:8]
        for q in range(1, 8):
            l = qconv(q)[8:]; h = len(l) // 2
            pr(p0 + 2*q - 2).ops += l[:h]; pr(p0 + 2*q - 1).ops += l[h:]
    pz = npair[0] - 1
    init = inter(rowmax(SB[0], V_T0) + allmax(V_T0, TT[0]), rowmax(SB[0] + 8, V_T1) + allmax(V_T1, TT[1]))
    for qb, x in enumerate((V_T0, V_T1)):
        init += [I(f"v_sub_f32 v{NM+4*qb+n}, 0, v{x}") for n in range(4)]
    for qb, x in enumerate((V_T0, V_T1)):
        init += [I(f"v_sub_f32 v{SB[0]+8*qb+n}, v{SB[0]+8*qb+n}, v{x}") for n in range(8)]
    init += [I(f"v_mov_b32 v{V_L[0]}, 0"), I(f"v_mov_b32 v{V_L[1]}, 0")]
    bulk0 = []
    pr(pz).post += [I("@waitvm K1 V0"), I("s_barrier"), I("@bulk0")] + init + stamp_ins()
    wa_late = [I(f"v_add_u32 v{WA[w][k]}, {0x10000*w}, v{WA[0][k]}") for w in (1, 2) for k in range(4)]

    stubs = []; step_start = []
    bp = pz
    for t in range(32):
        ps = npair[0]; step_start.append(ps)
        inloop = 1 <= t <= 28
        lab = f"{t%4}" if inloop else f"p{t}"
        if t <= 4 or t > 28: stubs.append((lab, t & 1))
        chk = [I(f"v_max_f32 v{V_T0}, v{V_LT[0]}, v{V_LT[1]}"), I(f"v_cmp_nge_f32 vcc, s{S_THR}, v{V_T0}")]
        br = [I(f"s_cbranch_vccnz L_fix{lab}"), I(f"L_ret{lab}:")]
        acc = [I(f"v_add_f32 v{V_L[qb]}, v{V_L[qb]}, v{V_LT[qb]}") for qb in range(2)]
        bulk31 = []
        if t < 31:
            qk(t + 1, bp, bulk0 if t == 0 else None)
            pp = npair[0]
            pv(t, bp)
        else:
            pp = npair[0]
            if P["b31"]:
                pv(t, bp)
                pr(ps - 1).post += chk + br
            else:
                pv(t, bp, bulk31)
                pr(ps - 1).post += chk + br + [I("@waitvm V31"), I("s_barrier")] + bulk31
        pe = npair[0]
        nb = pe - LA
        if t < 30: barrier(nb, [f"K{t+2}", f"V{t+1}"])
        if t == 30 and P["b31"]: barrier(nb, ["V31"])
        if P.get("tap") is not None and inloop:
            pr(nb - 1).sc0.append(I(f"s_cmp_{'ge' if len(P['tap']) > 2 else 'lt'}_i32 s{S_CNT}, {P['tap'][0] - 7}"))
            pr(nb - 1).sc1.extend([I(f"s_cbranch_scc1 L_nt{lab}"), I(f"s_waitcnt vmcnt({P['tap'][1]})", blind=True), I(f"L_nt{lab}:")])
        ds = []
        tv = t + P["PDV"]; tk = t + 1 + P["PDK"]
        if tv <= 31: ds.append(dma_v(tv))
        if tk <= 31 or inloop: ds.append(dma_k(tk))
        if P["PDK"] <= P["PDV"] and len(ds) == 2 and not (0, 1, t & 1, 1 - (t & 1))[P.get("vfirst", 0)]: ds = ds[::-1]
        plan = {29: [2], 30: [3, 4, 5], 31: [6]} if P["ewo"] else {29: [0], 30: [1, 2], 31: [3]}
        ds += [dma_wo(x) for x in plan.get(t, [])]
        dsp = P["dsp"] if len(ds) <= 2 else 2
        dl = P.get("dl", 0)
        late = P.get("late", 0)
        if late and t <= 29:
            early = [ps + 2 * late - LA + 3 + dl + dsp * n for n in range(8 - late)]
            assert early[-1] < nb - 1
            poss = early + [nb + 1 + dl + 2 * n for n in range(late)]
        elif late:
            poss = [ps + 2 * late - LA + 3 + dl + (2 * n if late * 2 + dl <= 8 else n + n // 4) for n in range(12)] if t == 30 else [ps + 1 + 2 * n for n in range(12)]
        else: poss = [ps + 1 + dsp * n for n in range(12)]
        place_dma(ds, poss)
        if inloop and t % 4 == 0:
            pr(pe - 1).sc0.append(I(f"s_add_u32 s{S_CNT}, s{S_CNT}, 1"))
            pr(pe - 1).post.append(I("s_cbranch_scc0 L_loop"))
        if P.get("lstamps"):
            pr(ps + 2).post += [I("s_waitcnt lgkmcnt(0)", blind=True), I(f"s_memrealtime s[{S_ST}:{S_ST+1}]"), I(f"s_memtime s[{S_ST+2}:{S_ST+3}]"),
                I("v_mov_b32_dpp v70, v70 wave_shr:1 row_mask:0xf bank_mask:0xf"), I("v_mov_b32_dpp v71, v71 wave_shr:1 row_mask:0xf bank_mask:0xf"),
                I("s_waitcnt lgkmcnt(0)", blind=True), I(f"v_writelane_b32 v70, s{S_ST}, 0"), I(f"v_writelane_b32 v71, s{S_ST+2}, 0")]
        if t == 0: pr(pe - 2).sc0.append(I(f"s_mov_b32 s{S_CNT}, -7"))
        if P["cpf"] >= 2 and inloop and t % 4 == 1:
            pr(pp + 5).mem.append(I(f"global_load_dword v{V_CP+1}, v{V_CP}, s[{S_PC}:{S_PC+1}]", nodep=True))
        yield_info = (t, ps, pp, pe, chk, br, acc)
        step_start[-1] = yield_info
        bp = nb if (t < 30 or P["b31"]) else pe - 1
    pm_end = npair[0]

    ACC = [SB[0], O0 + 64]
    otile = []
    for j in range(14):
        u = j >> 1; kh = j & 1; slot = WO_SLOT[j]; wa = WA[slot >> 2]; base = (slot & 3) * 16384
        pb = npair[0]; bp = pb - LA; otile.append(pb)
        if P["half"]:
            cover = {0: range(0, 6), 3: [], 6: range(6, 10), 10: range(10, 14)}
        else: cover = {0: range(0, 6), 3: [], 6: range(6, 9), 9: range(9, 14)}
        if j in cover: barrier(bp, [f"WO{x}" for x in cover[j]])
        for n in range(16):
            p = npair[0]
            if P["half"] and u > 0: q = n >> 1; jn = 2 * kh + (n & 1)
            else: q = 4 * kh + (n >> 2); jn = n & 3
            j2 = 2 * u + (q >> 2); slot = WO_SLOT[j2]
            rd_at(p, bp, tread(p, f"WO{j2}", slot, WA[slot >> 2][jn], (slot & 3) * 16384 + (q & 3) * 4096))
            a = ACC[u & 1] + 4 * jn
            add_pair(*[mf(a + 16*qb, ar(frag(p), 4), vr(O0 + 8*q + 4*qb, 4), "0" if q == 0 else vr(a + 16*qb, 4)) for qb in range(2)])
        ds = {0: [7], 1: [8], 3: [9], 4: [10], 5: [11], 6: [12], 7: [13]}.get(j, [])
        place_dma([dma_wo(x) for x in ds], [bp + 1 + 4 * n for n in range(4)])

    for (t, ps, pp, pe, chk, br, acc) in step_start:
        if t < 31: pr(pp - 1).sc0.extend(br)
        place(acc, pp, pp + 1, pace=False)
    w0 = step_start[9][2] + P["sm_start"]
    rec = place(softmax_ops(10) + step_start[10][4], w0, step_start[10][2] - 2)
    for t in range(1, 31):
        if t == 10: continue
        l = softmax_ops(t) + step_start[t][4]
        for n, k in rec: pr(step_start[t-1][2] + P["sm_start"] + n).ops.append(l[k])
    l = softmax_ops(0) + step_start[0][4]
    nrel = step_start[1][1] - (step_start[0][2] + P["sm_start"])
    for n, k in rec:
        if n < nrel: pr(pz).post.append(l[k])
        else: pr(step_start[0][1] + n - nrel).ops.append(l[k])
    place(softmax_ops(31), step_start[30][2] + P["sm_start"], step_start[30][3] - 1, pace=False)
    place(wa_late, step_start[0][1], step_start[0][3] - 1, pace=False)
    pr(step_start[29][2]).mem.append(I(f"global_load_dword v{V_POLL}, v{V_DBG}, s[{S_DBG}:{S_DBG+1}] sc1", tag="HS"))
    def allsum(x, t):
        return [I(f"v_mov_b32 v{t}, v{x}"), I(f"v_permlane32_swap_b32 v{x}, v{t}"), I(f"v_add_f32 v{x}, v{x}, v{t}"),
                I(f"v_mov_b32 v{t}, v{x}"), I(f"v_permlane16_swap_b32 v{x}, v{t}"), I(f"v_add_f32 v{x}, v{x}, v{t}")]
    lsum = inter(allsum(V_L[0], V_T0), allsum(V_L[1], V_T1)) + [I(f"v_rcp_f32 v{V_RI[qb]}, v{V_L[qb]}") for qb in range(2)]
    def oconv(q):
        l = []
        for qb in range(2):
            X = O0 + 16*q + 4*qb; Y = X + 8; D = O0 + 8*q + 4*qb
            l.append([(D, X), (D + 1, X + 2), (D + 2, Y), (D + 3, Y + 2)])
        o = l[0] + l[1]
        if q == 0:
            pass
        return [I(f"v_cvt_pk_bf16_f32 v{d}, v{x}, v{x+1}") for d, x in o]
    place(oconv(0) + oconv(1), pm_end - 10, pm_end - 1)
    pr(pm_end - 1).post += stamp_ins()
    for q in range(2, 8):
        place(oconv(q), pm_end + 4 * (q - 2), pm_end + 4 * (q - 2) + 3)
    place(lsum, pm_end + 24, pm_end + 33)
    STG = [PB[0], PB[1]]
    def finish(u, pk=False, qs=range(8)):
        l = []
        for qb in range(2):
            a = ACC[u & 1] + 16 * qb; st = STG[qb]
            for q in qs:
                if pk: l.append(I(f"v_pk_mul_f32 {vr(a+2*q,2)}, {vr(a+2*q,2)}, {vr(V_RI[0],2)} op_sel:[0,{qb}] op_sel_hi:[1,{qb}]"))
                else:
                    l.append(I(f"v_mul_f32 v{a+2*q}, v{V_RI[qb]}, v{a+2*q}"))
                    l.append(I(f"v_mul_f32 v{a+2*q+1}, v{V_RI[qb]}, v{a+2*q+1}"))
                l.append(I(f"v_cvt_pk_bf16_f32 v{st+q}, v{a+2*q}, v{a+2*q+1}"))
                if q & 3 == 3 and not P.get("nostore"):
                    l.append(I(f"buffer_store_dwordx4 {vr(st+q-3,4)}, v{V_L16}, s[{S_P}:{S_P+3}], s{SOFF[u]} offen offset:{qb*2048+(q>>2)*1024} {P['st_aux']}", tag=f"PST{u}"))
        return l
    bp = otile[0] + int(16 * P["sig"]) - LA
    barrier(bp, [f"PST{P['n1']-1}"])
    sig = Stream()
    sig(f"""
    s_cmp_lg_u32 s{S_WAVE}, 0
    s_cbranch_scc1 L_nosig1
    v_readfirstlane_b32 s{S_T0}, v{V_POLL}
    s_cmp_lt_u32 s{S_T0}, 16
    s_cbranch_scc1 L_hs
    L_hsok:
    s_mov_b64 exec, 0xffff
    """)
    sig(f"global_store_dword v{V_FLG2}, v{V_ONE}, s[{S_FL}:{S_FL+1}] sc1", untracked=True)
    sig("s_mov_b64 exec, -1\nL_nosig1:")
    pr(bp).post += sig.ins
    if P["early"]:
        pr(npair[0] - P["early"]).mem.append(I(f"global_load_dword v{V_EP}, v{V_FLG}, s[{S_FL}:{S_FL+1}] sc1", tag="EP"))
    if P.get("ostamps"):
        for u in range(1, 7): pr(otile[2 * u] - 1).post += stamp_ins()
    if P["half"]:
        H = (range(0, 4), range(4, 8))
        k = otile[2] + 2
        for j in range(13):
            u, kh = j >> 1, j & 1
            first = max(k, (otile[2] + 2) if u == 0 else otile[j] + 17)
            last = (otile[j + 4] if j + 4 < 14 else npair[0]) - 1
            rec_ = place(finish(u, qs=H[kh]), first, last, pace=False)
            k = first + max(n for n, _ in rec_)
        pr(npair[0] - 1).post += [I("@stop")] + finish(6, True, H[1])
    else:
        for u in range(1, 7):
            pb = otile[2 * u]
            place(finish(u - 1), pb + (2 if u == 1 else 1), pb + 31, pace=False)
        pr(npair[0] - 1).post += [I("@stop")] + finish(6, True)

    def gap_order(mem, ops):
        first = list(mem); rest = []
        for i in ops:
            if i.kind == "vmem" and not any(x.wr & i.rd for x in rest): first.append(i)
            else: rest.append(i)
        return first + rest
    def emit_list(l):
        for i in l:
            if i.kind == "pseudo" and i.op == "@bulk0":
                for x in bulk0: s.add(x)
            else: s.add(i)
    emit_list(head.sc0 + head.post)
    starts = {x[1]: x[0] for x in step_start}
    worst = 0
    for p, q in enumerate(PR):
        if p in starts and starts[p] % 4 == 1: s.add(I(f"@block {starts[p]//4}"))
        mem = q.reads + q.mem
        best = None
        e0 = max(0, sum(cost(x) for x in q.sc0) - 1); e1 = sum(cost(x) for x in q.sc1)
        for r0 in range(len(mem), -1, -1):
            for k in range(len(q.ops) + 1):
                c0 = e0 + r0 + sum(cost(x) for x in q.ops[:k]); c1 = e1 + len(mem) - r0 + sum(cost(x) for x in q.ops[k:])
                nr = len(q.reads); ra = min(r0, nr)
                sc_ = (max(c0, 2) + max(c1, 2), max(c0, c1), abs(2 * ra - nr) if P["bal"] else 0, -r0)
                if best is None or sc_ < best[0]: best = (sc_, r0, k)
        _, r0, k = best
        worst += best[0][0] - 4
        emit_list(q.pre)
        s.add(q.m[0]); emit_list(q.sc0); emit_list(gap_order(mem[:r0], q.ops[:k]))
        s.add(q.m[1]); s.add(I("@waitnext " + " ".join(q.vmtags))); emit_list(q.sc1); emit_list(gap_order(mem[r0:], q.ops[k:]))
        pad = (P.get("qpad", 0) if p < P.get("qpadn", 999) else 0) if p < pq_end else (P.get("mpad", 0) if p < pm_end else P.get("opad", 0))
        if pad: s.add(I(f"s_nop {pad-1}"))
        emit_list(q.post)
    if P.get("verbose"): print("overfull slots:", worst)

    poll = f"global_load_dword v{V_EP}, v{V_FLG}, s[{S_FL}:{S_FL+1}] sc1"
    tailsubs = Stream()
    def signal2(st, lab):
        st(f"s_cmp_lg_u32 s{S_WAVE}, 0\ns_cbranch_scc1 {lab}\ns_mov_b64 exec, 0xffff")
        st(f"global_store_dword v{V_FLG2}, v{V_ONE}, s[{S_FL}:{S_FL+1}] offset:64 sc1", untracked=True)
        st(f"s_mov_b64 exec, -1\n{lab}:\ns_mov_b32 s{S_CNT}, 0")
    def loads(st, o=None):
        o = o or s
        for h in range(16):
            o(f"buffer_load_dwordx4 {vr(O0+64*st+4*h,4)}, v{V_L16}, s[{S_P}:{S_P+3}], s{S_RR[st]} offen {P['ld_aux']}", tag=f"R{st}_{h}")
            if h < 15: o(f"s_add_u32 s{S_RR[st]}, s{S_RR[st]}, {PART_H}")
    if P["early"]:
        s(f"""
        v_cmp_ne_u32 vcc, 1, v{V_EP}
        s_cmp_eq_u32 s{S_RA[0]}, 0
        s_cselect_b32 s{S_T0}, 0xffff, vcc_lo
        s_and_b32 s{S_T0}, s{S_T0}, 0xffff
        s_cbranch_scc0 L_early
        """)
        tailsubs("L_early:")
        loads(0, tailsubs)
        tailsubs("s_waitcnt vmcnt(16)\ns_barrier")
        signal2(tailsubs, "L_nosig2e")
        tailsubs("s_branch L_join")
        tailsubs("s_waitcnt vmcnt(0)")
    s(poll)
    for i in stamp_ins(): s.add(i)
    s("s_waitcnt vmcnt(0)\ns_barrier")
    for i in stamp_ins(): s.add(i)
    signal2(s, "L_nosig2")
    tailsubs(f"""
    L_hs:
    s_mov_b32 s{S_CNT}, 0
    L_hs2:
    s_sleep 8
    global_load_dword v{V_POLL}, v{V_DBG}, s[{S_DBG}:{S_DBG+1}] sc1
    s_waitcnt vmcnt(0)
    v_readfirstlane_b32 s{S_T0}, v{V_POLL}
    s_add_u32 s{S_CNT}, s{S_CNT}, 1
    s_cmp_ge_u32 s{S_CNT}, 0x40000
    s_cbranch_scc1 L_hsok
    s_cmp_lt_u32 s{S_T0}, 16
    s_cbranch_scc1 L_hs2
    s_branch L_hsok
    """)
    def waitflags(st):
        mask = 0xffff << (16 * st)
        s(f"""
        L_w{st}:
        v_cmp_ne_u32 vcc, 1, v{V_EP}
        s_and_b32 s{S_T0}, vcc_lo, {mask:#x}
        s_cbranch_scc0 L_ok{st}
        s_add_u32 s{S_CNT}, s{S_CNT}, 1
        s_cmp_ge_u32 s{S_CNT}, 0x40000
        s_cbranch_scc1 L_ok{st}
        s_sleep {P['sleep']}
        """)
        s(poll, untracked=True)
        s(f"s_waitcnt vmcnt(0)", blind=True)
        s(f"s_branch L_w{st}\nL_ok{st}:")
    def accum(st, h0, h1):
        A0 = SB[st]
        for h in range(h0, h1):
            for q in range(4):
                r = O0 + 64 * st + 4 * h + q
                for z, k in enumerate((S_LO, S_HI)):
                    s(f"v_dot2_f32_bf16 v{A0+2*q+z}, v{r}, s{k}, " + ("0" if h == 0 else f"v{A0+2*q+z}"))
    def final(st):
        A0 = SB[st]; D = PB[st]
        for q in range(4): s(f"v_cvt_pk_bf16_f32 v{D+q}, v{A0+2*q}, v{A0+2*q+1}")
        for sw in ("16",):
            s(f"v_permlane{sw}_swap_b32 v{D}, v{D+2}\nv_permlane{sw}_swap_b32 v{D+1}, v{D+3}")
        s(f"buffer_store_dwordx4 {vr(D,4)}, v{V_OUT}, s[{S_OUT}:{S_OUT+3}], s{S_RO[st]} offen {P['out_aux']}")
    s(f"s_cmp_eq_u32 s{S_RA[0]}, 0\ns_cbranch_scc1 L_st2")
    waitflags(0)
    loads(0)
    s("L_join:")
    accum(0, 0, 16 - P["pw"])
    s(poll)
    accum(0, 16 - P["pw"], 16)
    s("s_waitcnt vmcnt(0)")
    s("L_st2:")
    for i in stamp_ins(): s.add(i)
    s(f"s_cmp_eq_u32 s{S_RA[1]}, 0\ns_cbranch_scc1 L_fin0")
    waitflags(1)
    loads(1)
    accum(1, 0, 16)
    final(1)
    s(f"s_cmp_eq_u32 s{S_RA[0]}, 0\ns_cbranch_scc1 L_done\nL_fin0:\ns_nop 2")
    final(0)
    s("L_done:")
    if P.get("probe") is not None:
        s("s_waitcnt vmcnt(0)\ns_barrier")
        for i in stamp_ins(): s.add(i)
        s(f"""
        L_spin:
        s_sleep 4
        s_memrealtime s[{S_ST+2}:{S_ST+3}]
        s_waitcnt lgkmcnt(0)
        s_sub_u32 s{S_T0}, s{S_ST+2}, s{S_ST}
        s_cmp_lt_u32 s{S_T0}, 10000
        s_cbranch_scc1 L_spin
        """)
    if P["stamps"]:
        s("s_waitcnt vmcnt(0)\ns_barrier")
        for i in stamp_ins(): s.add(i)
        s(f"""
        s_lshl_b32 s3, s2, 7
        v_lshrrev_b32 v59, 2, v{V_L16}
        v_add_u32 v59, s3, v59
        s_cmp_lg_u32 s{S_WAVE}, 0
        s_cbranch_scc1 L_end
        s_mov_b32 exec_hi, 0
        global_store_dword v59, v{V_ST}, s[{S_WS}:{S_WS+1}]
        v_add_u32 v59, 0x10000, v59
        global_store_dword v59, v70, s[{S_WS}:{S_WS+1}]
        v_add_u32 v59, 0x10000, v59
        global_store_dword v59, v71, s[{S_WS}:{S_WS+1}]
        """)
    s("L_end:\ns_endpgm")

    ins = resolve(s.ins, pair_waits=False, verbose=P.get("verbose"))
    marks = [k for k, i in enumerate(ins) if i.kind == "pseudo" and i.op == "@block"]
    assert len(marks) == 8
    blocks = [text_of(ins[marks[b]:marks[b+1]]) for b in range(7)]
    for b in range(1, 7):
        if blocks[b] != blocks[0]:
            import difflib
            print("".join(list(difflib.unified_diff(blocks[0].splitlines(1), blocks[b].splitlines(1), n=1))[:60]))
            raise SystemExit(f"block {b} differs from block 0")
    body = text_of(ins[:marks[0]]) + ".p2align 3\nL_loop:\n" + blocks[0] + text_of(ins[marks[7]:])

    r = Stream()
    for lab, par in stubs:
        r(f"L_fix{lab}:\ns_call_b64 s[{S_RET}:{S_RET+1}], L_rescale{par}\ns_branch L_ret{lab}")
    for par in range(2):
        r(f"L_rescale{par}:\ns_nop 15\n@fence")
        S = SB[par]; S2 = SB[1 - par]
        for qb, x in enumerate((V_T0, V_T1)):
            for i in rowmax(S + 8*qb, x) + allmax(x, TT[0]): r.add(i)
            r(f"v_max_f32 v{x}, 0, v{x}\nv_exp_f32 v{TT[1]}, -v{x}")
            for n in range(4): r(f"v_sub_f32 v{NM+4*qb+n}, v{NM+4*qb+n}, v{x}")
            for n in range(8): r(f"v_sub_f32 v{S+8*qb+n}, v{S+8*qb+n}, v{x}\nv_sub_f32 v{S2+8*qb+n}, v{S2+8*qb+n}, v{x}")
            r(f"v_mul_f32 v{V_L[qb]}, v{V_L[qb]}, v{TT[1]}")
            for jj in range(16):
                for n in range(4): r(f"v_mul_f32 v{O0+8*jj+4*qb+n}, v{TT[1]}, v{O0+8*jj+4*qb+n}")
        for i in softmax_ops(par): r.add(i)
        r(f"s_nop 3\ns_setpc_b64 s[{S_RET}:{S_RET+1}]")
    body += text_of(resolve(tailsubs.ins)) + text_of(resolve(r.ins)) + "L_codeend:\n"
    return whole_file(["; @launch grid=(256,1,1) block=(256,1,1) lds=163840"], [kernel_block(KN, body, 512, 102, 256)])

if __name__ == "__main__":
    out = sys.argv[1]
    kw = {}
    for a in sys.argv[2:]:
        k, v = a.split("=", 1)
        try: v = eval(v)
        except Exception: pass
        kw[k] = v
    open(out, "w").write(build(**kw))
```

```python
import re

def expand(tok):
    tok = tok.strip()
    neg = tok.startswith("-")
    if neg: tok = tok[1:]
    m = re.fullmatch(r"([vas])\[(\d+):(\d+)\]", tok)
    if m: return [f"{m.group(1)}{i}" for i in range(int(m.group(2)), int(m.group(3)) + 1)]
    m = re.fullmatch(r"([vas])(\d+)", tok)
    if m: return [tok]
    if tok in ("vcc_lo", "vcc_hi"): return ["vcc"]
    if tok in ("vcc", "m0", "exec", "scc"): return [tok]
    return []

TRANS = ("v_exp_f32", "v_rcp_f32", "v_log_f32", "v_rsq_f32", "v_sqrt_f32")

class I:
    __slots__ = ("text", "kind", "rd", "wr", "tag", "meta", "op", "srcC", "srcAB", "size")
    def __init__(self, text, tag=None, **meta):
        self.text = text.strip(); self.tag = tag; self.meta = meta
        self.rd = set(); self.wr = set(); self.srcC = set(); self.srcAB = set()
        t = self.text.split(";")[0].strip()
        if t.endswith(":"):
            self.kind = "label"; self.op = ""; return
        if t.startswith("@"):
            self.kind = "pseudo"; self.op = t.split()[0]; return
        if t.startswith("."):
            self.kind = "dir"; self.op = t.split()[0]; return
        t = re.sub(r"\s+op_sel(_hi)?:\[[^\]]*\]", "", t)
        parts = t.split(None, 1)
        op = parts[0]; self.op = op
        base = re.sub(r"_e(32|64)$", "", op)
        ops = []
        if len(parts) > 1:
            ops = [x.strip() for x in parts[1].split(",")]
            last = ops[-1].split()
            mods = last[1:]; ops[-1] = last[0] if last else ""
        else:
            mods = []
        E = lambda k: expand(ops[k]) if k < len(ops) else []
        allr = lambda a: [r for k in range(a, len(ops)) for r in E(k)]
        if op.startswith("v_mfma"):
            self.kind = "mfma"
            self.wr = set(E(0)); self.srcAB = set(E(1) + E(2)); self.srcC = set(E(3)); self.rd = self.srcAB | self.srcC
        elif op.startswith("ds_read") or op.startswith("ds_bpermute"):
            self.kind = "ds"; self.wr = set(E(0)); self.rd = set(allr(1))
        elif op.startswith("ds_write"):
            self.kind = "ds"; self.rd = set(allr(0))
        elif op.startswith("buffer_load") or op.startswith("global_load"):
            self.kind = "vmem"
            if "lds" in mods:
                self.rd = set(allr(0)) | {"m0"}
            else:
                self.wr = set(E(0)); self.rd = set(allr(1))
        elif op.startswith("buffer_store") or op.startswith("global_store") or op.startswith("global_atomic") or op.startswith("buffer_atomic"):
            self.kind = "vmem"; self.rd = set(allr(0))
        elif op.startswith("buffer_wbl2") or op.startswith("buffer_inv"):
            self.kind = "vmem"
        elif op.startswith("v_cmp"):
            self.kind = "valu"; self.wr = set(E(0)); self.rd = set(allr(1))
        elif op.startswith("v_permlane32_swap") or op.startswith("v_permlane16_swap"):
            self.kind = "valu"; self.wr = set(allr(0)); self.rd = set(allr(0))
        elif op.startswith("v_readfirstlane") or op.startswith("v_readlane"):
            self.kind = "valu"; self.wr = set(E(0)); self.rd = set(allr(1))
        elif op.startswith("v_"):
            self.kind = "trans" if base in TRANS else "valu"
            self.wr = set(E(0)); self.rd = set(allr(1))
            if base in ("v_fmac_f32", "v_dot2c_f32_bf16"): self.rd |= self.wr
        elif op == "s_waitcnt": self.kind = "wait"
        elif op == "s_barrier": self.kind = "barrier"
        elif op == "s_nop": self.kind = "nop"
        elif op.startswith("s_atomic"):
            self.kind = "smem"; self.rd = set(allr(0))
        elif op.startswith("s_load") or op in ("s_memrealtime", "s_memtime"):
            self.kind = "smem"; self.wr = set(E(0)); self.rd = set(allr(1))
        elif op.startswith("s_cbranch") or op in ("s_branch", "s_call_b64", "s_setpc_b64", "s_endpgm"):
            self.kind = "branch"
            if "vcc" in op: self.rd = {"vcc"}
        elif op.startswith("s_cmp") or op.startswith("s_bitcmp"):
            self.kind = "salu"; self.rd = set(allr(0)); self.wr = {"scc"}
        elif op.startswith("s_"):
            self.kind = "salu"; self.wr = set(E(0)); self.rd = set(allr(1))
        else:
            raise ValueError("unknown instr " + text)
    def states(self):
        if self.kind == "nop": return int(self.text.split()[1]) + 1
        if self.kind in ("label", "pseudo", "dir"): return 0
        return 1

def need_states(p, c):
    n = 0
    pv = p.kind in ("valu", "trans"); cv = c.kind in ("valu", "trans")
    vr = lambda s: {r for r in s if r[0] in "va" and r != "vcc"}
    sr = lambda s: {r for r in s if (r[0] == "s" and r != "scc") or r == "vcc"}
    if p.kind == "mfma":
        passes8 = "32x32" in p.op
        big = 12 if passes8 else 8
        if c.kind == "mfma":
            if c.srcAB & p.wr: n = max(n, big)
            if (c.srcC & p.wr) and c.srcC != p.wr: n = max(n, big - 2)
            if (c.wr & p.wr) and not (c.srcC & p.wr): n = max(n, big)
        elif cv or c.kind in ("ds", "vmem"):
            if (c.rd | c.wr) & p.wr: n = max(n, big)
            if cv and (c.wr & p.srcC): n = max(n, 7 if passes8 else 3)
    if pv:
        if c.kind == "mfma" and (c.rd & vr(p.wr)): n = max(n, 2)
        if p.kind == "trans" and cv and (c.rd & p.wr): n = max(n, 1)
        if c.op.startswith("v_permlane") and (c.rd & vr(p.wr)): n = max(n, 2)
        if (c.op.startswith("v_readfirstlane") or c.op.startswith("v_readlane")) and (c.rd & vr(p.wr)): n = max(n, 1)
        if sr(p.wr):
            if c.kind == "vmem" and (c.rd & sr(p.wr)): n = max(n, 5)
            if cv and (c.rd & sr(p.wr)): n = max(n, 2)
            if c.kind in ("salu", "branch") and (c.rd & sr(p.wr)): n = max(n, 1)
        if p.op.startswith("v_dot2") and (cv or c.kind in ("vmem", "ds")) and ((c.rd | c.wr) & p.wr):
            if not (c.op == p.op and not ((c.rd - c.wr) & p.wr)): n = max(n, 3)
    if p.kind == "vmem" and ("store" in p.op) and ("x4" in p.op or "x3" in p.op):
        if (cv or c.kind in ("ds", "vmem", "mfma")) and (c.wr & vr(p.rd)): n = max(n, 2)
    if p.kind == "salu" and "m0" in p.wr and c.kind == "vmem" and "m0" in c.rd: n = max(n, 1)
    return n

class Stream:
    def __init__(self):
        self.ins = []
    def __call__(self, s, tag=None, **meta):
        for l in s.strip("\n").split("\n"):
            l = l.strip()
            if l and not l.startswith(";"):
                self.ins.append(I(l, tag, **meta))
    def add(self, i): self.ins.append(i)

def resolve(ins, pair_waits=True, verbose=False):
    for k, i in enumerate(ins):
        if i.kind == "branch" and i.op.startswith("s_cbranch"):
            lab = i.text.split()[-1] + ":"
            for j in range(k + 1, min(k + 40, len(ins))):
                if ins[j].kind == "label" and ins[j].text == lab:
                    for x in ins[k + 1:j]: x.meta["skip"] = True
                    break
    out = []
    dsq = []
    vmq = []
    landed = set()
    visible = set()
    slot_tile = {}
    reads_open = {}
    done_ds = set()
    safe_tiles = set()
    nnop = 0
    cur_m0 = [None]
    def emit(i):
        nonlocal nnop
        need = 0; dist = 0
        for p in reversed(out):
            if dist >= 20: break
            if p.kind == "pseudo" and p.op == "@fence": break
            k = need_states(p, i)
            if k > dist: need = max(need, k - dist)
            if not p.meta.get("skip") or i.meta.get("skip"): dist += p.states()
        if need:
            nnop += 1
            out.append(I(f"s_nop {need-1}", auto=True, skip=i.meta.get("skip")))
        out.append(i)
    def wait_ds(n):
        while len(dsq) > n:
            d = dsq.pop(0); done_ds.add(id(d))
    def wait_vm(n):
        while len(vmq) > n:
            d = vmq.pop(0)
            t = d.meta.get("tile")
            if t is not None and not any(x.meta.get("tile") == t for x in vmq): landed.add(t)
    for idx, i in enumerate(ins):
        if i.kind == "pseudo" and i.op == "@waitvm":
            tags = i.text.split()[1:]
            last = -1
            for k, d in enumerate(vmq):
                if d.tag in tags or d.meta.get("tile") in tags: last = k
            if last >= 0 or i.meta.get("force"):
                n = len(vmq) - 1 - last
                assert n <= 63
                emit(I(f"s_waitcnt vmcnt({n})")); wait_vm(n)
            continue
        if i.kind == "pseudo" and i.op == "@waitnext":
            tags = i.text.split()[1:]
            nxt = []
            for j in range(idx + 1, len(ins)):
                if ins[j].kind == "mfma" and not ins[j].meta.get("aux"):
                    nxt.append(ins[j])
                    if len(nxt) == i.meta.get('span', 2): break
                if ins[j].kind == "pseudo" and ins[j].op == "@stop": break
            need = set()
            for m_ in nxt: need |= m_.rd
            last = -1
            for k, d in enumerate(dsq):
                if d.wr & need or d.meta.get("tile") in i.meta.get("drain", ()): last = k
            w = []
            lv = -1
            for k, d in enumerate(vmq):
                if d.tag in tags or d.meta.get("tile") in tags: lv = k
            if lv >= 0:
                n = len(vmq) - 1 - lv; assert n <= 63
                w.append(f"vmcnt({n})"); wait_vm(n)
            if last >= 0:
                n = len(dsq) - 1 - last; assert n <= 15
                w.append(f"lgkmcnt({n})"); wait_ds(n)
            if w: emit(I("s_waitcnt " + " ".join(w), auto=True))
            continue
        if i.kind == "pseudo":
            out.append(i); continue
        if i.kind == "wait" and i.meta.get("blind"):
            emit(i); continue
        if i.kind == "wait":
            m = re.search(r"lgkmcnt\((\d+)\)", i.text)
            if m: wait_ds(int(m.group(1)))
            m = re.search(r"vmcnt\((\d+)\)", i.text)
            if m: wait_vm(int(m.group(1)))
            emit(i); continue
        touched = i.rd | i.wr
        if i.meta.get("nodep"): touched = set(i.rd)
        last = -1
        for k, d in enumerate(dsq):
            if d.wr & touched: last = k
        if last >= 0:
            if pair_waits and i.kind == "mfma":
                for j in range(idx + 1, min(idx + 16, len(ins))):
                    if ins[j].kind == "mfma":
                        l2 = -1
                        for k, d in enumerate(dsq):
                            if d.wr & ins[j].rd: l2 = k
                        if l2 > last and len(dsq) - 1 - l2 >= 2: last = l2
                        break
            n = len(dsq) - 1 - last
            assert n <= 15, "lgkmcnt overflow"
            emit(I(f"s_waitcnt lgkmcnt({n})", auto=True)); wait_ds(n)
        last = -1
        for k, d in enumerate(vmq):
            if d.wr & touched: last = k
        if last >= 0:
            n = len(vmq) - 1 - last
            assert n <= 63
            emit(I(f"s_waitcnt vmcnt({n})", auto=True)); wait_vm(n)
        if i.kind == "barrier":
            visible |= landed
            for t, l in list(reads_open.items()):
                l[:] = [d for d in l if id(d) not in done_ds]
        if i.kind == "ds":
            t = i.meta.get("tile")
            if t is not None:
                if i.meta.get("private"): assert t in landed, f"read of {t} before own wait: {i.text}"
                else: assert t in visible, f"read of {t} before it is visible: {i.text}"
                assert slot_tile.get(i.meta["slot"]) == t, f"slot {i.meta['slot']} holds {slot_tile.get(i.meta['slot'])}, wanted {t}"
                reads_open.setdefault(t, []).append(i)
            dsq.append(i)
            assert len(dsq) <= 16, "too many ds ops in flight"
        if i.kind == "salu" and "m0" in i.wr:
            cur_m0[0] = i.text.split(",")[-1].strip()
        if i.kind == "vmem":
            t = i.meta.get("tile")
            if t is not None:
                assert cur_m0[0] == str(i.meta["slot"] * 16384), f"m0 mismatch for {t}"
                s = i.meta["slot"]; old = slot_tile.get(s)
                if old is not None and old != t:
                    l = reads_open.get(old, [])
                    l2 = [d for d in l if not (d.meta.get("private") and id(d) in done_ds)]
                    assert not l2, f"DMA {t} into slot {s} while reads of {old} may be pending"
                    assert old in reads_open or i.meta.get("unread_ok"), f"tile {old} overwritten before being read"
                slot_tile[s] = t
            if not i.meta.get("untracked"): vmq.append(i)
            assert len(vmq) <= 61, "too many vmem ops in flight"
        emit(i)
    if verbose: print("auto nops:", nnop)
    return out

def text_of(ins):
    o = []
    for i in ins:
        if i.kind == "pseudo":
            if i.op == "@c": o.append("; " + i.text[3:])
            continue
        o.append(i.text if i.kind == "label" else "    " + i.text)
    return "\n".join(o) + "\n"
```

```python
import sys, math, struct
from asmlib import *
from stream import *

def f2u(x): return struct.unpack("<I", struct.pack("<f", x))[0]

DEF = dict(LA=4, PDK=2, PDV=2, late=2, kv_aux="nt", wq_aux="", wpf=0, prog=0, krot=1, msum=1, early=0, vfirst=3, dl=5, b31=1, half=1, order=(0,1,3,2), obit=4, f2=(0,0,0), pre2=1, merge=1, kperm=0, ek=(2,4), qla=(2,2,2,3,3,4,4), prenorm=1, eki=0, xlast=1, fa=(3,1,18), fb=(3,1,18), kv10=2, kv12=1, bal=1, x1e=0, out_aux="sc1", fast=0, fewb=1, ewo=1, bm=1, wo_aux="", x_aux="", stamps=False,
           st_aux="sc1", ld_aux="sc1", rot=4, orot=2, n1=4, sig=11.25, pw=4, wsoff=0x1000000, thr=4096.0, early_k=10, sleep=2, dsp=2,
           sm_start=2, ann="s", cpf=1)

O0 = 128
SB = [96, 112]
PB = [80, 88]
NM = 72
TT = list(range(0, 8))
V_L = [64, 65]; V_LT = [66, 67]; V_T0, V_T1 = 62, 63; V_RI = [60, 61]; LB = [64, 68]; A_ONE = 160
KA = list(range(8, 12))
TA1 = list(range(12, 20))
TA0 = list(range(20, 28))
XA = [28, 29]
KD = [30, 31]; VD = [32, 33]; QD = list(range(34, 38)); XD = list(range(38, 42)); WD = list(range(42, 46))
WA = [list(range(46, 50)), list(range(20, 24)), list(range(24, 28))]
V_L16 = 50; V_OUT = 51
V_FLG = 52; V_FLG2 = 53; V_ONE = 54; V_POLL = 55; V_DBG = 56; V_ST = 57; V_CP = 68; V_EP = 59
A_Q = 0; A_F = 64; NF = 16; A_X = 128

S_X, S_K, S_V, S_WQ, S_WO, S_P, S_OUT = 32, 36, 40, 44, 48, 52, 56
S_DBG = 26; S_WS = 28
S_W4K, S_WAVE, S_BR, S_B, S_H, S_G = 60, 61, 62, 63, 64, 65
S_KOFF, S_VOFF, S_QU, S_T0, S_T1, S_THR, S_CNT, S_OU, S_OS, S_PB = 66, 67, 68, 69, 70, 72, 73, 74, 75, 76
S_RET = 78; S_FL = 80; S_C = 82
S_ST = 84; S_G4 = 88; S_ONE = 89; S_PC = 90; S_BT = 93; S_RR = [94, 95]; S_RO = [96, 97]; S_RA = [98, 99]; S_LO = 100; S_HI = 101; S_ADV = [75, 77, 93, 24]

PART_W = 28672; PART_H = 4 * PART_W; PART_G = 16 * PART_H
FLAG_OFF = 0x100000

def vr(a, n): return f"v[{a}:{a+n-1}]"
def ar(a, n): return f"a[{a}:{a+n-1}]"
def cost(i):
    if i.kind == "trans" or i.op.startswith("v_permlane"): return 2
    if i.kind in ("label", "pseudo"): return 0
    return 1

class Pair:
    def __init__(self):
        self.m = []; self.reads = []; self.mem = []; self.ops = []; self.sc0 = []; self.sc1 = []
        self.pre = []; self.post = []; self.vmtags = []; self.drain = []
    def free(self):
        return 4 - len(self.reads) - len(self.mem) - sum(cost(i) for i in self.ops) - max(0, len(self.sc0) - 1) - sum(cost(i) for i in self.sc1)

def build(**kw):
    P = dict(DEF); P.update(kw)
    LA = P["LA"]
    ADV = "0" if P.get("noadv") else "0x4000"
    s = Stream()
    nstamp = [0]
    def stamp_ins():
        if P.get("probe") is not None:
            k = nstamp[0]; nstamp[0] += 1
            if k != P["probe"]: return []
            return [I("s_waitcnt lgkmcnt(0)", blind=True), I(f"s_memrealtime s[{S_ST}:{S_ST+1}]"), I("s_waitcnt lgkmcnt(0)", blind=True)]
        if not P["stamps"]: return []
        k = nstamp[0]; nstamp[0] += 1
        assert k < 16
        return [I("s_waitcnt lgkmcnt(0)", blind=True), I(f"s_memrealtime s[{S_ST}:{S_ST+1}]"), I(f"s_memtime s[{S_ST+2}:{S_ST+3}]"),
                I("s_waitcnt lgkmcnt(0)", blind=True), I(f"v_writelane_b32 v{V_ST}, s{S_ST}, {k}"), I(f"v_writelane_b32 v{V_ST}, s{S_ST+2}, {16+k}")]

    s("@c ---- set-up: decode (branch, batch, head), first loads, addresses ----")
    s("s_cmp_ge_u32 s2, 256\ns_cbranch_scc1 L_end")
    for i in stamp_ins(): s.add(i)
    s(f"""
    s_load_dwordx16 s[4:19], s[0:1], 0
    s_load_dwordx8 s[20:27], s[0:1], 64
    s_load_dwordx2 s[28:29], s[0:1], 96
    s_getpc_b64 s[{S_PC}:{S_PC+1}]
    L_pc:
    s_bfe_u32 s{S_B}, s2, 0x30003
    v_lshrrev_b32 v1, 6, v0
    v_and_b32 v58, 15, v0
    s_lshl_b32 s{S_T0}, s{S_B}, 13
    v_lshl_add_u32 v59, v1, 4, v58
    v_lshl_add_u32 v59, v59, 7, s{S_T0}
    v_min_u32 v59, (L_codeend-L_pc-4), v59
    v_readfirstlane_b32 s{S_WAVE}, v1
    """)
    if P["cpf"]: s(f"global_load_dword a255, v59, s[{S_PC}:{S_PC+1}]")
    s(f"""
    s_and_b32 s30, s2, 7
    s_lshr_b32 s{S_BR}, s2, 7
    s_bfe_u32 s3, s2, 0x10006
    s_lshl_b32 s{S_H}, s30, 1
    s_add_u32 s{S_H}, s{S_H}, s3
    s_lshl_b32 s{S_W4K}, s{S_WAVE}, 12
    """)
    def rotation(dst, mode):
        if mode == 0: s(f"s_mov_b32 s{dst}, 0")
        if mode == 2: s(f"s_sub_u32 s{dst}, s{S_B}, 7\ns_min_u32 s{dst}, s{dst}, s{S_B}")
        if mode == 3: s(f"s_and_b32 s{dst}, s{S_B}, 1\ns_mul_i32 s{dst}, s{dst}, 3")
        if mode == 4: s(f"s_and_b32 s{dst}, s{S_B}, 3\ns_lshl_b32 s{dst}, s{dst}, 1")
    rotation(S_QU, P["rot"])
    s(f"""
    v_and_b32 v2, 63, v0
    v_lshrrev_b32 v5, 3, v2
    v_and_b32 v6, 7, v2
    v_lshrrev_b32 v7, 4, v2
    v_lshl_add_u32 v60, v1, 5, v5
    v_mul_u32_u24 v60, 896, v60
    v_xor_b32 v59, v6, v7
    v_lshl_add_u32 v{XD[0]}, v59, 4, v60
    v_xor_b32 v59, 4, v59
    v_lshl_add_u32 v{XD[1]}, v59, 4, v60
    v_add_u32 v{XD[2]}, {2*6144}, v{XD[0]}
    v_add_u32 v{XD[3]}, {3*6144}, v{XD[1]}
    v_add_u32 v{XD[1]}, 6144, v{XD[1]}
    s_mul_i32 s{S_T1}, s{S_B}, 114688
    s_mov_b32 s{S_X+2}, 114688
    s_mov_b32 s{S_X+3}, 0x20000
    s_lshl_b32 s31, s{S_H}, 9
    s_sub_u32 s{S_WQ+2}, {448*8192}, s31
    s_mov_b32 s{S_WQ+3}, 0x20000
    """)
    s(f"""
    v_lshrrev_b32 v3, 5, v2
    v_and_b32 v4, 31, v2
    v_lshl_add_u32 v5, v1, 3, v3
    v_and_b32 v61, 1, v1
    v_lshl_add_u32 v61, v61, 2, v3
    v_lshlrev_b32 v61, 1, v61
    v_xor_b32 v61, v61, v4
    v_lshlrev_b32 v61, 4, v61
    v_xor_b32 v59, 64, v61
    v_lshl_add_u32 v{QD[0]}, v5, 13, v61
    v_lshl_add_u32 v{QD[1]}, v5, 13, v59
    v_add_u32 v{QD[2]}, {2*15360}, v{QD[0]}
    v_add_u32 v{QD[3]}, {3*15360}, v{QD[1]}
    v_add_u32 v{QD[1]}, 15360, v{QD[1]}
    """)
    s(f"s_cmp_eq_u32 s{S_BR}, 0\ns_waitcnt lgkmcnt(0)")
    s(f"""
    s_cselect_b32 s{S_X}, s4, s14
    s_cselect_b32 s{S_X+1}, s5, s15
    s_cselect_b32 s{S_WQ}, s10, s20
    s_cselect_b32 s{S_WQ+1}, s11, s21
    s_add_u32 s{S_X}, s{S_X}, s{S_T1}
    s_addc_u32 s{S_X+1}, s{S_X+1}, 0
    s_add_u32 s{S_WQ}, s{S_WQ}, s31
    s_addc_u32 s{S_WQ+1}, s{S_WQ+1}, 0
    """)
    if P.get("sstamps"):
        for i in stamp_ins(): s.add(i)

    def dma(tile, slot, regs, srd, soff, aux, pre=[], post=[], **meta):
        l = [I(f"buffer_load_dwordx4 v{regs[i]}, s[{srd}:{srd+3}], {soff} offen offset:{1024*i} {aux} lds".replace("  ", " "),
               tile=tile, slot=slot, **meta) for i in range(4)]
        return ([I(x) for x in pre] + [I(f"s_add_u32 m0, s{S_W4K}, {slot*16384}")], l, [I(x) for x in post])
    WQ_SLOT = [6, 7, 4, 2, 5, 3]
    nxt = lambda r: [f"s_add_u32 s{r}, s{r}, 1", f"s_cmp_eq_u32 s{r}, 7", f"s_cselect_b32 s{r}, 0, s{r}"]
    def dma_x(u): return dma(f"X{u}", 8 + (u & 1), XD, S_X, f"s{S_T0}", P["x_aux"], pre=[f"s_lshl_b32 s{S_T0}, s{S_QU}, 7"])
    def dma_wq(j):
        if j & 1 == 0: return dma(f"WQ{j}", WQ_SLOT[j % 6], QD, S_WQ, f"s{S_T1}", P["wq_aux"], pre=[f"s_lshl_b32 s{S_T1}, s{S_QU}, 19"])
        return dma(f"WQ{j}", WQ_SLOT[j % 6], QD, S_WQ, f"s{S_T1}", P["wq_aux"], pre=[f"s_add_u32 s{S_T1}, s{S_T1}, 0x40000"], post=nxt(S_QU))
    SPAN = P.get("span", 0)
    def inc(order, t):
        o = list(order) + [4 + order[0]]
        return ((o[t % 4 + 1] - o[t % 4]) * 0x4000) & 0x7ffff
    def adv(t):
        if P.get("noadv"): return 0
        if SPAN == 1:
            o = [(x >> 1) * 32768 + (x & 1) * 2048 for x in list(P["order"]) + [4]]
            return (o[t % 4 + 1] - o[t % 4]) & 0x7ffff
        if SPAN == 4:
            o = [x * 1024 for x in P["order"]] + [65536]
            return (o[t % 4 + 1] - o[t % 4]) & 0x7ffff
        if SPAN == 2: return 4096 if t % 2 == 0 else 28672
        if P.get("order2"): return f"s{S_ADV[t % 4]}"
        return inc(P["order"], t)
    KR = KD + [68, 69] if SPAN in (1, 3, 4) else KD * 2; VR = VD + [70, 71] if SPAN in (1, 3, 4) else VD * 2
    def dma_k(t): return dma(f"K{t}", t % 4, KR, S_K, f"s{S_KOFF}", P["kv_aux"], post=[f"s_add_u32 s{S_KOFF}, s{S_KOFF}, {adv(t)}", f"s_and_b32 s{S_KOFF}, s{S_KOFF}, 0x7ffff"])
    def dma_v(t): return dma(f"V{t}", 4 + t % 4, VR, S_V, f"s{S_VOFF}", P["kv_aux"], post=[f"s_add_u32 s{S_VOFF}, s{S_VOFF}, {adv(t)}", f"s_and_b32 s{S_VOFF}, s{S_VOFF}, 0x7ffff"])
    WO_SLOT = [8, 9, 0, 1, 2, 4, 3, 5, 6, 7, 8, 9, 0, 1]
    WOFF = list(range(4, 18)); SOFF = list(range(18, 24)) + [92]
    def dma_wo(j): return dma(f"WO{j}", WO_SLOT[j], WD, S_WO, f"s{WOFF[j]}", P["wo_aux"], unread_ok=True)
    def flat(d): return d[0] + d[1] + d[2]

    for d in (dma_x(0), dma_wq(0), dma_wq(1), dma_x(1)):
        for i in flat(d): s.add(i)
    if P.get("sstamps"):
        for i in stamp_ins(): s.add(i)
    rotation(S_OU, P["orot"])
    s(f"""
    v_lshl_add_u32 v{VD[0]}, v5, 9, v61
    v_lshl_add_u32 v{VD[1]}, v5, 9, v59
    v_lshl_add_u32 v61, v1, 2, v3
    v_xor_b32 v61, v61, v4
    v_lshlrev_b32 v61, 4, v61
    v_xor_b32 v59, 32, v61
    v_lshl_add_u32 v{KD[0]}, v5, 9, v61
    v_lshl_add_u32 v{KD[1]}, v5, 9, v59
    v_lshlrev_b32 v59, 1, v7
    v_xor_b32 v59, v59, v6
    v_lshl_add_u32 v{WD[0]}, v59, 4, v60
    v_add_u32 v{WD[1]}, 6144, v{WD[0]}
    v_add_u32 v{WD[2]}, {2*6144}, v{WD[0]}
    v_add_u32 v{WD[3]}, {3*6144}, v{WD[0]}
    v_lshlrev_b32 v{V_L16}, 4, v2
    s_lshl_b32 s{S_G}, s{S_BR}, 3
    s_add_u32 s{S_G}, s{S_G}, s{S_B}
    s_lshl_b32 s{S_T0}, s{S_B}, 3
    s_add_u32 s{S_T0}, s{S_T0}, s30
    s_lshl_b32 s31, s{S_B}, 4
    s_add_u32 s31, s31, s{S_H}
    s_cmp_eq_u32 s{S_BR}, 0
    s_cselect_b32 s31, s{S_T0}, s31
    s_cselect_b32 s{S_K}, s6, s16
    s_cselect_b32 s{S_K+1}, s7, s17
    s_cselect_b32 s{S_V}, s8, s18
    s_cselect_b32 s{S_V+1}, s9, s19
    s_cselect_b32 s{S_WO}, s12, s22
    s_cselect_b32 s{S_WO+1}, s13, s23
    s_lshl_b32 s31, s31, 19
    """)
    s(f"""
    s_add_u32 s{S_K}, s{S_K}, s31
    s_addc_u32 s{S_K+1}, s{S_K+1}, 0
    s_mov_b32 s{S_K+2}, 0x80000
    s_mov_b32 s{S_K+3}, 0x20000
    s_add_u32 s{S_V}, s{S_V}, s31
    s_addc_u32 s{S_V+1}, s{S_V+1}, 0
    s_mov_b32 s{S_V+2}, 0x80000
    s_mov_b32 s{S_V+3}, 0x20000
    s_mul_i32 s{S_T0}, s{S_H}, 229376
    s_add_u32 s{S_WO}, s{S_WO}, s{S_T0}
    s_addc_u32 s{S_WO+1}, s{S_WO+1}, 0
    s_mov_b32 s{S_WO+2}, 229376
    s_mov_b32 s{S_WO+3}, 0x20000
    s_mul_i32 s{S_T0}, s{S_G}, {PART_G}
    s_add_u32 s{S_T0}, s{S_T0}, {P['wsoff']}
    s_add_u32 s{S_P}, s{S_WS}, s{S_T0}
    s_addc_u32 s{S_P+1}, s{S_WS+1}, 0
    s_mov_b32 s{S_P+2}, {PART_G}
    s_mov_b32 s{S_P+3}, 0x20000
    s_mov_b32 s{S_OUT}, s24
    s_mov_b32 s{S_OUT+1}, s25
    s_mov_b32 s{S_OUT+2}, {8*128*896*2}
    s_mov_b32 s{S_OUT+3}, 0x20000
    s_mul_i32 s{S_PB}, s{S_H}, {PART_H}
    s_mul_i32 s{S_T0}, s{S_WAVE}, {PART_W}
    s_add_u32 s{S_PB}, s{S_PB}, s{S_T0}
    s_lshl_b32 s{S_T0}, s{S_G}, 12
    s_add_u32 s{S_T0}, s{S_T0}, {FLAG_OFF}
    s_add_u32 s{S_FL}, s{S_WS}, s{S_T0}
    s_addc_u32 s{S_FL+1}, s{S_WS+1}, 0
    s_bfe_u32 s{S_KOFF}, s31, {(P['fa'][1] << 16) | (19 + P['fa'][0]):#x}
    s_lshl_b32 s{S_KOFF}, s{S_KOFF}, {P['fa'][2]}
    s_bfe_u32 s{S_VOFF}, s31, {(P['fb'][1] << 16) | (19 + P['fb'][0]):#x}
    s_lshl_b32 s{S_VOFF}, s{S_VOFF}, {P['fb'][2]}
    s_cmp_eq_u32 s{S_BR}, 0
    s_cselect_b32 s{S_KOFF}, s{S_KOFF}, s{S_VOFF}
    s_bfe_u32 s{S_VOFF}, s31, {(P['f2'][1] << 16) | (19 + P['f2'][0]):#x}
    s_lshl_b32 s{S_VOFF}, s{S_VOFF}, {P['f2'][2]}
    s_add_u32 s{S_KOFF}, s{S_KOFF}, s{S_VOFF}
    s_mov_b32 s{S_VOFF}, s{S_KOFF}
    s_mov_b32 s{S_C}, {f2u(math.log2(math.e)/16.0):#x}
    s_mov_b32 s{S_C+1}, s{S_C}
    s_mov_b32 s{S_THR}, {f2u(P['thr'] * (64 if P['msum'] else 1)):#x}
    s_lshl_b32 s{S_G4}, s{S_G}, 4
    s_mov_b32 s{S_ONE}, 1
    s_mov_b32 s{S_LO}, 0x3f80
    s_mov_b32 s{S_HI}, 0x3f800000
    """)
    if P.get("order2"):
        s(f"s_bitcmp1_b32 s31, {19 + P['obit']}")
        for t in range(4): s(f"s_mov_b32 s{S_ADV[t]}, {inc(P['order'], t)}\ns_cselect_b32 s{S_ADV[t]}, {inc(P['order2'], t)}, s{S_ADV[t]}")
    if SPAN in (1, 2):
        for r in KD + VD: s(f"v_lshl_add_u32 v{r}, v1, 12, v{r}")
    if SPAN == 1:
        for a, b in zip(KD + VD, (68, 69, 70, 71)): s(f"v_add_u32 v{b}, 2048, v{a}")
    if SPAN == 4:
        s("v_mul_u32_u24 v59, 12288, v1")
        for r in KD + VD: s(f"v_add_u32 v{r}, v{r}, v59")
    if SPAN == 3:
        s("v_mul_u32_u24 v59, 3072, v1")
        for r in KD + VD: s(f"v_sub_u32 v{r}, v{r}, v59")
    if SPAN in (3, 4):
        for a0, a1, b0, b1 in (KD + [68, 69], VD + [70, 71]):
            s(f"v_add_u32 v{b0}, {2*3072}, v{a0}\nv_add_u32 v{b1}, {3*3072}, v{a1}\nv_add_u32 v{a1}, 3072, v{a1}")
    s(f"""
    s_lshl_b32 s{S_T0}, s{S_H}, 8
    v_lshl_add_u32 v{V_FLG}, v4, 2, s{S_T0}
    s_lshl_b32 s{S_T0}, s{S_H}, 2
    v_lshl_add_u32 v{V_FLG2}, v58, 8, s{S_T0}
    v_mov_b32 v{V_POLL}, 0
    v_mov_b32 v{V_DBG}, s{S_G4}
    v_mov_b32 v{V_ONE}, 1
    """)
    s(f"""
    v_bfe_u32 v5, v2, 2, 2
    v_and_b32 v6, 3, v2
    v_lshl_add_u32 v59, v7, 3, v5
    v_lshlrev_b32 v59, 9, v59
    v_lshl_add_u32 v59, v6, 3, v59
    v_and_b32 v60, 1, v7
    v_lshl_add_u32 v60, v60, 2, v5
    """)
    for j in range(8):
        s(f"""
        v_xor_b32 v61, {j}, v60
        v_lshl_add_u32 v{TA0[j]}, v61, 5, v59
        v_add_u32 v{TA1[j]}, 0x10000, v{TA0[j]}
        """)
    s(f"""
    v_lshrrev_b32 v59, 1, v58
    v_xor_b32 v59, v59, v7
    v_lshlrev_b32 v60, 7, v58
    v_lshl_add_u32 v60, v1, 12, v60
    v_add_u32 v60, 0x20000, v60
    v_lshl_add_u32 v{XA[0]}, v59, 4, v60
    v_xor_b32 v{XA[1]}, 64, v{XA[0]}
    """)
    if P.get("sstamps"):
        for i in stamp_ins(): s.add(i)
    for d in [dma_wq(2), dma_wq(3)][:P["pre2"]]:
        for i in flat(d): s.add(i)
    if P.get("sstamps"):
        for i in stamp_ins(): s.add(i)
    lsc = Stream()
    for u in range(7):
        lsc(f"""
        s_add_u32 s30, s{S_OU}, {u}
        s_sub_u32 s31, s30, 7
        s_min_u32 s30, s30, s31
        s_lshl_b32 s{WOFF[2*u]}, s30, 7
        s_add_u32 s{WOFF[2*u+1]}, s{WOFF[2*u]}, 114688
        s_lshl_b32 s30, s30, 12
        s_add_u32 s{SOFF[u]}, s30, s{S_PB}
        """)
    for st, (u0, n) in enumerate(((0, P["n1"]), (P["n1"], 7 - P["n1"]))):
        if n == 4: lsc(f"s_mov_b32 s3, s{S_H}")
        else: lsc(f"s_lshl_b32 s3, s{S_WAVE}, 2\ns_add_u32 s3, s3, s{S_H}\ns_and_b32 s3, s3, 15")
        lsc(f"""
        s_lshr_b32 s30, s3, 2
        s_add_u32 s30, s30, s{S_OU}
        s_add_u32 s30, s30, {u0}
        s_sub_u32 s31, s30, 7
        s_min_u32 s30, s30, s31
        s_lshl_b32 s31, s30, 2
        s_and_b32 s71, s3, 3
        s_add_u32 s31, s31, s71
        s_lshl_b32 s31, s31, 10
        s_mul_i32 s{S_RR[st]}, s{S_WAVE}, {PART_W}
        s_add_u32 s{S_RR[st]}, s{S_RR[st]}, s31
        s_lshl_b32 s31, s{S_B}, 2
        s_add_u32 s31, s31, s{S_WAVE}
        s_lshl_b32 s31, s31, 1
        s_bfe_u32 s71, s3, 0x10001
        s_add_u32 s31, s31, s71
        s_mul_i32 s31, s31, {16*1792}
        s_lshl_b32 s30, s30, 1
        s_and_b32 s71, s3, 1
        s_add_u32 s30, s30, s71
        s_lshl_b32 s30, s30, 6
        s_add_u32 s31, s31, s30
        s_mul_i32 s30, s{S_BR}, 896
        s_add_u32 s{S_RO[st]}, s31, s30
        s_lshr_b32 s{S_RA[st]}, s3, 2
        s_xor_b32 s{S_RA[st]}, s{S_RA[st]}, {n}
        """)
    late = Stream()
    late(f"""
    v_lshrrev_b32 v59, 2, v58
    v_and_b32 v60, 3, v58
    v_lshl_add_u32 v59, v59, 3, v60
    v_lshlrev_b32 v59, 9, v59
    v_bfrev_b32 v61, v7
    v_lshrrev_b32 v{V_OUT}, 30, v61
    v_xor_b32 v60, v58, v{V_OUT}
    """)
    for k in range(4):
        late(f"v_xor_b32 v61, {4*k}, v60\nv_lshl_add_u32 v{KA[k]}, v61, 4, v59")
    late(f"""
    v_lshl_add_u32 v59, v7, 2, v5
    v_bfe_u32 v60, v59, 1, 2
    v_lshlrev_b32 v59, 7, v59
    v_lshl_add_u32 v59, v6, 3, v59
    """)
    for k in range(4):
        late(f"v_xor_b32 v61, {k}, v60\nv_lshl_add_u32 v{WA[0][k]}, v61, 5, v59")
    if P["msum"]:
        for k in range(2):
            late(f"v_xor_b32 v61, {4*k}, v58\nv_min_u32 v61, 1, v61\nv_add_u32 v61, -1, v61\nv_and_b32 v61, 0x3f803f80, v61")
            for n in range(4): late(f"v_accvgpr_write_b32 a{A_ONE+4*k+n}, v61")
        for n in range(4): late(f"v_mov_b32 v{LB[1]+n}, 0")
    late(f"""
    v_mul_u32_u24 v59, 1792, v58
    v_lshl_add_u32 v{V_OUT}, v{V_OUT}, 4, v59
    """)

    PR = []; head = Pair()
    def pr(p):
        if p < 0: return head
        while len(PR) <= p: PR.append(Pair())
        return PR[p]
    npair = [0]
    def frag(p): return A_F + 4 * (p % NF)
    def add_pair(m0, m1):
        p = npair[0]; npair[0] += 1
        if P.get("zig") and p & 1: m0, m1 = m1, m0
        pr(p).m = [I(m0), I(m1)]
        return p
    def mf(d, a, b, c): return f"v_mfma_f32_16x16x32_bf16 {vr(d,4)}, {a}, {b}, {c}"
    def rd_at(p, bp, l, bulk=None, LA=LA):
        q = p - LA
        if bulk is not None and q <= bp: bulk.extend(l)
        else: pr(max(q, bp)).reads.extend(l)
    def tread(p, tile, slot, areg, off):
        f = frag(p)
        return [I(f"ds_read_b64_tr_b16 {ar(f,2)}, v{areg} offset:{off}", tile=tile, slot=slot),
                I(f"ds_read_b64_tr_b16 {ar(f+2,2)}, v{areg} offset:{off+2048}", tile=tile, slot=slot)]
    def barrier(bp, tiles):
        pr(bp - 1).vmtags.extend(tiles); pr(bp).sc0.insert(0, I("s_barrier"))
    def place_dma(ds, poss):
        q = 0
        for pre, loads, post in ds:
            for n, ld in enumerate(loads):
                p = poss[q]; q += 1
                if n == 0:
                    pr(p - 1).sc0.extend(pre)
                pr(p).mem.append(ld)
                if n == 3 and post:
                    if len(post) == 2: pr(p + 1).sc0.append(post[0]); pr(p + 2).sc0.append(post[1])
                    else: pr(p + 1).sc0.extend(post)
    def place(l, p0, p1, pace=True, win=8):
        fr = [max(0, pr(p).free()) for p in range(p0, p1 + 1)]
        F = sum(fr); C = sum(cost(i) for i in l); cum = 0; done = 0
        todo = list(range(len(l))); rec = []
        dep = lambda a, b: (a.wr & (b.rd | b.wr)) or (a.rd & b.wr)
        for n, p in enumerate(range(p0, p1 + 1)):
            cum += fr[n]
            while todo:
                if pace and F > C and done > C * cum / F: break
                pick = None
                for x, k in enumerate(todo[:win]):
                    if cost(l[k]) > pr(p).free(): continue
                    if any(dep(l[y], l[k]) for y in todo[:x]): continue
                    if any((o.wr & l[k].rd) for o in pr(p).ops): continue
                    if cost(l[k]) == 2 and len(pr(p).ops) >= 2: continue
                    pick = k; break
                if pick is None: break
                todo.remove(pick); pr(p).ops.append(l[pick]); done += cost(l[pick]); rec.append((n, pick))
        if todo:
            if P.get("verbose"): print("overflow", p0, p1, len(todo))
            for k in todo: pr(p1).ops.append(l[k]); rec.append((p1 - p0, k))
        return rec

    kvq = [dma_k(0), dma_k(1), dma_v(0)] + ([dma_k(2)] if P["PDK"] >= 2 else []) + ([dma_v(1)] if P["PDV"] >= 2 else []) + ([dma_k(3)] if P["PDK"] >= 3 else [])
    for j in range(12 if P["merge"] else 14):
        u = j >> 1; slot = WQ_SLOT[j % 6]; ta = TA1 if slot >= 4 else TA0; base = (slot & 3) * 16384
        pb = npair[0]; bp = pb - LA
        bulk = None
        if j == 0:
            head.post += [I("@waitvm WQ0 X0"), I("s_barrier")]; bulk = head.post; bp = -1
        else: barrier(bp, [f"WQ{j}", f"X{u}"] + (["WQ13"] if P["bm"] and j == 12 else []))
        if P.get("qstamps") and j in P["qstamps"]: (head.post if j == 0 else pr(bp).post).extend(stamp_ins())
        if j & 1 == 0:
            for q in range(4):
                xr = I(f"ds_read_b128 {ar(A_X + 16*(u&1) + 4*q, 4)}, v{XA[q>>1]} offset:{(u&1)*16384 + (q&1)*2048}", tile=f"X{u}", slot=8 + (u & 1), private=True)
                if j == 0: head.post.append(xr)
                else: pr(bp + (q // 2 if P["bm"] and j == 12 else q)).reads.append(xr)
        for jj in range(16):
            p = npair[0]
            j2, blk = j, jj
            if P["bm"] and j >= 12:
                n = (j - 12) * 16 + jj; j2 = 12 + (n & 1); blk = n >> 1
            slot = WQ_SLOT[j2 % 6]; ta = TA1 if slot >= 4 else TA0; base = (slot & 3) * 16384
            rd_at(p, bp, tread(p, f"WQ{j2}", slot, ta[blk & 7], base + (blk >> 3) * 256), bulk, P["qla"][u] if isinstance(P.get("qla"), tuple) else P.get("qla", LA))
            xb = A_X + 16 * (u & 1) + 8 * (j2 & 1)
            add_pair(*[mf(O0 + 8*blk + 4*qb, ar(frag(p), 4), ar(xb + 4*qb, 4), "0" if j == 0 else vr(O0 + 8*blk + 4*qb, 4)) for qb in range(2)])
        b0 = pb - LA
        if j & 1 == 0:
            ds = []
            if j + 4 <= 13:
                ds = [dma_wq(j + 4), dma_x(u + 2), dma_wq(j + 5)]
                if P.get("xlast"):
                    dx = ds[1]; ds = [ds[0], (dx[0][:1] + ds[2][0], ds[2][1], ds[2][2]), (dx[0][1:], dx[1], dx[2])]
                if j in P["ek"]: ds.insert(P.get("ekpos", 0), kvq.pop(0))
            elif j == 10: ds = kvq[:P["kv10"]]
            elif j == 12: ds = kvq[P["kv10"]:P["kv10"] + P["kv12"]]
            poss = [b0 + 2 + (n * 30) // (4 * max(len(ds), 1)) for n in range(16)]
            if len(ds) == 4: poss = [b0 + 1 + 2 * n for n in range(16)]
            if len(ds) == 3 and P.get("xlast") and j + 4 <= 13: poss = [b0 + 2 + 4 * n for n in range(4)] + [b0 + 17 + 2 * n for n in range(8)]
            if j == 0:
                extra = [dma_wq(2), dma_wq(3)][P["pre2"]:]
                ds = extra + ds
                poss = {0: [1, 4, 7, 10], 1: [1, 2, 3, 4, 6, 8, 9, 10], 2: None}[len(extra)] + poss[4:12]
            place_dma(ds, poss)
        if j == 1:
            pr(pb).post += [I(f"s_cmp_lg_u32 s{S_WAVE}, 0"), I("s_cbranch_scc1 L_noclr"), I("s_mov_b32 exec_hi, 0"),
                            I(f"global_atomic_swap v{V_T1}, v{V_FLG}, v{V_POLL}, s[{S_FL}:{S_FL+1}] sc0", untracked=True),
                            I("s_mov_b64 exec, -1"), I("L_noclr:")]
        if j == 8:
            if P["ann"] == "s":
                pr(pb).post += [I(f"s_cmp_lg_u32 s{S_WAVE}, 0"), I("s_cbranch_scc1 L_noann"),
                                I(f"s_atomic_add s{S_ONE}, s[{S_DBG}:{S_DBG+1}], s{S_G4}"), I("L_noann:")]
            else:
                pr(pb).post += [I(f"s_cmp_lg_u32 s{S_WAVE}, 0"), I("s_cbranch_scc1 L_noann"), I("s_mov_b64 exec, 1"),
                                I(f"global_atomic_add v{V_DBG}, v{V_ONE}, s[{S_DBG}:{S_DBG+1}]", untracked=True), I("s_mov_b64 exec, -1"), I("L_noann:")]
    pq_end = npair[0]
    place(late.ins, 40, 130)
    q = 2
    for i in lsc.ins:
        while pr(q).sc0: q += 1
        pr(q).sc0.append(i)
    assert q < 186, q

    def softmax_ops(t):
        S = SB[t & 1]; Pp = PB[t & 1]; l = []
        T = lambda e: TT[e & 7]
        for e in range(17):
            if e < 16: l.append(I(f"v_exp_f32 v{T(e)}, v{S+e}"))
            d = e - 1
            if d >= 0:
                lt = V_LT[d >> 3]
                if P["msum"]: pass
                elif d & 7 == 1: l.append(I(f"v_add_f32 v{lt}, v{T(d-1)}, v{T(d)}"))
                elif d & 7 > 1: l.append(I(f"v_add_f32 v{lt}, v{lt}, v{T(d)}"))
                if d & 1: l.append(I(f"v_cvt_pk_bf16_f32 v{Pp+(d>>1)}, v{T(d-1)}, v{T(d)}"))
        return l
    def summ(t):
        n, o = LB[t & 1], LB[1 - (t & 1)]
        return [I(mf(n, ar(A_ONE, 4), vr(PB[t & 1], 4), vr(o, 4)), aux=True), I(mf(n, ar(A_ONE + 4, 4), vr(PB[t & 1] + 4, 4), vr(n, 4)), aux=True)]
    def allmax(x, t):
        return [I(f"v_mov_b32 v{t}, v{x}"), I(f"v_permlane32_swap_b32 v{x}, v{t}"), I(f"v_max_f32 v{x}, v{x}, v{t}"),
                I(f"v_mov_b32 v{t}, v{x}"), I(f"v_permlane16_swap_b32 v{x}, v{t}"), I(f"v_max_f32 v{x}, v{x}, v{t}")]
    def rowmax(S, x):
        return [I(f"v_max3_f32 v{x}, v{S}, v{S+1}, v{S+2}"), I(f"v_max3_f32 v{x}, v{x}, v{S+3}, v{S+4}"),
                I(f"v_max3_f32 v{x}, v{x}, v{S+5}, v{S+6}"), I(f"v_max_f32 v{x}, v{x}, v{S+7}")]
    def inter(a, b):
        o = []
        for x, y in zip(a, b): o += [x, y]
        return o
    def qk(t, bp, bulk=None, steps=range(8)):
        slot = t % 4; S = SB[t & 1]
        for q in steps:
            for kb in range(2):
                p = npair[0]
                rd_at(p, bp, [I(f"ds_read_b128 {ar(frag(p),4)}, v{KA[q&3]} offset:{slot*16384 + (q>>2)*256 + kb*2048}", tile=f"K{t}", slot=slot)], bulk)
                add_pair(*[mf(S + 8*qb + 4*kb, ar(frag(p), 4), ar(A_Q + 8*q + 4*qb, 4),
                              (("0" if t == 0 else vr(NM + 4*qb, 4)) if q == 0 else vr(S + 8*qb + 4*kb, 4))) for qb in range(2)])
    def pv(t, bp, bulk=None):
        slot = 4 + t % 4
        for jj in range(16):
            p = npair[0]
            rd_at(p, bp, tread(p, f"V{t}", slot, TA1[jj & 7], (t % 4) * 16384 + (jj >> 3) * 256), bulk)
            add_pair(*[mf(O0 + 8*jj + 4*qb, ar(frag(p), 4), vr(PB[t & 1] + 4*qb, 4), "0" if t == 0 else vr(O0 + 8*jj + 4*qb, 4)) for qb in range(2)])

    def qconv(q, pk=True):
        l = []
        for qb in range(2):
            X = O0 + 16*q + 4*qb; Y = X + 8
            if pk: l += [I(f"v_pk_mul_f32 {vr(r,2)}, {vr(r,2)}, s[{S_C}:{S_C+1}]") for r in (X, X + 2, Y, Y + 2)]
            else: l += [I(f"v_mul_f32 v{r}, s{S_C}, v{r}") for r in list(range(X, X + 4)) + list(range(Y, Y + 4))]
        for qb in range(2):
            X = O0 + 16*q + 4*qb; Y = X + 8
            l += [I(f"v_cvt_pk_bf16_f32 v{X}, v{X}, v{X+1}"), I(f"v_cvt_pk_bf16_f32 v{Y}, v{Y}, v{Y+1}"),
                  I(f"v_cvt_pk_bf16_f32 v{X+1}, v{X+2}, v{X+3}"), I(f"v_cvt_pk_bf16_f32 v{Y+1}, v{Y+2}, v{Y+3}")]
        for sw in ("16",):
            for qb in range(2):
                X = O0 + 16*q + 4*qb; Y = X + 8
                l += [I(f"v_permlane{sw}_swap_b32 v{X}, v{Y}"), I(f"v_permlane{sw}_swap_b32 v{X+1}, v{Y+1}")]
        for qb in range(2):
            X = O0 + 16*q + 4*qb; Y = X + 8
            l += [I(f"v_accvgpr_write_b32 a{A_Q+8*q+4*qb+n}, v{r}") for n, r in enumerate((X, X + 1, Y, Y + 1))]
        return l
    if P["merge"]:
        pb = npair[0]; bp = pb - LA
        barrier(bp, ["WQ12", "WQ13", "X6", "K0"])
        for q in range(4):
            pr(bp + q // 2).reads.append(I(f"ds_read_b128 {ar(A_X + 4*q, 4)}, v{XA[q>>1]} offset:{(q&1)*2048}", tile="X6", slot=8, private=True))
        def group(g):
            for n in range(4):
                p = npair[0]; j2 = 12 + (n & 1); blk = 2 * g + (n >> 1)
                slot = WQ_SLOT[j2 % 6]
                rd_at(p, bp, tread(p, f"WQ{j2}", slot, TA1[blk & 7], (slot & 3) * 16384 + (blk >> 3) * 256))
                add_pair(*[mf(O0 + 8*blk + 4*qb, ar(frag(p), 4), ar(A_X + 8*(j2 & 1) + 4*qb, 4), vr(O0 + 8*blk + 4*qb, 4)) for qb in range(2)])
        seg = []
        group(0)
        for g in range(8):
            st = npair[0]
            if g >= 1: qk(0, bp, steps=[g - 1])
            if g < 7: group(g + 1)
            seg.append((st, npair[0] - 1))
        qk(0, bp, steps=[7])
        tr = kvq[P["kv10"]:] + ([dma_wo(0), dma_wo(1)] if P["ewo"] else [])
        place_dma(tr, [pb + 1 + (n * 44) // (4 * len(tr)) for n in range(4 * len(tr))])
        for g, (a, b) in enumerate(seg):
            l = qconv(g)
            pr(a).post += l[:8]
            l = l[8:]; n = b - a; tot = sum(cost(i) for i in l); acc_ = 0
            for i in l:
                pr(a + 1 + min(n - 1, acc_ * n // tot)).ops.append(i); acc_ += cost(i)
        pr(pb - 1).post += stamp_ins()
    else:
        barrier(pq_end - LA, ["K0"])
        p0 = npair[0]
        qk(0, pq_end - LA)
        rest = kvq[P["kv10"] + P["kv12"]:]
        tr = rest + ([dma_wo(0), dma_wo(1)] if P["ewo"] else [])
        for d in tr[:-2] if len(tr) > 2 else []: pr(pq_end - 1).post += flat(d)
        place_dma(tr[-2:], [p0 + 1 + 2 * n for n in range(8)])
        place(qconv(0, False), pq_end - (26 if P["bm"] else 12), pq_end - 1, pace=False)
        pr(pq_end - 1).post += stamp_ins()
        for q in range(1, 8): pr(pq_end - 1).post += qconv(q)[:8]
        for q in range(1, 8):
            l = qconv(q)[8:]; h = len(l) // 2
            pr(p0 + 2*q - 2).ops += l[:h]; pr(p0 + 2*q - 1).ops += l[h:]
    pz = npair[0] - 1
    init = inter(rowmax(SB[0], V_T0) + allmax(V_T0, TT[0]), rowmax(SB[0] + 8, V_T1) + allmax(V_T1, TT[1]))
    for qb, x in enumerate((V_T0, V_T1)):
        init += [I(f"v_sub_f32 v{NM+4*qb+n}, 0, v{x}") for n in range(4)]
    for qb, x in enumerate((V_T0, V_T1)):
        init += [I(f"v_sub_f32 v{SB[0]+8*qb+n}, v{SB[0]+8*qb+n}, v{x}") for n in range(8)]
    if not P["msum"]: init += [I(f"v_mov_b32 v{V_L[0]}, 0"), I(f"v_mov_b32 v{V_L[1]}, 0")]
    bulk0 = []
    pr(pz).post += [I("@waitvm K1 V0"), I("s_barrier"), I("@bulk0")] + init + stamp_ins()
    wa_late = [I(f"v_add_u32 v{WA[w][k]}, {0x10000*w}, v{WA[0][k]}") for w in (1, 2) for k in range(4)]

    stubs = []; step_start = []
    bp = pz
    for t in range(32):
        ps = npair[0]; step_start.append(ps)
        inloop = 1 <= t <= 28
        lab = f"{t%4}" if inloop else f"p{t}"
        if t <= 4 or t > 28: stubs.append((lab, t & 1))
        chk = [I(f"v_max_f32 v{V_T0}, v{V_LT[0]}, v{V_LT[1]}"), I(f"v_cmp_nge_f32 vcc, s{S_THR}, v{V_T0}")]
        br = [I(f"s_cbranch_vccnz L_fix{lab}"), I(f"L_ret{lab}:")]
        acc = [I(f"v_add_f32 v{V_L[qb]}, v{V_L[qb]}, v{V_LT[qb]}") for qb in range(2)]
        if P["msum"]:
            chk = [I(f"v_cmp_nge_f32 vcc, s{S_THR}, v{LB[t & 1]}")]; acc = []
            if t == 31: chk = summ(t) + chk
        bulk31 = []
        if t < 31:
            qk(t + 1, bp, bulk0 if t == 0 else None)
            pp = npair[0]
            pv(t, bp)
        else:
            pp = npair[0]
            if P["b31"]:
                pv(t, bp)
                pr(ps - 1).post += chk + br
            else:
                pv(t, bp, bulk31)
                pr(ps - 1).post += chk + br + [I("@waitvm V31"), I("s_barrier")] + bulk31
        pe = npair[0]
        nb = pe - LA
        if t < 30: barrier(nb, [f"K{t+2}", f"V{t+1}"])
        if t == 30 and P["b31"]: barrier(nb, ["V31"])
        if P.get("tap") is not None and inloop:
            pr(nb - 1).sc0.append(I(f"s_cmp_{'ge' if len(P['tap']) > 2 else 'lt'}_i32 s{S_CNT}, {P['tap'][0] - 7}"))
            pr(nb - 1).sc1.extend([I(f"s_cbranch_scc1 L_nt{lab}"), I(f"s_waitcnt vmcnt({P['tap'][1]})", blind=True), I(f"L_nt{lab}:")])
        ds = []
        tv = t + P["PDV"]; tk = t + 1 + P["PDK"]
        if tv <= 31: ds.append(dma_v(tv))
        if tk <= 31 or inloop: ds.append(dma_k(tk))
        if P["PDK"] <= P["PDV"] and len(ds) == 2 and not (0, 1, t & 1, 1 - (t & 1))[P.get("vfirst", 0)]: ds = ds[::-1]
        plan = {29: [2], 30: [3, 4, 5], 31: [6]} if P["ewo"] else {29: [0], 30: [1, 2], 31: [3]}
        ds += [dma_wo(x) for x in plan.get(t, [])]
        dsp = P["dsp"] if len(ds) <= 2 else 2
        dl = P.get("dl", 0)
        late = P.get("late", 0)
        if late and t <= 29:
            early = [ps + 2 * late - LA + 3 + dl + dsp * n for n in range(8 - late)]
            assert early[-1] < nb - 1
            poss = early + [nb + 1 + dl + 2 * n for n in range(late)]
        elif late:
            poss = [ps + 2 * late - LA + 3 + dl + (2 * n if late * 2 + dl <= 8 else n + n // 4) for n in range(12)] if t == 30 else [ps + 1 + 2 * n for n in range(12)]
        else: poss = [ps + 1 + dsp * n for n in range(12)]
        place_dma(ds, poss)
        if inloop and t % 4 == 0:
            pr(pe - 1).sc0.append(I(f"s_add_u32 s{S_CNT}, s{S_CNT}, 1"))
            pr(pe - 1).post.append(I("s_cbranch_scc0 L_loop"))
        if P.get("lstamps"):
            pr(ps + 2).post += [I("s_waitcnt lgkmcnt(0)", blind=True), I(f"s_memrealtime s[{S_ST}:{S_ST+1}]"), I(f"s_memtime s[{S_ST+2}:{S_ST+3}]"),
                I("v_mov_b32_dpp v70, v70 wave_shr:1 row_mask:0xf bank_mask:0xf"), I("v_mov_b32_dpp v71, v71 wave_shr:1 row_mask:0xf bank_mask:0xf"),
                I("s_waitcnt lgkmcnt(0)", blind=True), I(f"v_writelane_b32 v70, s{S_ST}, 0"), I(f"v_writelane_b32 v71, s{S_ST+2}, 0")]
        if t == 0: pr(pe - 2).sc0.append(I(f"s_mov_b32 s{S_CNT}, -7"))
        if P["cpf"] >= 2 and inloop and t % 4 == 1:
            pr(pp + 5).mem.append(I(f"global_load_dword v{V_CP+1}, v{V_CP}, s[{S_PC}:{S_PC+1}]", nodep=True))
        yield_info = (t, ps, pp, pe, chk, br, acc)
        step_start[-1] = yield_info
        bp = nb if (t < 30 or P["b31"]) else pe - 1
    pm_end = npair[0]

    ACC = [SB[0], O0 + 64]
    otile = []
    for j in range(14):
        u = j >> 1; kh = j & 1; slot = WO_SLOT[j]; wa = WA[slot >> 2]; base = (slot & 3) * 16384
        pb = npair[0]; bp = pb - LA; otile.append(pb)
        if P["half"]:
            cover = {0: range(0, 6), 3: [], 6: range(6, 10), 10: range(10, 14)}
        else: cover = {0: range(0, 6), 3: [], 6: range(6, 9), 9: range(9, 14)}
        if j in cover: barrier(bp, [f"WO{x}" for x in cover[j]])
        for n in range(16):
            p = npair[0]
            if P["half"] and u > 0: q = n >> 1; jn = 2 * kh + (n & 1)
            else: q = 4 * kh + (n >> 2); jn = n & 3
            j2 = 2 * u + (q >> 2); slot = WO_SLOT[j2]
            rd_at(p, bp, tread(p, f"WO{j2}", slot, WA[slot >> 2][jn], (slot & 3) * 16384 + (q & 3) * 4096))
            a = ACC[u & 1] + 4 * jn
            add_pair(*[mf(a + 16*qb, ar(frag(p), 4), vr(O0 + 8*q + 4*qb, 4), "0" if q == 0 else vr(a + 16*qb, 4)) for qb in range(2)])
        ds = {0: [7], 1: [8], 3: [9], 4: [10], 5: [11], 6: [12], 7: [13]}.get(j, [])
        place_dma([dma_wo(x) for x in ds], [bp + 1 + 4 * n for n in range(4)])

    for (t, ps, pp, pe, chk, br, acc) in step_start:
        if t < 31: pr(pp - 1).sc0.extend(br)
        place(acc, pp, pp + 1, pace=False)
        if P["msum"] and t < 31:
            pr(pp - 5).post += summ(t); pr(pp - 2).ops += chk; chk[:] = []
    w0 = step_start[9][2] + P["sm_start"]
    rec = place(softmax_ops(10) + step_start[10][4], w0, step_start[10][2] - (6 if P["msum"] else 2))
    for t in range(1, 31):
        if t == 10: continue
        l = softmax_ops(t) + step_start[t][4]
        for n, k in rec: pr(step_start[t-1][2] + P["sm_start"] + n).ops.append(l[k])
    l = softmax_ops(0) + step_start[0][4]
    nrel = step_start[1][1] - (step_start[0][2] + P["sm_start"])
    for n, k in rec:
        if n < nrel: pr(pz).post.append(l[k])
        else: pr(step_start[0][1] + n - nrel).ops.append(l[k])
    place(softmax_ops(31), step_start[30][2] + P["sm_start"], step_start[30][3] - 1, pace=False)
    place(wa_late, step_start[0][1], step_start[0][3] - 1, pace=False)
    pr(step_start[29][2]).mem.append(I(f"global_load_dword v{V_POLL}, v{V_DBG}, s[{S_DBG}:{S_DBG+1}] sc1", tag="HS"))
    def allsum(x, t):
        return [I(f"v_mov_b32 v{t}, v{x}"), I(f"v_permlane32_swap_b32 v{x}, v{t}"), I(f"v_add_f32 v{x}, v{x}, v{t}"),
                I(f"v_mov_b32 v{t}, v{x}"), I(f"v_permlane16_swap_b32 v{x}, v{t}"), I(f"v_add_f32 v{x}, v{x}, v{t}")]
    lsum = inter(allsum(V_L[0], V_T0), allsum(V_L[1], V_T1)) + [I(f"v_rcp_f32 v{V_RI[qb]}, v{V_L[qb]}") for qb in range(2)]
    if P["msum"]:
        x, y = LB[1], V_T0; u, v = LB[0], V_T1
        lsum = [I(f"v_mov_b32 v{y}, v{x}"), I(f"v_permlane16_swap_b32 v{x}, v{y}"), I(f"v_mov_b32 v{u}, v{x}"), I(f"v_mov_b32 v{v}, v{y}"),
                I(f"v_permlane32_swap_b32 v{x}, v{u}"), I(f"v_permlane32_swap_b32 v{y}, v{v}"),
                I(f"v_rcp_f32 v{V_RI[0]}, v{x}"), I(f"v_rcp_f32 v{V_RI[1]}, v{y}")]
    def oconv(q):
        l = []
        for qb in range(2):
            X = O0 + 16*q + 4*qb; Y = X + 8; D = O0 + 8*q + 4*qb
            l.append([(D, X), (D + 1, X + 2), (D + 2, Y), (D + 3, Y + 2)])
        o = l[0] + l[1]
        if q == 0:
            pass
        return [I(f"v_cvt_pk_bf16_f32 v{d}, v{x}, v{x+1}") for d, x in o]
    if P["prenorm"]:
        place(lsum, pm_end - 16, pm_end - 9, pace=False)
        def omul(q):
            return [I(f"v_pk_mul_f32 {vr(r,2)}, {vr(r,2)}, {vr(V_RI[0],2)} op_sel:[0,{qb}] op_sel_hi:[1,{qb}]")
                    for qb in range(2) for r in (O0 + 16*q + 4*qb, O0 + 16*q + 4*qb + 2, O0 + 16*q + 8 + 4*qb, O0 + 16*q + 10 + 4*qb)]
        for q0 in range(0, 8, 2):
            a = pm_end - 8 + 4 * q0
            pr(a).post += omul(q0) + omul(q0 + 1)
            place(oconv(q0), a + 1, a + 5, pace=False); place(oconv(q0 + 1), a + 5, a + 8, pace=False)
        pr(pm_end - 1).post += stamp_ins()
    else:
        place(oconv(0) + oconv(1), pm_end - 10, pm_end - 1)
        pr(pm_end - 1).post += stamp_ins()
        for q in range(2, 8):
            place(oconv(q), pm_end + 4 * (q - 2), pm_end + 4 * (q - 2) + 3)
        place(lsum, pm_end + 24, pm_end + 33)
    STG = [PB[0], PB[1]]
    def finish(u, pk=False, qs=range(8)):
        l = []
        for qb in range(2):
            a = ACC[u & 1] + 16 * qb; st = STG[qb]
            for q in qs:
                if P["prenorm"]: pass
                elif pk: l.append(I(f"v_pk_mul_f32 {vr(a+2*q,2)}, {vr(a+2*q,2)}, {vr(V_RI[0],2)} op_sel:[0,{qb}] op_sel_hi:[1,{qb}]"))
                else:
                    l.append(I(f"v_mul_f32 v{a+2*q}, v{V_RI[qb]}, v{a+2*q}"))
                    l.append(I(f"v_mul_f32 v{a+2*q+1}, v{V_RI[qb]}, v{a+2*q+1}"))
                l.append(I(f"v_cvt_pk_bf16_f32 v{st+q}, v{a+2*q}, v{a+2*q+1}"))
                if q & 3 == 3 and not P.get("nostore"):
                    l.append(I(f"buffer_store_dwordx4 {vr(st+q-3,4)}, v{V_L16}, s[{S_P}:{S_P+3}], s{SOFF[u]} offen offset:{qb*2048+(q>>2)*1024} {P['st_aux']}", tag=f"PST{u}"))
        return l
    bp = otile[0] + int(16 * P["sig"]) - LA
    barrier(bp, [f"PST{P['n1']-1}"])
    sig = Stream()
    sig(f"""
    s_cmp_lg_u32 s{S_WAVE}, 0
    s_cbranch_scc1 L_nosig1
    v_readfirstlane_b32 s{S_T0}, v{V_POLL}
    s_cmp_lt_u32 s{S_T0}, 16
    s_cbranch_scc1 L_hs
    L_hsok:
    s_mov_b64 exec, 0xffff
    """)
    sig(f"global_store_dword v{V_FLG2}, v{V_ONE}, s[{S_FL}:{S_FL+1}] sc1", untracked=True)
    sig("s_mov_b64 exec, -1\nL_nosig1:")
    pr(bp).post += sig.ins
    if P["early"]:
        pr(npair[0] - P["early"]).mem.append(I(f"global_load_dword v{V_EP}, v{V_FLG}, s[{S_FL}:{S_FL+1}] sc1", tag="EP"))
    if P.get("ostamps"):
        for u in range(1, 7): pr(otile[2 * u] - 1).post += stamp_ins()
    if P["half"]:
        H = (range(0, 4), range(4, 8))
        k = otile[2] + 2
        for j in range(13):
            u, kh = j >> 1, j & 1
            first = max(k, (otile[2] + 2) if u == 0 else otile[j] + 17)
            last = (otile[j + 4] if j + 4 < 14 else npair[0]) - 1
            if P["prenorm"] and u > 0: last = min(last, first + 14)
            rec_ = place(finish(u, qs=H[kh]), first, last, pace=bool(P["prenorm"] and u > 0))
            k = first + max(n for n, _ in rec_)
        pr(npair[0] - 1).post += [I("@stop")] + finish(6, True, H[1])
    else:
        for u in range(1, 7):
            pb = otile[2 * u]
            place(finish(u - 1), pb + (2 if u == 1 else 1), pb + 31, pace=False)
        pr(npair[0] - 1).post += [I("@stop")] + finish(6, True)

    def gap_order(mem, ops):
        first = list(mem); rest = []
        for i in ops:
            if i.kind == "vmem" and not any(x.wr & i.rd for x in rest): first.append(i)
            else: rest.append(i)
        return first + rest
    def emit_list(l):
        for i in l:
            if i.kind == "pseudo" and i.op == "@bulk0":
                for x in bulk0: s.add(x)
            else: s.add(i)
    notes = {0: "---- Q projection: Q^T = Wq_h^T x^T, Wq / x tiles through the LDS ring ----",
             192: "---- last Q unit, Q scaled by log2(e)/16 and rounded to bf16, first score tile ----",
             step_start[0][1]: "---- attention step 0 (scores of tile t+1, softmax of tile t, O += V^T P) ----",
             step_start[29][1]: "---- attention steps 29..31 ----",
             pm_end: "---- output projection: this head's share of out^T = Wo_h^T O^T, stored as bf16 partial sums ----"}
    emit_list(head.sc0 + head.post)
    starts = {x[1]: x[0] for x in step_start}
    worst = 0
    for p, q in enumerate(PR):
        if p in starts and starts[p] % 4 == 1: s.add(I(f"@block {starts[p]//4}"))
        if p in notes: s.add(I("@c " + notes[p]))
        mem = q.reads + q.mem
        best = None
        e0 = max(0, sum(cost(x) for x in q.sc0) - 1); e1 = sum(cost(x) for x in q.sc1)
        for r0 in range(len(mem), -1, -1):
            for k in range(len(q.ops) + 1):
                c0 = e0 + r0 + sum(cost(x) for x in q.ops[:k]); c1 = e1 + len(mem) - r0 + sum(cost(x) for x in q.ops[k:])
                nr = len(q.reads); ra = min(r0, nr)
                sc_ = (max(c0, 2) + max(c1, 2), max(c0, c1), abs(2 * ra - nr) if P["bal"] else 0, -r0)
                if best is None or sc_ < best[0]: best = (sc_, r0, k)
        _, r0, k = best
        worst += best[0][0] - 4
        emit_list(q.pre)
        s.add(q.m[0]); emit_list(q.sc0); emit_list(gap_order(mem[:r0], q.ops[:k]))
        s.add(q.m[1]); s.add(I("@waitnext " + " ".join(q.vmtags), span=(4 if (P.get("w2") and p & 1) else 2))); emit_list(q.sc1); emit_list(gap_order(mem[r0:], q.ops[k:]))
        pad = (P.get("qpad", 0) if p < P.get("qpadn", 999) else 0) if p < pq_end else (P.get("mpad", 0) if p < pm_end else P.get("opad", 0))
        if pad: s.add(I(f"s_nop {pad-1}"))
        emit_list(q.post)
    if P.get("verbose"): print("overfull slots:", worst)

    poll = f"global_load_dword v{V_EP}, v{V_FLG}, s[{S_FL}:{S_FL+1}] sc1"
    s("@c ---- hand-off to the group's sixteen workgroups and sum over heads ----")
    tailsubs = Stream()
    def signal2(st, lab):
        st(f"s_cmp_lg_u32 s{S_WAVE}, 0\ns_cbranch_scc1 {lab}\ns_mov_b64 exec, 0xffff")
        st(f"global_store_dword v{V_FLG2}, v{V_ONE}, s[{S_FL}:{S_FL+1}] offset:64 sc1", untracked=True)
        st(f"s_mov_b64 exec, -1\n{lab}:\ns_mov_b32 s{S_CNT}, 0")
    def loads(st, o=None):
        o = o or s
        for h in range(16):
            o(f"buffer_load_dwordx4 {vr(O0+64*st+4*h,4)}, v{V_L16}, s[{S_P}:{S_P+3}], s{S_RR[st]} offen {P['ld_aux']}", tag=f"R{st}_{h}")
            if h < 15: o(f"s_add_u32 s{S_RR[st]}, s{S_RR[st]}, {PART_H}")
    if P["early"]:
        s(f"""
        v_cmp_ne_u32 vcc, 1, v{V_EP}
        s_cmp_eq_u32 s{S_RA[0]}, 0
        s_cselect_b32 s{S_T0}, 0xffff, vcc_lo
        s_and_b32 s{S_T0}, s{S_T0}, 0xffff
        s_cbranch_scc0 L_early
        """)
        tailsubs("L_early:")
        loads(0, tailsubs)
        tailsubs("s_waitcnt vmcnt(16)\ns_barrier")
        signal2(tailsubs, "L_nosig2e")
        tailsubs("s_branch L_join")
        tailsubs("s_waitcnt vmcnt(0)")
    s(poll)
    for i in stamp_ins(): s.add(i)
    s("s_waitcnt vmcnt(0)\ns_barrier")
    for i in stamp_ins(): s.add(i)
    signal2(s, "L_nosig2")
    tailsubs(f"""
    L_hs:
    s_mov_b32 s{S_CNT}, 0
    L_hs2:
    s_sleep 8
    global_load_dword v{V_POLL}, v{V_DBG}, s[{S_DBG}:{S_DBG+1}] sc1
    s_waitcnt vmcnt(0)
    v_readfirstlane_b32 s{S_T0}, v{V_POLL}
    s_add_u32 s{S_CNT}, s{S_CNT}, 1
    s_cmp_ge_u32 s{S_CNT}, 0x40000
    s_cbranch_scc1 L_hsok
    s_cmp_lt_u32 s{S_T0}, 16
    s_cbranch_scc1 L_hs2
    s_branch L_hsok
    """)
    def waitflags(st):
        mask = 0xffff << (16 * st)
        s(f"""
        L_w{st}:
        v_cmp_ne_u32 vcc, 1, v{V_EP}
        s_and_b32 s{S_T0}, vcc_lo, {mask:#x}
        s_cbranch_scc0 L_ok{st}
        s_add_u32 s{S_CNT}, s{S_CNT}, 1
        s_cmp_ge_u32 s{S_CNT}, 0x40000
        s_cbranch_scc1 L_ok{st}
        s_sleep {P['sleep']}
        """)
        s(poll, untracked=True)
        s(f"s_waitcnt vmcnt(0)", blind=True)
        s(f"s_branch L_w{st}\nL_ok{st}:")
    def accum(st, h0, h1):
        A0 = SB[st]
        for h in range(h0, h1):
            for q in range(4):
                r = O0 + 64 * st + 4 * h + q
                for z, k in enumerate((S_LO, S_HI)):
                    s(f"v_dot2_f32_bf16 v{A0+2*q+z}, v{r}, s{k}, " + ("0" if h == 0 else f"v{A0+2*q+z}"))
    def final(st):
        A0 = SB[st]; D = PB[st]
        for q in range(4): s(f"v_cvt_pk_bf16_f32 v{D+q}, v{A0+2*q}, v{A0+2*q+1}")
        for sw in ("16",):
            s(f"v_permlane{sw}_swap_b32 v{D}, v{D+2}\nv_permlane{sw}_swap_b32 v{D+1}, v{D+3}")
        s(f"buffer_store_dwordx4 {vr(D,4)}, v{V_OUT}, s[{S_OUT}:{S_OUT+3}], s{S_RO[st]} offen {P['out_aux']}")
    s(f"s_cmp_eq_u32 s{S_RA[0]}, 0\ns_cbranch_scc1 L_st2")
    waitflags(0)
    loads(0)
    s("L_join:")
    accum(0, 0, 16 - P["pw"])
    s(poll)
    accum(0, 16 - P["pw"], 16)
    s("s_waitcnt vmcnt(0)")
    s("L_st2:")
    for i in stamp_ins(): s.add(i)
    s(f"s_cmp_eq_u32 s{S_RA[1]}, 0\ns_cbranch_scc1 L_fin0")
    waitflags(1)
    loads(1)
    accum(1, 0, 16)
    final(1)
    s(f"s_cmp_eq_u32 s{S_RA[0]}, 0\ns_cbranch_scc1 L_done\nL_fin0:\ns_nop 2")
    final(0)
    s("L_done:")
    if P.get("probe") is not None:
        s("s_waitcnt vmcnt(0)\ns_barrier")
        for i in stamp_ins(): s.add(i)
        s(f"""
        L_spin:
        s_sleep 4
        s_memrealtime s[{S_ST+2}:{S_ST+3}]
        s_waitcnt lgkmcnt(0)
        s_sub_u32 s{S_T0}, s{S_ST+2}, s{S_ST}
        s_cmp_lt_u32 s{S_T0}, 10000
        s_cbranch_scc1 L_spin
        """)
    if P["stamps"]:
        s("s_waitcnt vmcnt(0)\ns_barrier")
        for i in stamp_ins(): s.add(i)
        s(f"""
        s_lshl_b32 s3, s2, 7
        v_lshrrev_b32 v59, 2, v{V_L16}
        v_add_u32 v59, s3, v59
        s_cmp_lg_u32 s{S_WAVE}, 0
        s_cbranch_scc1 L_end
        s_mov_b32 exec_hi, 0
        global_store_dword v59, v{V_ST}, s[{S_WS}:{S_WS+1}]
        v_add_u32 v59, 0x10000, v59
        global_store_dword v59, v70, s[{S_WS}:{S_WS+1}]
        v_add_u32 v59, 0x10000, v59
        global_store_dword v59, v71, s[{S_WS}:{S_WS+1}]
        """)
    s("L_end:\ns_endpgm")

    ins = resolve(s.ins, pair_waits=False, verbose=P.get("verbose"))
    marks = [k for k, i in enumerate(ins) if i.kind == "pseudo" and i.op == "@block"]
    assert len(marks) == 8
    blocks = [text_of(ins[marks[b]:marks[b+1]]) for b in range(7)]
    for b in range(1, 7):
        if blocks[b] != blocks[0]:
            import difflib
            print("".join(list(difflib.unified_diff(blocks[0].splitlines(1), blocks[b].splitlines(1), n=1))[:60]))
            raise SystemExit(f"block {b} differs from block 0")
    body = text_of(ins[:marks[0]]) + "; ---- attention steps 1..28, four per iteration ----\n.p2align 3\nL_loop:\n" + blocks[0] + text_of(ins[marks[7]:])

    r = Stream()
    r("@c ---- rare path: a row sum left its safe range; raise the reference to the true running max and rescale ----")
    for lab, par in stubs:
        r(f"L_fix{lab}:\ns_call_b64 s[{S_RET}:{S_RET+1}], L_rescale{par}\ns_branch L_ret{lab}")
    for par in range(2):
        r(f"L_rescale{par}:\ns_nop 15\n@fence")
        S = SB[par]; S2 = SB[1 - par]
        for qb, x in enumerate((V_T0, V_T1)):
            for i in rowmax(S + 8*qb, x) + allmax(x, TT[0]): r.add(i)
            r(f"v_max_f32 v{x}, 0, v{x}\nv_exp_f32 v{TT[1]}, -v{x}")
            for n in range(4): r(f"v_sub_f32 v{NM+4*qb+n}, v{NM+4*qb+n}, v{x}")
            for n in range(8): r(f"v_sub_f32 v{S+8*qb+n}, v{S+8*qb+n}, v{x}\nv_sub_f32 v{S2+8*qb+n}, v{S2+8*qb+n}, v{x}")
            if P["msum"]:
                r(f"s_mov_b32 exec_lo, {0xffff << (16 * qb):#x}\ns_mov_b32 exec_hi, 0\nv_mul_f32 v{LB[1-par]}, v{LB[1-par]}, v{TT[1]}\ns_mov_b64 exec, -1")
            else: r(f"v_mul_f32 v{V_L[qb]}, v{V_L[qb]}, v{TT[1]}")
            for jj in range(16):
                for n in range(4): r(f"v_mul_f32 v{O0+8*jj+4*qb+n}, v{TT[1]}, v{O0+8*jj+4*qb+n}")
        for i in softmax_ops(par): r.add(i)
        if P["msum"]:
            for i in summ(par): r.add(i)
            r("s_nop 7")
        r(f"s_nop 3\ns_setpc_b64 s[{S_RET}:{S_RET+1}]")
    body += text_of(resolve(tailsubs.ins)) + text_of(resolve(r.ins)) + "L_codeend:\n"
    doc = """;
; One workgroup per (branch, batch, head), four waves of 32 queries, one workgroup per CU.
;   1. Q^T = Wq_h^T x^T (MFMA 16x16x32 bf16), scaled by log2(e)/sqrt(256), rounded to bf16, kept in registers.
;   2. Flash-style attention over 32-key tiles streamed by LDS-DMA through a ring of 16-KiB slots.
;      S^T = K Q^T starts from -m (m = row max of the first tile, raised to the true running max by the
;      rescale path whenever a running row sum leaves its safe range), P = exp2(S^T), O^T += V^T P.
;   3. out^T share = Wo_h^T (O^T / l), written to d_ws as bf16 partial sums (write-through stores).
;   4. The sixteen head workgroups of a (branch, batch) group exchange flags in d_ws (cleared at start, the
;      clearing announced through d_debug) and each wave sums its pieces over the sixteen heads.""".split("\n")
    return whole_file(doc + ["; @launch grid=(256,1,1) block=(256,1,1) lds=163840"], [kernel_block(KN, body, 512, 102, 256)])

if __name__ == "__main__":
    out = sys.argv[1]
    kw = {}
    for a in sys.argv[2:]:
        k, v = a.split("=", 1)
        try: v = eval(v)
        except Exception: pass
        kw[k] = v
    open(out, "w").write(build(**kw))
```
